```python
import torch

def _softmax(x, axis=-1):
    return torch.softmax(x, dim=axis)
def _gelu(x):
    return torch.nn.functional.gelu(x, approximate="tanh")
def _silu(x):
    return torch.nn.functional.silu(x)
def _sigmoid(x):
    return torch.sigmoid(x)
def _layernorm(x, axis=-1, eps=1e-5):
    m = x.mean(dim=axis, keepdim=True)
    v = x.var(dim=axis, keepdim=True, unbiased=False)
    return (x - m) / torch.sqrt(v + eps)
def _scatter_add(tgt, idx, src, axis=0):
    return tgt.clone().index_add_(axis, idx, src)
def _segment_sum(src, seg, n):
    out = torch.zeros((n,) + src.shape[1:], dtype=src.dtype)
    return out.index_add_(0, seg, src)
def _pad(x, pw):
    flat = tuple(v for pair in reversed(pw) for v in pair)
    return torch.nn.functional.pad(x, flat)

kernel_name = 'gated_mix__ssm_conv_s4__dense_activation_squared_relu__prompt'

def setup_inputs():

    _w = (lambda a: (lambda t: t.to(torch.bfloat16) if t.is_floating_point() else t)(torch.as_tensor(a)))
    def _A_setup():
        B, L, D, N = 1, 2048, 640, 192
        A_re = -(lambda _x: torch.exp(torch.as_tensor(_x)))((lambda *s: torch.randn(*s, dtype=torch.bfloat16) * 6.4)(D, N))
        A_im = torch.pi * (lambda *s: torch.randn(*s, dtype=torch.bfloat16) * 0.1)(D, N)
        B_re = (lambda *s: torch.randn(*s, dtype=torch.bfloat16) * 0.2)(D, N)
        B_im = (lambda *s: torch.randn(*s, dtype=torch.bfloat16) * 0.2)(D, N)
        C_re = (lambda *s: torch.randn(*s, dtype=torch.bfloat16) * 0.2)(D, N)
        C_im = (lambda *s: torch.randn(*s, dtype=torch.bfloat16) * 0.2)(D, N)
        log_dt = (lambda *s: torch.randn(*s, dtype=torch.bfloat16) * 0.1)(D) * 0.5 - 4.0
        Dskip = (lambda *s: torch.randn(*s, dtype=torch.bfloat16) * 0.1)(D)
        return {
            "u": _w((lambda *s: torch.randn(*s, dtype=torch.bfloat16) * 0.05)(B, L, D)),
            "A_re": _w(A_re),
            "A_im": _w(A_im),
            "B_re": _w(B_re),
            "B_im": _w(B_im),
            "C_re": _w(C_re),
            "C_im": _w(C_im),
            "log_dt": _w(log_dt),
            "Dskip": _w(Dskip),
        }
    _A_in = _A_setup()

    def _B_setup():
        B, S, D, F = 1, 2048, 640, 1536
        return {
            "x": _w((lambda *s: torch.randn(*s, dtype=torch.bfloat16) * 0.05)(B, S, D)),
            "w1": _w((lambda *s: torch.randn(*s, dtype=torch.bfloat16) * 0.05)(D, F)),
            "b1": _w((lambda *s: torch.randn(*s, dtype=torch.bfloat16) * 0.05)(F)),
            "w2": _w((lambda *s: torch.randn(*s, dtype=torch.bfloat16) * 0.05)(F, D)),
            "b2": _w((lambda *s: torch.randn(*s, dtype=torch.bfloat16) * 0.05)(D)),
        }
    _B_in = _B_setup()

    return {
        "A_u": _A_in["u"],
        "A_A_re": _A_in["A_re"],
        "A_A_im": _A_in["A_im"],
        "A_B_re": _A_in["B_re"],
        "A_B_im": _A_in["B_im"],
        "A_C_re": _A_in["C_re"],
        "A_C_im": _A_in["C_im"],
        "A_log_dt": _A_in["log_dt"],
        "A_Dskip": _A_in["Dskip"],
        "B_x": _B_in["x"],
        "B_w1": _B_in["w1"],
        "B_b1": _B_in["b1"],
        "B_w2": _B_in["w2"],
        "B_b2": _B_in["b2"],
        "gate_w": _w((lambda *s: torch.randn(*s, dtype=torch.bfloat16) * 0.05)(640) * 16.0),
    }

def reference(A_u, A_A_re, A_A_im, A_B_re, A_B_im, A_C_re, A_C_im, A_log_dt, A_Dskip, B_x, B_w1, B_b1, B_w2, B_b2, gate_w):
    def _A_ref(u, A_re, A_im, B_re, B_im, C_re, C_im, log_dt, Dskip):
        Bsz, L, D = u.shape
        dt = torch.exp(log_dt)[:, None]
        A = A_re + 1j * A_im
        Bc = B_re + 1j * B_im
        Cc = C_re + 1j * C_im
        logdA = dt * A
        dB = dt * Bc
        l = (lambda x, dt: x.to(dt))(torch.arange(L), A_re.dtype)
        P = torch.exp(logdA[:, :, None] * l[None, None, :])
        K = torch.einsum("dn,dnl,dn->dl", Cc, P, dB).real
        L2 = 2 * L
        Kp = _pad(K, ((0, 0), (0, L)))
        up = (lambda x, *d: x.permute(*d))(u, 0, 2, 1)
        up = _pad(up, ((0, 0), (0, 0), (0, L)))
        Kf = (lambda x, axes=(-2,-1): torch.fft.rfft2(x.float(), dim=axes))(Kp[:, None, :], axes=(-2, -1))
        Uf = (lambda x, axes=(-2,-1): torch.fft.rfft2(x.float(), dim=axes))(up[:, :, None, :], axes=(-2, -1))
        Yf = Uf * Kf[None, :, :, :]
        y = (lambda x, s, axes=(-2,-1): torch.fft.irfft2(x, s=s, dim=axes).to(torch.bfloat16))(Yf, (1, L2), axes=(-2, -1))[:, :, 0, :L]
        y = (lambda x, *d: x.permute(*d))(y, 0, 2, 1) + u * Dskip[None, None, :]
        return y

    def _B_ref(x, w1, b1, w2, b2):
        h = torch.einsum("bsd,df->bsf", x, w1) + b1
        zero = torch.zeros_like(h)
        r = torch.where(h > zero, h, zero)
        h = r * r
        out = torch.einsum("bsf,fd->bsd", h, w2) + b2
        return out

    x = A_u
    g = _sigmoid((x * gate_w).sum(-1, keepdims=True))
    a = _A_ref(x, A_A_re, A_A_im, A_B_re, A_B_im, A_C_re, A_C_im, A_log_dt, A_Dskip)
    b = _B_ref(x, B_w1, B_b1, B_w2, B_b2)
    return g * a + (1 - g) * b
```

```python
import sys, struct

NAME = "gated_mix__ssm_conv_s4__dense_activation_squared_relu__prompt"

def f2u(x): return struct.unpack("<I", struct.pack("<f", x))[0]
def hx(x): return "0x%08x" % (x & 0xffffffff)

class Asm:
    def __init__(self):
        self.l = []
    def __call__(self, *lines):
        for s in lines:
            for t in s.split("\n"):
                t = t.strip()
                if t:
                    self.l.append(t if t.endswith(":") else "    " + t)
    def text(self): return "\n".join(self.l) + "\n"

def vr(a, n=1, p="v"): return f"{p}{a}" if n == 1 else f"{p}[{a}:{a+n-1}]"
def ar(a, n=1): return vr(a, n, "a")
def sr(a, n=1): return vr(a, n, "s")

def weave(main, fill, start=0, end=None):
    end = len(main) if end is None else end
    out = []; n = end - start; k = 0
    for i, m in enumerate(main):
        out.append(m)
        if start <= i < end:
            tgt = (len(fill)*(i-start+1) + n - 1)//n
            while k < tgt:
                out.append(fill[k]); k += 1
    assert k == len(fill)
    return out

H_OFF    = 0
YA_OFF   = 6 << 20
G_OFF    = 9 << 20
FL_OFF   = (9 << 20) + 65536
PROF_OFF = 10 << 20
DBG_OFF  = 12 << 20
WS_SIZE  = 268435456

P_U, P_ARE, P_AIM, P_BRE, P_BIM, P_CRE, P_CIM, P_LDT = 4, 6, 8, 10, 12, 14, 16, 18
P_DSK, P_BX, P_W1, P_B1, P_W2, P_B2, P_GATE, P_OUT = 20, 22, 24, 26, 28, 30, 32, 34
P_DBG, P_WS = 36, 38
S_W, S_XCD, S_SLOT, S_IDX = 40, 41, 42, 43
SRD_U, SRD_W, SRD_WS, SRD_OUT = 44, 48, 52, 56
S_PROF = 70

class Cfg:
    prof = False
    fused = False
    dump = None
    allreal = False
    rot = True

def srd(a, d, p, size):
    a(f"s_mov_b32 s{d}, s{p}", f"s_mov_b32 s{d+1}, s{p+1}", f"s_mov_b32 s{d+2}, {hx(size)}", f"s_mov_b32 s{d+3}, 0x20000")

class Prof:
    def __init__(self, cfg): self.cfg = cfg; self.names = {}
    def stamp(self, a, role, name, real=False):
        if not self.cfg.prof: return
        l = self.names.setdefault(role, [])
        i = len(l); assert i < 16; l.append(name)
        a(f"{'s_memrealtime' if (real or self.cfg.allreal) else 's_memtime'} s[{S_PROF+2*i}:{S_PROF+2*i+1}]")
    def flush(self, a, role, kidx):
        if not self.cfg.prof: return
        n = len(self.names[role])
        a("s_waitcnt lgkmcnt(0)",
          f"s_lshl_b32 s60, s2, 2", f"s_add_u32 s60, s60, s{S_W}", "s_lshl_b32 s60, s60, 6",
          f"s_add_u32 s60, s60, {PROF_OFF + kidx*65536}", "v_mov_b32 v2, s60")
        for i in range(n):
            a(f"v_mov_b32 v3, s{S_PROF+2*i}", f"global_store_dword v2, v3, s[{P_WS}:{P_WS+1}] offset:{4*i}")
        a("s_waitcnt vmcnt(0)")

def prologue(a, label):
    a(f"""
    s_cmp_ge_u32 s2, 256
    s_cbranch_scc1 {label}_exit
    s_load_dwordx16 s[4:19], s[0:1], 0
    s_load_dwordx16 s[20:35], s[0:1], 64
    s_load_dwordx4 s[36:39], s[0:1], 128
    v_lshrrev_b32 v2, 6, v0
    v_and_b32 v1, 63, v0
    s_and_b32 s{S_XCD}, s2, 7
    v_readfirstlane_b32 s{S_W}, v2
    s_lshr_b32 s{S_SLOT}, s2, 3
    """)

RSTRIDE = 19264
TROW    = 272
KB_OFF  = 4160
RAW_OFF = 8320
U_OFF   = 14464
W2_LDS  = 4*RSTRIDE

HI_VALS = [0,1,2,3,4,5,6,7, 256,258,260,262, 512,516,768,772, 1024,1280,1536,1792,2048]
def hi_row(v): return 32 + HI_VALS.index(v)
ROWMAP_REG = [
    [0,1,2,3,4,5,6,7, 512,516,1024,1536, 2048,2048,2048,2048],
    [256,256,258,260,260,260,262,262, 768,772,1280,1792, 1792,1792,1792,1792]]
def rowmap(m):
    i, half, j = m >> 3, (m >> 2) & 1, m & 3
    return hi_row(ROWMAP_REG[half][4*i+j]) - 32

def cmul(d, x, z, t, conj=False):
    neg = "neg_hi:[1,0,0]" if conj else "neg_lo:[1,0,0]"
    return [f"v_pk_mul_f32 {vr(t,2)}, {vr(x,2)}, {vr(z,2)} op_sel_hi:[1,0]",
            f"v_pk_fma_f32 {vr(d,2)}, {vr(x,2)}, {vr(z,2)}, {vr(t,2)} op_sel:[1,1,0] op_sel_hi:[0,1,1] {neg}"]

S_CH, S_RB, S_M1, S_M2 = 60, 61, 62, 64
S_T0, S_T1, S_T2, S_T3 = 66, 67, 68, 69

def ssm(a, cfg, pf):
    VP = 10; V_LDT, V_DSK, V_DT, V_DTL, V_DTP = 28, 29, 30, 31, 32
    V_RAW = 34
    Z1, Z8, Z256, X, T, SV = 50, 52, 54, 56, 58, 60
    CV = 68
    FA, FB, D = 72, 104, 136
    V_AA, V_BA = 152, 153
    V_F, V_G = 154, 158
    F0, G0, F1, G1, ACC = 72, 104, 160, 192, 224
    a(f"""
    s_mul_i32 s{S_IDX}, s{S_XCD}, 20
    s_add_u32 s{S_IDX}, s{S_IDX}, s{S_SLOT}
    s_sub_u32 s{S_IDX}, s{S_IDX}, 12
    s_lshl_b32 s{S_CH}, s{S_IDX}, 2
    s_add_u32 s{S_CH}, s{S_CH}, s{S_W}
    s_mul_i32 s{S_RB}, s{S_W}, {RSTRIDE}
    s_mul_i32 s{S_T0}, s{S_CH}, 384
    v_lshl_add_u32 v2, v1, 1, s{S_T0}
    s_lshl_b32 s{S_T0}, s{S_CH}, 1
    v_mov_b32 v3, s{S_T0}
    """)
    for i in range(VP, V_DSK+1): a(f"v_mov_b32 v{i}, 0")
    a("s_waitcnt lgkmcnt(0)")
    pf.stamp(a, "B", "karg")
    a(f"global_load_short_d16_hi v{V_LDT}, v3, s[{P_LDT}:{P_LDT+1}]")
    for g in range(3):
        for k, p in enumerate((P_ARE, P_AIM, P_BRE, P_BIM, P_CRE, P_CIM)):
            a(f"global_load_short_d16_hi v{VP+6*g+k}, v2, s[{p}:{p+1}] offset:{128*g}")
    a(f"global_load_short_d16_hi v{V_DSK}, v3, s[{P_DSK}:{P_DSK+1}]")
    srd(a, SRD_U, P_U, 2048*1280)
    srd(a, SRD_WS, P_WS, WS_SIZE)
    a(f"""
    s_lshl_b32 s{S_T0}, s{S_IDX}, 3
    v_mov_b32 v4, 1280
    v_mad_u32_u24 v4, v1, v4, s{S_T0}
    s_mul_i32 s{S_T3}, s{S_SLOT}, 3
    s_add_u32 s{S_T3}, s{S_T3}, s{S_W}
    """)
    for s in range(8):
        a(f"s_add_u32 s{S_T0}, s{S_T3}, {4*s}", f"s_and_b32 s{S_T0}, s{S_T0}, 31", f"s_mul_i32 s{S_T0}, s{S_T0}, {64*1280}",
          f"buffer_load_dwordx2 {vr(V_RAW+2*s,2)}, v4, s[{SRD_U}:{SRD_U+3}], s{S_T0} offen")
    NLATE = 9
    a(f"s_mov_b32 m0, s{S_RB}",
      "v_mov_b32 v5, 0x3f80",
      f"s_mov_b32 s{S_M1}, 0", f"s_mov_b32 s{S_M1+1}, -1",
      "ds_write_addtid_b32 v5",
      f"s_mov_b32 s{S_M2}, 0xaaaaaaaa", f"s_mov_b32 s{S_M2+1}, 0xaaaaaaaa",
      "v_mov_b32 v6, 0", "v_mov_b32 v7, 0",
      f"v_lshl_add_u32 v5, v1, 3, s{S_RB}",
      f"ds_write_b64 v5, v[6:7] offset:{U_OFF+4096}")
    a("v_and_b32 v5, 31, v1", "v_lshrrev_b32 v6, 5, v1", f"v_lshl_add_u32 v6, v6, 4, s{S_RB}",
      f"v_mov_b32 v8, {TROW}",
      f"v_mad_u32_u24 v{V_BA}, v5, v8, v6")
    a("v_mov_b32 v7, 32")
    for k in range(5):
        mask = sum(((rowmap(m) >> k) & 1) << m for m in range(32))
        a(f"s_mov_b32 s{S_T0}, {hx(mask)}", f"v_bfe_u32 v9, s{S_T0}, v5, 1", f"v_lshl_add_u32 v7, v9, {k}, v7")
    a(f"v_mad_u32_u24 v{V_AA}, v7, v8, v6")
    for i in range(32): a(f"v_mov_b32 v{ACC+i}, 0")
    a("v_and_b32 v5, 15, v1", "v_lshrrev_b32 v6, 4, v1", f"v_lshl_add_u32 v6, v6, 4, s{S_RB}",
      "v_add_u32 v7, 1, v5", "v_and_b32 v7, 30, v7", "v_lshl_add_u32 v7, v7, 1, v6",
      f"v_add_u32 v8, {KB_OFF}, v7",
      f"v_cndmask_b32 v{V_F}, v8, v7, s[{S_M2}:{S_M2+1}]")
    for i in range(1, 4): a(f"v_add_u32 v{V_F+i}, {1024*i}, v{V_F}")
    a("v_lshlrev_b32 v5, 5, v5", "v_sub_u32 v5, v6, v5", f"v_add_u32 v{V_G}, {U_OFF+480}, v5")
    LH = f2u(1.4426950408889634); LHf = struct.unpack("<f", struct.pack("<I", LH))[0]
    a(f"s_waitcnt vmcnt({18+NLATE})",
      f"s_mov_b32 s{S_T0}, {hx(LH)}", f"s_mov_b32 s{S_T1}, {hx(f2u(1.4426950408889634-LHf))}", f"s_mov_b32 s{S_T2}, {hx(f2u(0.6931471805599453))}",
      f"v_mul_f32 v5, s{S_T0}, v{V_LDT}",
      f"v_fma_f32 v6, v{V_LDT}, s{S_T0}, -v5",
      f"v_exp_f32 v7, v5",
      f"v_fma_f32 v6, v{V_LDT}, s{S_T1}, v6",
      f"v_mul_f32 v6, s{S_T2}, v6",
      f"v_fma_f32 v7, v7, v6, v7",
      f"v_cvt_pk_bf16_f32 v7, 0, v7",
      f"v_and_b32 v{V_DT}, 0xffff0000, v7",
      f"v_mul_f32 v{V_DTL}, s{S_T0}, v{V_DT}",
      f"v_mul_f32 v{V_DTP}, 0.15915494, v{V_DT}")
    pf.stamp(a, "B", "dt")
    def setup(g):
        p = VP + 6*g
        l = [f"s_waitcnt vmcnt({6*(2-g)+NLATE})",
             f"v_mul_f32 v{p}, v{p}, v{V_DTL}",
             f"v_mul_f32 v{p+1}, v{p+1}, v{V_DTP}",
             f"v_mul_f32 v{p+2}, v{p+2}, v{V_DT}",
             f"v_mul_f32 v{p+3}, v{p+3}, v{V_DT}",
             f"v_exp_f32 v2, v{p}",
             f"v_fract_f32 v3, v{p+1}",
             f"v_mul_f32 v4, 0x41000000, v{p}",
             f"v_mul_f32 v5, 0x41000000, v{p+1}",
             f"v_cos_f32 v{Z1}, v3",
             f"v_sin_f32 v{Z1+1}, v3",
             f"v_exp_f32 v4, v4",
             f"v_fract_f32 v5, v5",
             f"v_mul_f32 v6, 0x43800000, v{p}",
             f"v_mul_f32 v7, 0x43800000, v{p+1}",
             f"v_cos_f32 v{Z8}, v5",
             f"v_sin_f32 v{Z8+1}, v5",
             f"v_exp_f32 v6, v6",
             f"v_fract_f32 v7, v7",
             f"v_mul_f32 v{Z1}, v2, v{Z1}",
             f"v_mul_f32 v{Z1+1}, v2, v{Z1+1}",
             f"v_cos_f32 v{Z256}, v7",
             f"v_sin_f32 v{Z256+1}, v7",
             f"v_mul_f32 v{Z8}, v4, v{Z8}",
             f"v_mul_f32 v{Z8+1}, v4, v{Z8+1}",
             f"v_mul_f32 v{SV}, v{p+4}, v{p+2}",
             f"v_mul_f32 v{SV+1}, v{p+4}, v{p+3}",
             f"v_mul_f32 v{Z256}, v6, v{Z256}",
             f"v_mul_f32 v{Z256+1}, v6, v{Z256+1}",
             f"v_fma_f32 v{SV}, -v{p+5}, v{p+3}, v{SV}",
             f"v_fma_f32 v{SV+1}, -v{p+5}, v{p+2}, -v{SV+1}"]
        return l
    def chains():
        l = []; n = [0]
        def put(x, row):
            c = CV + (n[0] & 1); n[0] += 1
            l.extend([f"v_cvt_pk_bf16_f32 v{c}, v{x}, v{x+1}", f"ds_write_addtid_b32 v{c} offset:{row*TROW}"])
        put(SV, hi_row(0))
        prev = SV
        for j in range(1, 8):
            d = SV + j if j % 2 == 0 else X
            l.extend(cmul(d, prev, Z1, T, True)); put(d, hi_row(j)); prev = d
        for j in (0, 2, 4, 6):
            l.extend(cmul(SV+j, SV+j, Z256, T, True)); put(SV+j, hi_row(256+j))
        for b in (512, 768):
            for j in (0, 4):
                l.extend(cmul(SV+j, SV+j, Z256, T, True)); put(SV+j, hi_row(b+j))
        for b in (1024, 1280, 1536, 1792, 2048):
            l.extend(cmul(SV, SV, Z256, T, True)); put(SV, hi_row(b))
        nhi = len(l)
        put(Z8, 1)
        prev = Z8
        for b in range(2, 32):
            l.extend(cmul(X, prev, Z8, T)); put(X, b); prev = X
        rd = [f"ds_read_b128 {vr(FA+4*k,4)}, v{V_AA} offset:{32*k}" for k in range(8)]
        return l[:nhi] + weave(l[nhi:], rd, 8, 72)
    def mm(g):
        l = []
        for k in range(8):
            c = "0" if (g == 0 and k == 0) else vr(D, 16)
            l.append([f"s_waitcnt lgkmcnt({7-k})", f"v_mfma_f32_32x32x16_bf16 {vr(D,16)}, {vr(FA+4*k,4)}, {vr(FB+4*k,4)}, {c}"])
        return l
    a(*setup(0))
    pf.stamp(a, "B", "setup0")
    for g in range(3):
        a(*chains())
        a(*[f"ds_read_b128 {vr(FB+4*k,4)}, v{V_BA} offset:{32*k}" for k in range(8)])
        m = mm(g)
        if g < 2:
            s = setup(g+1)
            a(*s[:10])
            s = s[10:]
            for k in range(8):
                a(*m[k]); a(*s[3*k:3*k+3])
            a(*s[24:])
        else:
            a(f"v_lshl_add_u32 v2, v1, 3, s{S_RB}",
              "v_and_b32 v3, 3, v1", "v_bfe_u32 v4, v1, 2, 2", "v_lshrrev_b32 v5, 4, v1",
              "v_lshl_add_u32 v5, v5, 2, v3", "v_lshl_add_u32 v5, v5, 2, 3", "v_sub_u32 v5, v5, v4",
              f"v_lshl_add_u32 v5, v5, 3, s{S_RB}",
              f"v_mov_b32 v6, {RSTRIDE}", "v_lshrrev_b32 v7, 2, v1", "v_lshlrev_b32 v7, 3, v7",
              f"v_sub_u32 v7, {U_OFF+4088}, v7", "v_mad_u32_u24 v6, v3, v6, v7",
              "v_cmp_eq_u32 vcc, 0, v1")
            for k in range(8): a(*m[k])
        pf.stamp(a, "B", f"kgen{g}")
    a("s_waitcnt vmcnt(0)", f"v_cndmask_b32 v{V_DSK}, 0, v{V_DSK}, vcc")
    pf.stamp(a, "B", "uwait")
    for s in range(8): a(f"ds_write_b64 v2, {vr(V_RAW+2*s,2)} offset:{RAW_OFF+512*s}")
    for s in range(8): a(f"ds_read_b64_tr_b16 {vr(V_RAW+2*s,2)}, v5 offset:{RAW_OFF+512*s}")
    N = 10; TT = 14; Q = 72
    dpp = "row_mask:0xf bank_mask:0xf"
    a(f"v_add_f32 v{D}, v{D}, v{V_DSK}")
    for i, nx in enumerate((8, 10, 11, 12)): a(f"v_mov_b32_dpp v{N+i}, v{D+nx} wave_rol:1 {dpp}")
    for i, cu in enumerate((0, 8, 10, 11)): a(f"v_mov_b32_dpp v{N+i}, v{D+cu} wave_shl:1 {dpp}")
    a(f"v_lshl_add_u32 v8, v1, 4, s{S_RB}",
      f"v_cndmask_b32 v{D+7}, v{D+7}, v{N}, s[{S_M1}:{S_M1+1}]",
      f"v_cndmask_b32 v{TT}, v{D+10}, v{N+2}, s[{S_M2}:{S_M2+1}]",
      f"v_cndmask_b32 v{TT+1}, v{D+11}, v{N+3}, s[{S_M2}:{S_M2+1}]")
    seqs = [[D+i for i in range(8)] + [N],
            [D+8]*3 + [D+9]*3 + [N+1]*3,
            [D+10]*4 + [TT] + [N+2]*4,
            [D+11]*4 + [TT+1] + [N+3]*4]
    for p, sq in enumerate(seqs):
        for c in range(2):
            q = Q + 8*p + 4*c
            for i in range(4): a(f"v_cvt_pk_bf16_f32 v{q+i}, v{sq[2*i+c]}, v{sq[2*i+1+c]}")
            a(f"ds_write_b128 v8, {vr(q,4)} offset:{32 + 1024*p + KB_OFF*c}")
        if p == 0:
            a(f"v_cvt_pk_bf16_f32 v16, 0, v{D}", "v_sub_u32 v17, 7, v1", "v_max_i32 v17, 0, v17",
              "v_cndmask_b32 v16, 0, v16, vcc", f"v_lshl_add_u32 v17, v17, 2, s{S_RB}", "v_mov_b32 v18, 0",
              f"ds_write_b32 v17, v16 offset:{KB_OFF}", "ds_write_b32 v17, v18")
            a("s_waitcnt lgkmcnt(4)")
            for s in range(8):
                a(f"s_add_u32 s{S_T0}, s{S_T3}, {4*s}", f"s_and_b32 s{S_T0}, s{S_T0}, 31", f"s_lshl_b32 s{S_T0}, s{S_T0}, 7",
                  f"v_subrev_u32 v7, s{S_T0}, v6", f"ds_write_b64 v7, {vr(V_RAW+2*s,2)}")
    a("s_waitcnt lgkmcnt(0)", "s_barrier")
    pf.stamp(a, "B", "expand")
    if cfg.dump == "lds1":
        dump_lds(a, 4*RSTRIDE)
    def loads(F, G):
        l = []
        for m in range(8):
            o = 128*(m & 1)
            l.append(f"ds_read_b128 {vr(G+4*(7-m),4)}, v{V_G} offset:{512*m}")
            l.append(f"ds_read2_b32 {vr(F+4*m,2)}, v{V_F+(m>>1)} offset0:{o} offset1:{o+1}")
            l.append(f"ds_read2_b32 {vr(F+4*m+2,2)}, v{V_F+(m>>1)} offset0:{o+2} offset1:{o+3}")
        l += [f"v_add_u32 v{V_F+i}, 64, v{V_F+i}" for i in range(5)]
        return l
    def mfmas(F, G):
        return [f"v_mfma_f32_16x16x32_bf16 {vr(ACC+4*(m+n),4)}, {vr(F+4*m,4)}, {vr(G+4*n,4)}, {vr(ACC+4*(m+n),4)}"
                for m in range(8) for n in range(7-m, -1, -1)]
    a(*loads(F0, G0))
    a(f"s_mov_b32 s{S_T0}, 4", "L_conv:", "s_waitcnt lgkmcnt(0)")
    a(*weave(mfmas(F0, G0), loads(F1, G1), 0, 29))
    a("s_waitcnt lgkmcnt(0)")
    a(*weave(mfmas(F1, G1), loads(F0, G0) + [f"s_sub_u32 s{S_T0}, s{S_T0}, 1", f"s_cmp_lg_u32 s{S_T0}, 0"], 0, 31))
    a("s_cbranch_scc1 L_conv")
    pf.stamp(a, "B", "conv")
    a("v_and_b32 v2, 15, v1", "v_lshrrev_b32 v3, 4, v1", "v_lshlrev_b32 v4, 2, v3", "v_lshl_add_u32 v4, v2, 4, v4",
      f"v_add_u32 v4, s{S_RB}, v4",
      "v_bfe_u32 v5, v1, 2, 2", f"v_mul_u32_u24 v5, {RSTRIDE}, v5", "v_and_b32 v6, 3, v1", "v_lshl_add_u32 v5, v6, 3, v5",
      "v_lshl_add_u32 v5, v3, 5, v5", f"s_lshl_b32 s{S_T0}, s{S_W}, 9", f"v_add_u32 v5, s{S_T0}, v5",
      "v_lshlrev_b32 v6, 4, v1",
      f"s_lshl_b32 s{S_T0}, s{S_IDX}, 14", f"s_lshl_b32 s{S_T1}, s{S_W}, 12", f"s_add_u32 s{S_T0}, s{S_T0}, s{S_T1}",
      f"s_add_u32 s{S_T0}, s{S_T0}, {YA_OFF}", "s_waitcnt lgkmcnt(0)")
    for cb in range(8):
        r = ACC + 4*cb
        a(f"v_cvt_pk_bf16_f32 v{8+2*cb}, v{r}, v{r+2}", f"v_cvt_pk_bf16_f32 v{9+2*cb}, v{r+1}, v{r+3}",
          f"ds_write2st64_b32 v4, v{8+2*cb}, v{9+2*cb} offset0:{cb} offset1:{8+cb}")
    a("s_waitcnt lgkmcnt(0)", "s_barrier")
    for x in range(4):
        a(f"ds_read_b64_tr_b16 {vr(24+4*x,2)}, v5 offset:{128*x}", f"ds_read_b64_tr_b16 {vr(26+4*x,2)}, v5 offset:{2048+128*x}")
    for x in range(4):
        a(f"s_waitcnt lgkmcnt({6-2*x})", f"buffer_store_dwordx4 {vr(24+4*x,4)}, v6, s[{SRD_WS}:{SRD_WS+3}], s{S_T0} offen offset:{1024*x} sc1")
    pf.stamp(a, "B", "yout")


class Stream:
    def __init__(self, a):
        self.a = a; self.n = {"vm": 0, "lg": 0}; self.done = {"vm": 0, "lg": 0}; self.tok = {}
    def __call__(self, *l): self.a(*l)
    def op(self, kind, ins, tag=None):
        self.a(ins); self.n[kind] += 1
        if tag is not None: self.tok[tag] = (kind, self.n[kind])
    def vm(self, ins, tag=None): self.op("vm", ins, tag)
    def lg(self, ins, tag=None): self.op("lg", ins, tag)
    def need(self, *tags):
        w = {}
        for t in tags:
            k, i = self.tok[t]
            if i > self.done[k]: w[k] = max(w.get(k, 0), i)
        parts = []
        for k, i in w.items():
            left = self.n[k] - i
            mx = 63 if k == "vm" else 15
            left = min(left, mx)
            self.done[k] = self.n[k] - left
            parts.append(f"{'vmcnt' if k == 'vm' else 'lgkmcnt'}({left})")
        if parts: self.a("s_waitcnt " + " ".join(parts))
    def drain(self, kind):
        if self.done[kind] < self.n[kind]:
            self.a(f"s_waitcnt {'vmcnt' if kind == 'vm' else 'lgkmcnt'}(0)"); self.done[kind] = self.n[kind]
    def run(self, items):
        for it in items:
            if callable(it): it(self)
            else: self.a(it)

def VM(ins, tag=None): return lambda s: s.vm(ins, tag)
def LG(ins, tag=None): return lambda s: s.lg(ins, tag)
def NEED(*t): return lambda s: s.need(*t)

A_MISC = 131072
def gemm1(a, cfg, pf):
    S_RBK, S_C6, S_XO, S_WO, S_KR, S_QR, S_HO, S_LW = 60, 61, 62, 63, 64, 65, 43, 3
    VX, VW, VRW, VRX, V_ST = 4, 8, 10, 14, 22
    WF, ACC, PK = 32, 128, 64
    st = Stream(a)
    a(f"""
    s_cmp_ge_u32 s{S_SLOT}, 6
    s_cselect_b32 s{S_T0}, 1, 0
    s_lshl_b32 s{S_RBK}, s{S_XCD}, 1
    s_add_u32 s{S_RBK}, s{S_RBK}, s{S_T0}
    s_mul_i32 s{S_T0}, s{S_T0}, 6
    s_sub_u32 s{S_C6}, s{S_SLOT}, s{S_T0}
    """)
    if cfg.rot:
        a(f"s_mul_i32 s{S_KR}, s{S_C6}, 5", f"s_mul_i32 s{S_KR}, s{S_KR}, 43", f"s_lshr_b32 s{S_KR}, s{S_KR}, 7")
        qrot(a, S_QR, S_RBK)
    else:
        a(f"s_mov_b32 s{S_KR}, 0", f"s_mov_b32 s{S_QR}, 0")
    a(f"""
    s_lshl_b32 s{S_T0}, s{S_RBK}, 2
    s_add_u32 s{S_T0}, s{S_T0}, s{S_W}
    s_mul_i32 s{S_XO}, s{S_T0}, {32*1280}
    s_mul_i32 s{S_HO}, s{S_T0}, {96*1024}
    s_mul_i32 s{S_WO}, s{S_W}, {16*3072}
    s_lshl_b32 s{S_T0}, s{S_C6}, 9
    s_add_u32 s{S_WO}, s{S_WO}, s{S_T0}
    s_lshl_b32 s{S_LW}, s{S_W}, 11
    v_lshrrev_b32 v2, 3, v1
    v_and_b32 v3, 7, v1
    v_lshrrev_b32 v24, 1, v2
    v_xor_b32 v25, v3, v24
    v_lshlrev_b32 v25, 4, v25
    v_mov_b32 v26, 1280
    v_mad_u32_u24 v{VX}, v2, v26, v25
    v_xor_b32 v{VX+1}, 64, v{VX}
    v_add_u32 v{VX+1}, {8*1280-1024}, v{VX+1}
    v_add_u32 v{VX+2}, {16*1280-2048}, v{VX}
    v_add_u32 v{VX+3}, {16*1280-2048}, v{VX+1}
    v_and_b32 v24, 1, v24
    v_lshlrev_b32 v24, 2, v24
    v_xor_b32 v25, v3, v24
    v_lshlrev_b32 v25, 4, v25
    v_mov_b32 v26, 3072
    v_mad_u32_u24 v{VW}, v2, v26, v25
    v_add_u32 v{VW+1}, {8*3072-1024}, v{VW}
    s_lshl_b32 s{S_T1}, s{S_QR}, 4
    v_add_u32 v27, s{S_T1}, v1
    v_and_b32 v27, 63, v27
    v_lshl_add_u32 v27, v27, 3, s{S_T0}
    s_waitcnt lgkmcnt(0)
    """)
    pf.stamp(a, "A", "karg")
    st.vm(f"global_load_dwordx2 v[28:29], v27, s[{P_B1}:{P_B1+1}]", "b1")
    srd(a, SRD_U, P_U, 2048*1280)
    srd(a, SRD_W, P_W1, 640*3072)
    srd(a, SRD_WS, P_WS, WS_SIZE)
    def chunk(c, dst):
        return [f"s_add_u32 s{dst}, s{S_KR}, {c}", f"s_cmp_ge_u32 s{dst}, 10\ns_cselect_b32 s{S_T3}, 10, 0", f"s_sub_u32 s{dst}, s{dst}, s{S_T3}"]
    def units(P):
        if P < 10: return [(P, 0), (P, 1)]
        s, j = divmod(P-10, 5)
        return [(2*j, 2+s), (2*j+1, 2+s)]
    def dma(P):
        reg = (P & 3)*32768; l = []
        last = None
        for u, (c, sg) in enumerate(units(P)):
            if c != last:
                l += chunk(c, S_T0); last = c
                if P < 10:
                    l += [f"s_lshl_b32 s{S_T1}, s{S_T0}, 7", f"s_add_u32 s{S_T1}, s{S_T1}, s{S_XO}",
                          f"s_lshl_b32 s{S_T2}, s{S_LW}, 1", f"s_add_u32 m0, s{S_T2}, {reg}", f"s_mul_i32 s{S_T0}, s{S_T0}, {64*3072}"]
                    l += [VM(f"buffer_load_dwordx4 v{VX+i}, s[{SRD_U}:{SRD_U+3}], s{S_T1} offen offset:{1024*i} lds") for i in range(4)]
                else:
                    l += [f"s_mul_i32 s{S_T0}, s{S_T0}, {64*3072}"]
                l += [f"s_add_u32 s{S_T0}, s{S_T0}, s{S_WO}"]
            l += [f"s_add_u32 s{S_T1}, s{S_QR}, {sg}", f"s_and_b32 s{S_T1}, s{S_T1}, 3", f"s_lshl_b32 s{S_T1}, s{S_T1}, 7",
                  f"s_add_u32 m0, s{S_LW}, {reg+16384+8192*u}", f"s_add_u32 s{S_T1}, s{S_T1}, s{S_T0}"]
            l += [VM(f"buffer_load_dwordx4 v{VW+i}, s[{SRD_W}:{SRD_W+3}], s{S_T1} offen offset:{1024*i} lds", ("dma", P)) for i in range(2)]
        return l
    st.run(dma(0))
    a(f"""
    v_bfe_u32 v2, v1, 2, 2
    v_lshrrev_b32 v3, 5, v1
    v_lshl_add_u32 v24, v3, 3, v2
    v_lshlrev_b32 v24, 7, v24
    v_lshrrev_b32 v2, 1, v2
    v_lshl_add_u32 v24, v2, 6, v24
    v_bfe_u32 v2, v1, 4, 1
    v_lshl_add_u32 v24, v2, 5, v24
    v_and_b32 v2, 3, v1
    v_lshl_add_u32 v{VRW}, v2, 3, v24
    v_xor_b32 v{VRW+1}, 64, v{VRW}
    v_add_u32 v{VRW+2}, 0x10000, v{VRW}
    v_add_u32 v{VRW+3}, 0x10000, v{VRW+1}
    v_and_b32 v2, 31, v1
    v_bfe_u32 v24, v1, 1, 3
    v_xor_b32 v24, v24, v3
    v_lshlrev_b32 v24, 4, v24
    v_lshl_add_u32 v24, v2, 7, v24
    s_lshl_b32 s{S_T2}, s{S_LW}, 1
    v_add_u32 v{VRX}, s{S_T2}, v24
    """)
    for q in range(1, 4): a(f"v_xor_b32 v{VRX+q}, {32*q}, v{VRX}")
    for q in range(4): a(f"v_add_u32 v{VRX+4+q}, 0x10000, v{VRX+q}")
    a(f"v_lshlrev_b32 v{V_ST}, 4, v1")
    st.run(dma(1))
    a(f"s_lshr_b32 s{S_T2}, s{S_LW}, 1", f"s_add_u32 s{S_T2}, s{S_T2}, {A_MISC}",
      f"v_add_u32 v23, s{S_T2}, v{V_ST}", f"v_lshl_add_u32 v30, v3, 4, s{S_T2}")
    st.need("b1")
    a("v_lshlrev_b32 v24, 16, v28", "v_and_b32 v25, 0xffff0000, v28", "v_lshlrev_b32 v26, 16, v29", "v_and_b32 v27, 0xffff0000, v29")
    st.lg("ds_write_b128 v23, v[24:27]")
    for i in range(32): st.lg(f"ds_read_b128 {vr(ACC+4*i,4)}, v30 offset:{32*i}", "bias")
    st.run(dma(2))
    pf.stamp(a, "A", "issued")
    pairs = []
    for P in range(20):
        if P < 10: pairs += [(P, u, q, 4*P+q, 32*u) for q in range(4) for u in range(2)]
        else:
            s, j = divmod(P-10, 5)
            pairs += [(P, u, q, 8*j+4*u+q, 64+32*s) for u in range(2) for q in range(4)]
    def reads(i):
        P, u, q, kk, acc = pairs[i]
        reg = (P & 3)*32768; hi = reg >> 16; reg &= 0xffff
        l = []
        if i % 8 == 0:
            l += [NEED(("dma", P)), "s_barrier"]
        if P < 10 and u == 0:
            l.append(LG(f"ds_read_b128 {ar(4*kk,4)}, v{VRX+4*hi+q} offset:{reg}"))
        b = WF + 8*(i & 3)
        for T in range(2):
            for s in range(2):
                l.append(LG(f"ds_read_b64_tr_b16 {vr(b+4*T+2*s,2)}, v{VRW+2*hi+T} offset:{reg+16384+8192*u+(16*q+4*s)*128}", ("w", i, T)))
        return l
    def epi(acc, ntile, kap0):
        l = [f"s_lshl_b32 s{S_T2}, s{S_C6}, {10 + (3 if ntile == 4 else 2)}", f"s_add_u32 s{S_T2}, s{S_T2}, s{S_HO}",
             f"s_add_u32 s{S_CH2}, s{S_T2}, {H_OFF + kap0*1024}"]
        for k in range(2*ntile):
            r = ACC + acc + 8*k; p = PK + 4*(k & 3)
            if k == 4: l.append(f"s_add_u32 s{S_CH2}, s{S_CH2}, 4096")
            l += [f"v_mul_f32_e64 v{r+e}, v{r+e}, |v{r+e}|" for e in range(8)]
            l += [f"v_cvt_pk_bf16_f32 v{p+e}, v{r+2*e}, v{r+2*e+1}" for e in range(4)]
            l += [f"v_pk_max_i16 v{p+e}, v{p+e}, 0" for e in range(4)]
            l += [VM(f"buffer_store_dwordx4 {vr(p,4)}, v{V_ST}, s[{SRD_WS}:{SRD_WS+3}], s{S_CH2} offen offset:{1024*(k&3)} sc1", ("h", acc))]
        return l
    S_CH2 = 57
    LEAD = 2
    for i in range(LEAD): st.run(reads(i))
    st.need("bias")
    side = []
    for i, (P, u, q, kk, acc) in enumerate(pairs):
        if i == 81: side_e = epi(0, 4, 0)
        elif i == 121: side_e = epi(64, 2, 48)
        elif i == 0: side_e = []
        if (i + LEAD) % 8 == 1:
            Pn = (i + LEAD)//8 + 2
            if 3 <= Pn < 20: side += dma(Pn)
        rd = reads(i+LEAD) if i + LEAD < len(pairs) else []
        b = WF + 8*(i & 3)
        left = 7 - ((i + LEAD - 1) % 8)
        nside = -(-len(side)//max(left, 1))
        sd, side = side[:nside], side[nside:]
        ne = 4 if i < 121 else 3
        se, side_e = side_e[:ne], side_e[ne:]
        fill = rd + sd + se
        h = (len(fill)+1)//2
        for T in range(2):
            st.need(("w", i, T))
            a(f"v_mfma_f32_32x32x16_bf16 {vr(ACC+acc+16*T,16)}, {vr(b+4*T,4)}, {ar(4*kk,4)}, {vr(ACC+acc+16*T,16)}")
            st.run(fill[:h] if T == 0 else fill[h:])
        if i == 0: pf.stamp(a, "A", "first")
        if i in (79, 119, 159): pf.stamp(a, "A", f"st{i}")
    assert not side and not side_e
    a("s_nop 7")
    st.run(epi(96, 2, 72))
    pf.stamp(a, "A", "epi")
    a(f"s_cmp_lg_u32 s{S_C6}, 0", "s_cbranch_scc1 L_nogate")
    srd(a, SRD_W, P_GATE, 1280)
    a(f"s_add_u32 m0, s{S_LW}, {A_MISC+4096}", f"s_add_u32 s{S_T2}, s{S_LW}, {A_MISC+4096}",
      f"buffer_load_dwordx4 v{V_ST}, s[{SRD_W}:{SRD_W+3}], 0 offen lds",
      f"buffer_load_dwordx4 v{V_ST}, s[{SRD_W}:{SRD_W+3}], 0 offen offset:1024 lds",
      f"v_lshl_add_u32 v30, v3, 4, s{S_T2}",
      "s_waitcnt vmcnt(0)")
    g = Stream(a)
    for k in range(40 + 4):
        if k < 40: g.lg(f"ds_read_b128 {vr(WF+4*(k&7),4)}, v30 offset:{32*k}", k)
        if k >= 4:
            g.need(k-4)
            a(f"v_mfma_f32_32x32x16_bf16 {vr(ACC,16)}, {vr(WF+4*((k-4)&7),4)}, {ar(4*(k-4),4)}, {vr(ACC,16) if k > 4 else 0}")
    a(f"s_lshl_b32 s{S_T0}, s{S_RBK}, 9", f"s_lshl_b32 s{S_T1}, s{S_W}, 7", f"s_add_u32 s{S_T0}, s{S_T0}, s{S_T1}",
      f"s_add_u32 s{S_T0}, s{S_T0}, {G_OFF}", "v_and_b32 v2, 31, v1", "v_lshlrev_b32 v2, 2, v2", "s_nop 7",
      f"v_mul_f32 v4, {hx(f2u(-1.4426950408889634))}, v{ACC}", "v_exp_f32 v4, v4", "s_nop 0", "v_add_f32 v4, 1.0, v4", "v_rcp_f32 v4, v4", "s_nop 0",
      f"buffer_store_dword v4, v2, s[{SRD_WS}:{SRD_WS+3}], s{S_T0} offen sc1",
      "L_nogate:")

def qrot(a, dst, rbk):
    a(f"s_lshr_b32 s{dst}, s{rbk}, 1", f"s_lshl_b32 s{S_T3}, s{rbk}, 1", f"s_add_u32 s{dst}, s{dst}, s{S_T3}", f"s_and_b32 s{dst}, s{dst}, 3")

def w2slot(u): return W2_LDS + 8192*u if u < 10 else 8192*(u-10) if u < 19 else W2_LDS + 8192*(u-19)
def gemm2(a, cfg, pf):
    S_RBK, S_D10, S_QR, S_WO, S_LW, S_HO, S_H2 = 60, 61, 62, 63, 64, 65, 3
    VW, VRW, V_L16 = 4, 6, 12
    WF, ACC, YA, GA, V_G, V_OG = 16, 48, 80, 96, 13, 14
    st = Stream(a)
    def hreg(k): return ar(4*k, 4) if k < 64 else vr(128+4*(k-64), 4)
    a(f"""
    s_cmp_ge_u32 s{S_SLOT}, 22
    s_cselect_b32 s{S_T0}, 1, 0
    s_lshl_b32 s{S_RBK}, s{S_XCD}, 1
    s_add_u32 s{S_RBK}, s{S_RBK}, s{S_T0}
    s_mul_i32 s{S_T0}, s{S_T0}, 10
    s_sub_u32 s{S_D10}, s{S_SLOT}, s{S_T0}
    s_sub_u32 s{S_D10}, s{S_D10}, 12
    """)
    if cfg.rot: qrot(a, S_QR, S_RBK)
    else: a(f"s_mov_b32 s{S_QR}, 0")
    a(f"""
    s_mul_i32 s{S_WO}, s{S_W}, {16*1280}
    s_lshl_b32 s{S_T0}, s{S_D10}, 7
    s_add_u32 s{S_WO}, s{S_WO}, s{S_T0}
    s_lshl_b32 s{S_LW}, s{S_W}, 11
    s_lshl_b32 s{S_T1}, s{S_RBK}, 2
    s_add_u32 s{S_T1}, s{S_T1}, s{S_W}
    s_mul_i32 s{S_HO}, s{S_T1}, {96*1024}
    v_lshrrev_b32 v2, 3, v1
    v_and_b32 v3, 2, v2
    v_and_b32 v5, 7, v1
    v_xor_b32 v3, v3, v5
    v_lshlrev_b32 v3, 4, v3
    v_mov_b32 v5, 1280
    v_mad_u32_u24 v{VW}, v2, v5, v3
    v_add_u32 v{VW+1}, {8*1280-1024}, v{VW}
    v_lshlrev_b32 v{V_L16}, 4, v1
    v_lshrrev_b32 v3, 5, v1
    v_lshl_add_u32 v15, v3, 6, s{S_T0}
    s_waitcnt lgkmcnt(0)
    """)
    srd(a, SRD_W, P_W2, 1536*1280)
    srd(a, SRD_WS, P_WS, WS_SIZE)
    srd(a, SRD_OUT, P_OUT, 2048*1280)
    for i in range(4): st.vm(f"global_load_dwordx4 {vr(YA+4*i,4)}, v15, s[{P_B2}:{P_B2+1}] offset:{16*i}", "b2")
    def dma(u):
        c6, sg = (u >> 1, u & 1) if u < 12 else ((u-12) % 6, 2 + (u-12)//6)
        return [f"s_add_u32 s{S_T0}, s{S_QR}, {sg}", f"s_and_b32 s{S_T0}, s{S_T0}, 3", f"s_mul_i32 s{S_T0}, s{S_T0}, {64*1280}",
                f"s_add_u32 s{S_T0}, s{S_T0}, s{S_WO}", f"s_add_u32 m0, s{S_LW}, {w2slot(u)}", f"s_add_u32 s{S_T0}, s{S_T0}, {c6*256*1280}"] + \
               [VM(f"buffer_load_dwordx4 v{VW+i}, s[{SRD_W}:{SRD_W+3}], s{S_T0} offen offset:{1024*i} lds", ("dma", u)) for i in range(2)]
    def hload(k):
        l = [f"s_add_u32 s{S_H2}, s{S_HO}, {H_OFF + 1024*k}"] if k % 4 == 0 else []
        return l + [VM(f"buffer_load_dwordx4 {hreg(k)}, v{V_L16}, s[{SRD_WS}:{SRD_WS+3}], s{S_H2} offen offset:{1024*(k&3)} sc1", ("h", k))]
    a(f"""
    v_bfe_u32 v2, v1, 2, 2
    v_lshl_add_u32 v15, v3, 2, v2
    v_lshlrev_b32 v15, 7, v15
    v_lshrrev_b32 v2, 1, v2
    v_lshl_add_u32 v15, v2, 5, v15
    v_and_b32 v2, 1, v1
    v_lshl_add_u32 v15, v2, 6, v15
    v_bfe_u32 v2, v1, 4, 1
    v_lshl_add_u32 v15, v2, 4, v15
    v_bfe_u32 v2, v1, 1, 1
    v_lshl_add_u32 v{VRW}, v2, 3, v15
    v_xor_b32 v{VRW+1}, 32, v{VRW}
    v_add_u32 v{VRW+2}, 0x10000, v{VRW}
    v_add_u32 v{VRW+3}, 0x10000, v{VRW+1}
    v_add_u32 v{VRW+4}, 0x20000, v{VRW}
    v_add_u32 v{VRW+5}, 0x20000, v{VRW+1}
    """)
    HL = 12
    UL = 3
    for u in range(UL):
        st.run(dma(u))
        for k in range(4*u, 4*u+4): st.run(hload(k))
    st.need("b2")
    for i in range(16):
        a(f"v_lshlrev_b32 v{ACC+2*i}, 16, v{YA+i}", f"v_and_b32 v{ACC+2*i+1}, 0xffff0000, v{YA+i}")
    def reads(k):
        u, q = k >> 2, k & 3
        o = w2slot(u) + q*2048; l = []
        if q == 0: l += [NEED(("dma", u)), "s_barrier"]
        b = WF + 8*(k & 3)
        for T in range(2):
            for s in range(2):
                oo = o + 1024*s
                l.append(LG(f"ds_read_b64_tr_b16 {vr(b+4*T+2*s,2)}, v{VRW+2*(oo>>16)+T} offset:{oo & 0xffff}", ("w", k, T)))
        return l
    LEAD = 2
    for k in range(LEAD): st.run(reads(k))
    pf.stamp(a, "B2", "first")
    ein = [f"s_lshl_b32 s{S_T1}, s{S_RBK}, 7", f"s_lshl_b32 s{S_T2}, s{S_W}, 5", f"s_add_u32 s{S_T1}, s{S_T1}, s{S_T2}",
           "v_and_b32 v2, 31, v1", f"v_add_u32 v2, s{S_T1}, v2",
           "v_lshlrev_b32 v15, 2, v2", f"s_mov_b32 s{S_T1}, {G_OFF}",
           VM(f"buffer_load_dword v{V_G}, v15, s[{SRD_WS}:{SRD_WS+3}], s{S_T1} offen sc1", "g"),
           "v_lshlrev_b32 v15, 17, v3", "v_lshl_add_u32 v15, v2, 3, v15",
           f"s_lshl_b32 s{S_T1}, s{S_D10}, 18", f"s_add_u32 s{S_T1}, s{S_T1}, {YA_OFF}"]
    for i in range(8):
        ein += [VM(f"buffer_load_dwordx2 {vr(YA+2*i,2)}, v15, s[{SRD_WS}:{SRD_WS+3}], s{S_T1} offen sc1", "ya"),
                f"s_add_u32 s{S_T1}, s{S_T1}, 16384"]
    pre = [NEED("ya"), f"v_sub_f32 v{V_OG}, 1.0, v{V_G}"]
    for i in range(16):
        pre += [f"v_lshlrev_b32 v{GA+2*i}, 16, v{YA+i}", f"v_and_b32 v{GA+2*i+1}, 0xffff0000, v{YA+i}",
                f"v_mul_f32 v{GA+2*i}, v{GA+2*i}, v{V_G}", f"v_mul_f32 v{GA+2*i+1}, v{GA+2*i+1}, v{V_G}"]
    pre += ["v_mov_b32 v15, 1280", "v_lshlrev_b32 v3, 6, v3", "v_mad_u32_u24 v15, v2, v15, v3", f"s_lshl_b32 s{S_T1}, s{S_D10}, 7"]
    side = []
    for k in range(96):
        fill = reads(k+LEAD) if k + LEAD < 96 else []
        if (k + LEAD) % 4 == 1 and (k+LEAD)//4 + UL < 24: fill += dma((k+LEAD)//4 + UL) if k + LEAD > 1 else []
        if k == 0: fill += dma(UL)
        if k + HL < 96: fill += hload(k + HL)
        if k == 56: side = ein
        if k == 76: side = pre
        n = 3 if k < 76 else 4
        fill += side[:n]; side = side[n:]
        b = WF + 8*(k & 3)
        h = (len(fill)+1)//2
        for T in range(2):
            st.need(("w", k, T), ("h", k))
            a(f"v_mfma_f32_32x32x16_bf16 {vr(ACC+16*T,16)}, {vr(b+4*T,4)}, {hreg(k)}, {vr(ACC+16*T,16)}")
            st.run(fill[:h] if T == 0 else fill[h:])
    assert not side
    pf.stamp(a, "B2", "g2")
    a("s_nop 11")
    for i in range(4):
        if i == 2: a("s_nop 1")
        for e in range(8): a(f"v_fma_f32 v{GA+8*i+e}, v{ACC+8*i+e}, v{V_OG}, v{GA+8*i+e}")
        for e in range(4): a(f"v_cvt_pk_bf16_f32 v{WF+4*i+e}, v{GA+8*i+2*e}, v{GA+8*i+2*e+1}")
        a(f"buffer_store_dwordx4 {vr(WF+4*i,4)}, v15, s[{SRD_OUT}:{SRD_OUT+3}], s{S_T1} offen offset:{16*i}")
    pf.stamp(a, "B2", "stored")

def build_split(cfg):
    pf = Prof(cfg)
    a = Asm()
    prologue(a, "k1")
    a(f"s_cmp_lt_u32 s{S_SLOT}, 12", "s_cbranch_scc1 L_roleA")
    pf.stamp(a, "B", "start_real", real=True); pf.stamp(a, "B", "start")
    ssm(a, cfg, pf)
    if cfg.prof: a("s_waitcnt vmcnt(0)")
    pf.stamp(a, "B", "end"); pf.stamp(a, "B", "end_real", real=True)
    pf.flush(a, "B", 0)
    a("k1_exit:", "s_endpgm", "L_roleA:")
    pf.stamp(a, "A", "start_real", real=True); pf.stamp(a, "A", "start")
    gemm1(a, cfg, pf)
    if cfg.prof: a("s_waitcnt vmcnt(0)")
    pf.stamp(a, "A", "end"); pf.stamp(a, "A", "end_real", real=True)
    pf.flush(a, "A", 0)
    a("s_endpgm")
    b = Asm()
    prologue(b, "k2")
    b(f"s_cmp_lt_u32 s{S_SLOT}, 12", "s_cbranch_scc1 k2_exit")
    pf.stamp(b, "B2", "start_real", real=True); pf.stamp(b, "B2", "start")
    gemm2(b, cfg, pf)
    if cfg.prof: b("s_waitcnt vmcnt(0)")
    pf.stamp(b, "B2", "end"); pf.stamp(b, "B2", "end_real", real=True)
    pf.flush(b, "B2", 1)
    b("k2_exit:", "s_endpgm")
    txt = "; @launch kernel=k1_kernel grid=(256,1,1) block=(256,1,1) lds=163840\n; @launch kernel=k2_kernel grid=(256,1,1) block=(256,1,1) lds=163840\n"
    txt += '.amdgcn_target "amdgcn-amd-amdhsa--gfx950"\n.text\n'
    txt += khead("k1_kernel") + a.text() + khead("k2_kernel") + b.text() + kdesc("k1_kernel") + kdesc("k2_kernel")
    return txt, pf

def dump_lds(a, nbytes):
    a(f"s_mul_i32 s{S_T0}, s2, 163840", f"s_add_u32 s{S_T0}, s{S_T0}, {DBG_OFF}", "v_lshlrev_b32 v2, 2, v0",
      f"s_mov_b32 s{S_T1}, 0", "L_dump:",
      "ds_read_b32 v3, v2", "s_waitcnt lgkmcnt(0)",
      f"buffer_store_dword v3, v2, s[{SRD_WS}:{SRD_WS+3}], s{S_T0} offen",
      "s_waitcnt vmcnt(0)", "v_add_u32 v2, 1024, v2",
      f"s_add_u32 s{S_T1}, s{S_T1}, 1024", f"s_cmp_lt_u32 s{S_T1}, {nbytes}", "s_cbranch_scc1 L_dump", "s_barrier")

def kdesc(name):
    return f""".section .rodata,"a"
.p2align 6
.amdhsa_kernel {name}
  .amdhsa_next_free_vgpr 512
  .amdhsa_next_free_sgpr 102
  .amdhsa_accum_offset 256
  .amdhsa_group_segment_fixed_size 0
  .amdhsa_kernarg_size 144
  .amdhsa_user_sgpr_count 2
  .amdhsa_user_sgpr_kernarg_segment_ptr 1
  .amdhsa_system_sgpr_workgroup_id_x 1
.end_amdhsa_kernel
.text
"""
def khead(name):
    return f""".globl {name}
.p2align 8
.type {name},@function
{name}:
"""

if __name__ == "__main__":
    cfg = Cfg()
    txt, _ = build_split(cfg)
    open(sys.argv[1], "w").write(txt)
```

```python
import sys, gen
ref = open("cdna_kernels/" + gen.NAME + ".s.ref").read().split("\n")
hdr = []
for l in ref:
    if not l.startswith(";") or "@launch" in l or l.startswith("; Override") or l.startswith("; grid=ceil"):
        if not l.startswith(";"): break
        continue
    hdr.append(l)
def write(path, txt): open(path, "w").write("\n".join(hdr) + "\n" + txt)
if __name__ == "__main__":
    cfg = gen.Cfg()
    for kv in sys.argv[2:]:
        k, v = kv.split("="); setattr(cfg, k, eval(v))
    txt, _ = (gen.build_fused if cfg.fused else gen.build_split)(cfg)
    write(sys.argv[1], txt)
```

```python
import sys, gen, mk
from gen import *
def k3(kidx, idx, lo, hi, op, mult, base_ticks=8000):
    a = Asm()
    a(f"""
    s_cmp_ge_u32 s2, 1
    s_cbranch_scc1 k3_exit
    s_load_dwordx2 s[4:5], s[0:1], 136
    v_lshlrev_b32 v1, 8, v0
    v_add_u32 v1, {PROF_OFF}, v1
    v_add_u32 v2, {kidx*65536 + 4*idx}, v1
    v_mov_b32 v5, 0
    v_mov_b32 v6, -1
    v_mov_b32 v7, {0 if op == 'max' else -1}
    ds_write_b64 v5, v[6:7]
    s_waitcnt lgkmcnt(0)
    s_barrier
    global_load_dword v3, v1, s[4:5] sc1
    global_load_dword v4, v2, s[4:5] sc1
    s_waitcnt vmcnt(0)
    ds_min_u32 v5, v3
    v_cmp_le_u32 vcc, {lo}, v0
    v_cmp_gt_u32 s[8:9], v0, v0
    v_mov_b32 v8, {hi}
    v_cmp_lt_u32 s[8:9], v0, v8
    s_nop 1
    s_and_b64 vcc, vcc, s[8:9]
    s_nop 1
    v_cndmask_b32 v4, v7, v4, vcc
    ds_{op}_u32 v5, v4 offset:4
    s_waitcnt lgkmcnt(0)
    s_barrier
    ds_read_b64 v[6:7], v5
    s_waitcnt lgkmcnt(0)
    v_readfirstlane_b32 s10, v6
    v_readfirstlane_b32 s11, v7
    s_nop 3
    s_sub_u32 s11, s11, s10
    s_min_u32 s11, s11, 6000
    s_mul_i32 s11, s11, {mult}
    s_add_u32 s11, s11, {base_ticks}
    s_mov_b32 s14, 0
k3_spin:
    s_memrealtime s[12:13]
    s_waitcnt lgkmcnt(0)
    s_sub_u32 s12, s12, s10
    s_add_u32 s14, s14, 1
    s_cmp_gt_u32 s14, 100000
    s_cbranch_scc1 k3_exit
    s_cmp_lt_u32 s12, s11
    s_cbranch_scc1 k3_spin
k3_exit:
    s_endpgm
    """)
    return khead("k3_kernel") + a.text() + kdesc("k3_kernel")
def make(path, build, cfg, role, name, op, mult):
    cfg.prof = True; cfg.allreal = True
    txt, pf = build(cfg)
    kidx = 1 if role == "B2" else 0
    lo, hi = (0, 96) if role == "A" else (96, 256)
    idx = pf.names[role].index(name)
    lines = txt.split("\n")
    n = max(i for i, l in enumerate(lines[:8]) if l.startswith("; @launch"))
    if "kernel=" not in lines[n]:
        lines[n] = lines[n].replace("@launch ", f"@launch kernel={NAME}_kernel ")
    lines.insert(n+1, "; @launch kernel=k3_kernel grid=(1,1,1) block=(256,1,1) lds=64")
    mk.write(path, "\n".join(lines) + k3(kidx, idx, lo, hi, op, mult))
if __name__ == "__main__":
    specs = sys.argv[2:]
    cfg = Cfg(); cfg.fused = sys.argv[1] == "fused"
    for i, sp in enumerate(specs):
        role, name, op, mult = sp.split(":")
        make(f"diag{i}.s", build_fused if cfg.fused else build_split, cfg, role, name, op, int(mult))
```

```python
import sys, gen, mk, diag
from gen import *
cfg = Cfg(); cfg.prof = True; cfg.allreal = True
txt, pf = build_split(cfg)
L1 = "; @launch kernel=k1_kernel grid=(256,1,1) block=(256,1,1) lds=163840"
L2 = "; @launch kernel=k2_kernel grid=(256,1,1) block=(256,1,1) lds=163840"
L3 = "; @launch kernel=k3_kernel grid=(1,1,1) block=(256,1,1) lds=64"
L0 = "; @launch kernel=k0_kernel grid=(1,1,1) block=(64,1,1) lds=0"
body = txt.split(L2 + "\n")[1]
k3 = diag.k3(0, 0, 0, 96, "max", 0)
k3body = k3.split("k3_kernel:\n")[1].split(".section")[0]
bodya = body.replace("k2_exit:\n    s_endpgm", "s_endpgm\nk2_exit:\n    s_waitcnt lgkmcnt(0)\n" + k3body)
mk.write("diag0.s", L1 + "\n" + L2 + "\n" + bodya)
k0 = khead("k0_kernel") + f"""
    s_memrealtime s[6:7]
    s_cmp_ge_u32 s2, 1
    s_cbranch_scc1 k0_exit
    s_load_dwordx2 s[4:5], s[0:1], 136
    s_waitcnt lgkmcnt(0)
    v_mov_b32 v1, {PROF_OFF + 0x40000}
    v_mov_b32 v2, s6
    global_store_dword v1, v2, s[4:5]
    s_waitcnt vmcnt(0)
k0_exit:
    s_endpgm
""" + kdesc("k0_kernel").replace("vgpr 512", "vgpr 8").replace("offset 256", "offset 8")
def fix(k): return k.replace("global_load_dword v3, v1, s[4:5] sc1", f"v_mov_b32 v1, {PROF_OFF + 0x40000}\n    global_load_dword v3, v1, s[4:5] sc1")
mk.write("diag1.s", "\n".join([L0, L1, L2, L3]) + "\n" + body + k0 + fix(k3))
mk.write("diag2.s", "\n".join([L0, L1, L2, L3]) + "\n" + body + k0 + fix(diag.k3(0, 0, 0, 256, "min", 4)))
mk.write("diag3.s", "\n".join([L1, L2, L3]) + "\n" + body + diag.k3(0, 0, 0, 96, "max", 0, 4000))
mk.write("diag4.s", "\n".join([L1, L2, L3]) + "\n" + body + diag.k3(0, 0, 0, 96, "max", 0, 16000))
mk.write("diag5.s", txt)
```

```python
import sys, struct

NAME = "gated_mix__ssm_conv_s4__dense_activation_squared_relu__prompt"

def f2u(x): return struct.unpack("<I", struct.pack("<f", x))[0]
def hx(x): return "0x%08x" % (x & 0xffffffff)

class Asm:
    def __init__(self):
        self.l = []
    def __call__(self, *lines):
        for s in lines:
            for t in s.split("\n"):
                t = t.strip()
                if t:
                    self.l.append(t if t.endswith(":") else "    " + t)
    def text(self): return "\n".join(self.l) + "\n"

def vr(a, n=1, p="v"): return f"{p}{a}" if n == 1 else f"{p}[{a}:{a+n-1}]"
def ar(a, n=1): return vr(a, n, "a")
def sr(a, n=1): return vr(a, n, "s")

def weave(main, fill, start=0, end=None):
    end = len(main) if end is None else end
    out = []; n = end - start; k = 0
    for i, m in enumerate(main):
        out.append(m)
        if start <= i < end:
            tgt = (len(fill)*(i-start+1) + n - 1)//n
            while k < tgt:
                out.append(fill[k]); k += 1
    assert k == len(fill)
    return out
def insert(main, pos_items):
    out = []
    for i, m in enumerate(main):
        out += pos_items.get(i, [])
        out.append(m)
    assert all(k < len(main) for k in pos_items)
    return out

class Stream:
    def __init__(self, a):
        self.a = a; self.n = {"vm": 0, "lg": 0}; self.done = {"vm": 0, "lg": 0}; self.tok = {}
    def __call__(self, *l): self.run(l)
    def op(self, kind, ins, tag=None):
        self.a(ins); self.n[kind] += 1
        if tag is not None: self.tok[tag] = (kind, self.n[kind])
    def need(self, *tags):
        w = {}
        for t in tags:
            k, i = self.tok[t]
            if i > self.done[k]: w[k] = max(w.get(k, 0), i)
        parts = []
        for k, i in w.items():
            left = min(self.n[k] - i, 63 if k == "vm" else 15)
            self.done[k] = self.n[k] - left
            parts.append(f"{'vmcnt' if k == 'vm' else 'lgkmcnt'}({left})")
        if parts: self.a("s_waitcnt " + " ".join(parts))
    def drain(self, kind):
        if self.done[kind] < self.n[kind]:
            self.a(f"s_waitcnt {'vmcnt' if kind == 'vm' else 'lgkmcnt'}(0)"); self.done[kind] = self.n[kind]
    def run(self, items):
        for it in items:
            if callable(it): it(self)
            elif isinstance(it, (list, tuple)): self.run(it)
            else:
                for t in it.split("\n"):
                    t = t.strip()
                    assert not t.startswith(("ds_", "buffer_", "global_")), t
                self.a(it)
def _c(f, c): f.cost = c; return f
def VM(ins, tag=None): return _c(lambda s: s.op("vm", ins, tag), 16 if "store_dwordx4" in ins else 14)
def LG(ins, tag=None): return _c(lambda s: s.op("lg", ins, tag), 16 if "write_b128" in ins else 8 if "write" in ins else 4.5)
def NEED(*t): return _c(lambda s: s.need(*t), 4)
def DRAIN(k): return _c(lambda s: s.drain(k), 4)
def M0GAP(s):
    if "m0," in s.a.l[-1]: s.a("s_nop 0")
def cost(it):
    if callable(it): return getattr(it, "cost", 0)
    if isinstance(it, (list, tuple)): return sum(cost(x) for x in it)
    c = 0
    for t in it.split("\n"):
        t = t.strip()
        if not t or t.endswith(":"): continue
        op = t.split()[0]
        if op == "s_barrier": c += 8
        elif op.startswith("s_"): c += 4
        elif op.startswith(("v_exp", "v_rcp", "v_sin", "v_cos")): c += 8
        elif op in ("v_mul_f32", "v_add_u32", "v_mov_b32", "v_lshlrev_b32", "v_lshrrev_b32", "v_xor_b32", "v_and_b32", "v_sub_u32", "v_add_f32", "v_sub_f32") and "0x" not in t: c += 4
        else: c += 5
    return c
def sched(st, mf, cap, mand, streams, post=None):
    streams = [list(x) for x in streams]
    for g in range(len(mf)):
        st(mf[g])
        used = cost(mand.get(g, []))
        if g + 1 < len(mf) and isinstance(mf[g+1], list): used += cost(mf[g+1][:-1])
        st(mand.get(g, []))
        while True:
            pick = None
            for q in streams:
                if q and q[0][1] <= g and min(x[2] for x in q) <= g: pick = q; break
            if pick is None:
                for q in streams:
                    if q and q[0][1] <= g and (used == 0 or used + cost(q[0][0]) <= cap): pick = q; break
            if pick is None: break
            it = pick.pop(0)[0]; used += cost(it); st(it)
        if post and g in post: st(post[g])
    assert not any(streams), [len(q) for q in streams]
def paced(items, g0, g1, slack):
    n = len(items)
    return [(it, g0 + j*(g1-g0)//n, g0 + j*(g1-g0)//n + slack) for j, it in enumerate(items)]

H_OFF    = 0
YA_OFF   = 6 << 20
G_OFF    = 12 << 20
FL_OFF   = (12 << 20) + 65536
FS       = 7
FL_H     = FL_OFF
FL_Y     = FL_H + (2048 << FS)
EP_OFF   = FL_OFF - 4096
TAG_STEP = 0x9e3779b1
PROF_OFF = 13 << 20
DBG_OFF  = 14 << 20
WS_SIZE  = 268435456

P_U, P_ARE, P_AIM, P_BRE, P_BIM, P_CRE, P_CIM, P_LDT = 4, 6, 8, 10, 12, 14, 16, 18
P_DSK, P_BX, P_W1, P_B1, P_W2, P_B2, P_GATE, P_OUT = 20, 22, 24, 26, 28, 30, 32, 34
P_DBG, P_WS = 36, 38
S_W, S_XCD, S_SLOT, S_IDX = 40, 41, 42, 43
SRD_U, SRD_W, SRD_WS, SRD_OUT = 44, 48, 52, 56
S_T0, S_T1, S_T2, S_T3 = 66, 67, 68, 69
S_PROF = 70
WS = f"s[{SRD_WS}:{SRD_WS+3}]"

class Cfg:
    prof = False
    fused = True
    allreal = False
    xtouch = False
    krot = True
    hrot = True
    h0_it = 7
    codepf = True
    fine = False
    show = 'setup0 upre ugot kgen2 ubar h0pre h0seen conv h1seen h3seen g2'
    spin_limit = 200000
    sleep = 2
    g_pos = (None, (0, 2), (1, 8), (2, 0)); ul_pos = 18
    ntx = ''
    nt = 'nt'
    wb = 4
    wk = ()
    ct = ((2, 1), (2, 1))
    gswap = True; wrot = True; deep = True
    exp = ''
    w1t = None
    wt_pos = ()
    w_early = 0
    hl = 12; pl = 10
    ne = 3; pd = 12; xlead = 3; wlead = 11

def srd(d, p, size):
    return [f"s_mov_b32 s{d}, s{p}", f"s_mov_b32 s{d+1}, s{p+1}", f"s_mov_b32 s{d+2}, {hx(size)}", f"s_mov_b32 s{d+3}, 0x20000"]

class Prof:
    def __init__(self, cfg): self.cfg = cfg; self.names = {}
    def __call__(self, role, name, real=False):
        if not self.cfg.prof or not ((role == "A" and name != "issued") or name in self.cfg.show.split() or name in ("start", "end", "start_real", "end_real")): return []
        def f(s):
            l = self.names.setdefault(role, [])
            i = len(l); assert i < 15; l.append(name)
            s.a(f"{'s_memrealtime' if (real or self.cfg.allreal) else 's_memtime'} s[{S_PROF+2*i}:{S_PROF+2*i+1}]")
        return [f]
    def flush(self, a, role):
        if not self.cfg.prof: return
        n = len(self.names[role])
        a("s_waitcnt lgkmcnt(0)",
          f"s_lshl_b32 s60, s2, 2", f"s_add_u32 s60, s60, s{S_W}", "s_lshl_b32 s60, s60, 6",
          f"s_add_u32 s60, s60, {PROF_OFF}", "v_mov_b32 v2, s60")
        for i in range(n):
            a(f"v_mov_b32 v3, s{S_PROF+2*i}", f"global_store_dword v2, v3, s[{P_WS}:{P_WS+1}] offset:{4*i}")
        a("s_waitcnt vmcnt(0)")

class Polls:
    def __init__(self, cfg): self.tail = []; self.n = 0; self.cfg = cfg
    def check(self, tag, vreg, vtag, reload, pf=None, nm=None):
        i = self.n; self.n += 1
        self.tail += [f"L_spin{i}:", f"s_sleep {self.cfg.sleep}", "s_add_u32 s100, s100, 1", f"s_cmp_gt_u32 s100, {self.cfg.spin_limit}", "s_cbranch_scc1 L_exit", reload, "s_waitcnt vmcnt(0)", f"v_cmp_ne_u32 vcc, v{vtag}, v{vreg}",
                      f"s_cbranch_vccnz L_spin{i}", f"s_branch L_back{i}"]
        return (pf("B", nm+"pre") if pf else []) + [NEED(tag)] + (pf("B", nm+"got") if pf else []) + [f"v_cmp_ne_u32 vcc, v{vtag}, v{vreg}\ns_cbranch_vccnz L_spin{i}\nL_back{i}:"]


RSTRIDE = 14656
TROW    = 272
KB_OFF  = 4160
U_LDS   = 4*RSTRIDE
W2_LDS  = U_LDS + 18432
def w2slot(u):
    if u < 10: return W2_LDS + 8192*u
    if u < 12: return U_LDS + 8192*(u-10)
    if u < 16: return RSTRIDE*(u-12) + 4096
    return W2_LDS + 8192*(u-16)

HI_VALS = [0,1,2,3,4,5,6,7, 256,258,260,262, 512,516,768,772, 1024,1280,1536,1792,2048]
def hi_row(v): return 32 + HI_VALS.index(v)
ROWMAP_REG = [
    [0,1,2,3,4,5,6,7, 512,516,1024,1536, 2048,2048,2048,2048],
    [256,256,258,260,260,260,262,262, 768,772,1280,1792, 1792,1792,1792,1792]]
def rowmap(m):
    i, half, j = m >> 3, (m >> 2) & 1, m & 3
    return hi_row(ROWMAP_REG[half][4*i+j]) - 32

def cmul(d, x, z, t, conj=False, scalar=False):
    if scalar:
        n1, n2 = ("", "-") if conj else ("-", "")
        return [f"v_mul_f32 v{t}, v{x}, v{z}", f"v_mul_f32 v{t+1}, v{x}, v{z+1}",
                f"v_fma_f32 v{d}, {n1}v{x+1}, v{z+1}, v{t}", f"v_fma_f32 v{d+1}, v{x+1}, v{z}, {n2}v{t+1}"]
    neg = "neg_hi:[1,0,0]" if conj else "neg_lo:[1,0,0]"
    return [f"v_pk_mul_f32 {vr(t,2)}, {vr(x,2)}, {vr(z,2)} op_sel_hi:[1,0]",
            f"v_pk_fma_f32 {vr(d,2)}, {vr(x,2)}, {vr(z,2)}, {vr(t,2)} op_sel:[1,1,0] op_sel_hi:[0,1,1] {neg}"]

def role_b(a, cfg, pf, polls):
    st = Stream(a)
    S_CH, S_RB, S_M1, S_M2 = 60, 61, 62, 64
    S_RBK, S_D10, S_TB, S_LW, S_WO, S_HO, S_H2, S_UQ = 56, 57, 3, 26, 27, 32, 33, 59
    S_CHO, S_CWO = 4, 10
    S_DM = 16
    VP = 10; V_LDT, V_DSK, V_DT, V_DTL, V_DTP = 28, 29, 30, 31, 32
    VRAW = 34
    Z1, Z8, Z256, X, T, SV, CV = 40, 42, 44, 46, 48, 50, 58
    D = 64
    Q = 80
    V_AA, V_BA, V_F, V_G = 112, 113, 114, 118
    V_GD, V_TR, V_TS = 125, 127, 128
    S_GB, S_GO = 17, (21, 22, 23, 28)
    V_L16, V_Z, V_PU, V_PH, V_PY, V_POLL, V_TAG = 131, 132, 133, 134, 135, 136, 137
    V_YW, V_YR, V_W2, V_RW, V_T, V_YA, V_OUT, V_KW, V_KP = 138, 139, 140, 142, 148, 149, 150, 151, 152
    V_WT, V_WW, V_JUNK, V_GT, V_OG, V_OW, V_OR = 153, 122, 155, 156, 157, 158, 159
    ACC2, ACC = 160, 224
    WF, YA, GA, B2R = 224, 44, 8, 44
    FA, FB = 128, 160
    F0, G0, F1, G1 = 128, 160, 192, 224
    def rawreg(u, i):
        j = 2*(12, 13, 18, 19, 14, 20, 15, 21, 10, 11, 16, 17, 22, 23).index(u) + i
        return ar(96+4*j, 4) if j < 8 else vr(192+4*(j-8), 4) if j < 16 else vr(64+4*(j-16), 4)
    st(f"""
    s_sub_u32 s{S_T1}, s{S_SLOT}, 12
    s_mul_i32 s{S_IDX}, s{S_XCD}, 20
    s_add_u32 s{S_IDX}, s{S_IDX}, s{S_T1}
    s_lshl_b32 s{S_CH}, s{S_IDX}, 2
    s_add_u32 s{S_CH}, s{S_CH}, s{S_W}
    s_mul_i32 s{S_RB}, s{S_W}, {RSTRIDE}
    s_mul_i32 s{S_T0}, s{S_CH}, 384
    v_lshl_add_u32 v2, v1, 2, s{S_T0}
    v_lshl_add_u32 v4, v1, 1, s{S_T0}
    s_lshl_b32 s{S_T0}, s{S_CH}, 1
    v_mov_b32 v3, s{S_T0}
    s_and_b32 s{S_RBK}, s{S_XCD}, 6
    s_lshl_b32 s{S_RBK}, s{S_RBK}, 1
    s_and_b32 s{S_T0}, s{S_T1}, 3
    s_add_u32 s{S_RBK}, s{S_RBK}, s{S_T0}
    s_and_b32 s{S_D10}, s{S_XCD}, 1
    s_mul_i32 s{S_D10}, s{S_D10}, 5
    s_lshr_b32 s{S_T0}, s{S_T1}, 2
    s_add_u32 s{S_D10}, s{S_D10}, s{S_T0}
    s_lshl_b32 s{S_TB}, s{S_RBK}, 2
    s_add_u32 s{S_TB}, s{S_TB}, s{S_W}
    s_mul_i32 s{S_T2}, s{S_TB}, {32*1280}
    s_lshl_b32 s{S_T1}, s{S_D10}, 7
    s_cmp_ge_u32 s{S_D10}, 5
    s_cselect_b32 s{S_T3}, 640, 0
    s_sub_u32 s{S_T0}, s{S_T1}, s{S_T3}
    s_add_u32 s{S_T0}, s{S_T0}, s{S_T2}
    v_and_b32 v5, 31, v1
    v_lshrrev_b32 v6, 5, v1
    v_lshl_add_u32 v6, v5, 1, v6
    v_mul_u32_u24 v6, 640, v6
    v_mov_b32 v9, {EP_OFF}
    """)
    for i in list(range(VP+12, VP+18)) + [V_LDT, V_DSK]: st(f"v_mov_b32 v{i}, 0")
    st(f"s_mov_b32 s{SRD_U+2}, {2048*1280}", f"s_mov_b32 s{SRD_U+3}, 0x20000")
    st("s_waitcnt lgkmcnt(0)")
    st(pf("B", "karg"))
    st(VM(f"global_load_short_d16_hi v{V_LDT}, v3, s[{P_LDT}:{P_LDT+1}]", "ldt"))
    PP = (P_ARE, P_AIM, P_BRE, P_BIM, P_CRE, P_CIM)
    for k, p in enumerate(PP): st(VM(f"global_load_dword v{VRAW+k}, v2, s[{p}:{p+1}] {cfg.nt}", "p01"))
    st(srd(SRD_U, P_U, 0)[:2])
    if cfg.xtouch: st(VM(f"buffer_load_dword v{V_JUNK}, v6, s[{SRD_U}:{SRD_U+3}], s{S_T0} offen {cfg.ntx}"))
    st(VM(f"global_load_dword v{V_TAG}, v9, s[{P_WS}:{P_WS+1}] sc1", "tag"))
    for k, p in enumerate(PP): st(VM(f"global_load_short_d16_hi v{VP+12+k}, v4, s[{p}:{p+1}] offset:256 {cfg.nt}", "p2"))
    st(VM(f"global_load_short_d16_hi v{V_DSK}, v3, s[{P_DSK}:{P_DSK+1}]", "dsk"))
    st(srd(SRD_WS, P_WS, WS_SIZE), srd(SRD_W, P_W2, 1536*1280))
    st(f"s_mov_b32 m0, s{S_RB}", "v_mov_b32 v9, 0x3f80",
       f"s_mov_b32 s{S_M1}, 0", f"s_mov_b32 s{S_M1+1}, -1",
       LG("ds_write_addtid_b32 v9"),
       f"s_mov_b32 s{S_M2}, 0xaaaaaaaa", f"s_mov_b32 s{S_M2+1}, 0xaaaaaaaa",
       "v_mov_b32 v6, 0", "v_mov_b32 v7, 0", "v_lshlrev_b32 v9, 3, v0", f"v_add_u32 v9, {U_LDS+16384}, v9",
       LG("ds_write_b64 v9, v[6:7]"))
    st("v_lshrrev_b32 v3, 5, v1", f"v_lshl_add_u32 v6, v3, 4, s{S_RB}",
       f"v_mov_b32 v8, {TROW}", f"v_mad_u32_u24 v{V_BA}, v5, v8, v6", "v_mov_b32 v7, 32")
    for k in range(5):
        mask = sum(((rowmap(m) >> k) & 1) << m for m in range(32))
        st(f"s_mov_b32 s{S_T0}, {hx(mask)}", f"v_bfe_u32 v9, s{S_T0}, v5, 1", f"v_lshl_add_u32 v7, v9, {k}, v7")
    st(f"v_mad_u32_u24 v{V_AA}, v7, v8, v6")
    st(f"""
    s_mul_i32 s{S_WO}, s{S_W}, {16*1280}
    s_add_u32 s{S_WO}, s{S_WO}, s{S_T1}
    s_lshl_b32 s{S_LW}, s{S_W}, 11
    s_mul_i32 s{S_HO}, s{S_TB}, {96*1024}
    v_lshrrev_b32 v2, 3, v1
    v_and_b32 v4, 2, v2
    v_and_b32 v5, 7, v1
    v_xor_b32 v4, v4, v5
    v_lshlrev_b32 v4, 4, v4
    v_mov_b32 v8, 1280
    v_mad_u32_u24 v{V_W2}, v2, v8, v4
    v_add_u32 v{V_W2+1}, {8*1280-1024}, v{V_W2}
    v_lshlrev_b32 v{V_L16}, 4, v1
    v_mov_b32 v{V_Z}, 0
    v_lshl_add_u32 v154, v3, 6, s{S_T1}
    """)
    if cfg.wt_pos: st(f"""
    s_and_b32 s{S_T0}, s{S_TB}, 15
    s_mul_i32 s{S_T0}, s{S_T0}, 48
    v_min_u32 v4, 47, v1
    v_add_u32 v4, s{S_T0}, v4
    v_and_b32 v5, 0x380, v4
    v_add_u32 v4, v4, v5
    v_mad_u32_u24 v{V_WT}, v4, v8, s{S_T1}
    """)
    V_W1T = 33
    if cfg.w1t: st(f"""
    s_sub_u32 s{S_T0}, s{S_SLOT}, 12
    s_lshl_b32 s{S_T0}, s{S_T0}, 2
    s_add_u32 s{S_T0}, s{S_T0}, s{S_W}
    s_mul_i32 s{S_T0}, s{S_T0}, {8*3072}
    s_and_b32 s{S_T2}, s{S_XCD}, 1
    s_mul_i32 s{S_T2}, s{S_T2}, 1536
    s_add_u32 s{S_T0}, s{S_T0}, s{S_T2}
    v_and_b32 v4, 7, v1
    v_mul_u32_u24 v4, 3072, v4
    v_min_u32 v5, 2, v2
    v_lshl_add_u32 v4, v5, 9, v4
    v_add_u32 v{V_W1T}, s{S_T0}, v4
    """)
    V_CT = 129
    if cfg.ct: st(f"""
    s_sub_u32 s{S_T0}, s{S_SLOT}, 12
    s_lshl_b32 s{S_T0}, s{S_T0}, 2
    s_add_u32 s{S_T0}, s{S_T0}, s{S_W}
    s_lshr_b32 s{S_T2}, s{S_XCD}, 1
    s_mul_i32 s{S_T2}, s{S_T2}, 80
    s_add_u32 s{S_T0}, s{S_T0}, s{S_T2}
    s_mul_i32 s{S_T0}, s{S_T0}, {2*3072}
    s_and_b32 s{S_T2}, s{S_XCD}, 1
    s_mul_i32 s{S_T2}, s{S_T2}, 1536
    s_add_u32 s{S_T0}, s{S_T0}, s{S_T2}
    v_and_b32 v4, 3, v1
    v_max_u32 v4, 1, v4
    v_bfe_u32 v5, v1, 2, 2
    v_min_u32 v5, 2, v5
    v_lshl_add_u32 v4, v5, 2, v4
    v_bfe_u32 v5, v1, 4, 1
    v_mad_u32_u24 v4, v5, 24, v4
    v_lshl_add_u32 v{V_CT}, v4, 7, s{S_T0}
    s_mul_i32 s{S_T0}, s{S_TB}, {24*1280}
    s_add_u32 s{S_T0}, s{S_T0}, s{S_T1}
    v_min_u32 v4, 23, v1
    v_mad_u32_u24 v{V_CT+1}, v4, v8, s{S_T0}
    """)
    ctouch = [[VM(f"global_load_dword v{V_JUNK}, v{V_CT}, s[{P_W1}:{P_W1+1}]")], [VM(f"buffer_load_dword v{V_JUNK}, v{V_CT+1}, s[{SRD_W}:{SRD_W+3}], 0 offen")]]
    if cfg.hrot:
        st(f"s_sub_u32 s{S_T0}, s{S_SLOT}, 12", f"s_lshr_b32 s{S_T0}, s{S_T0}, 2")
        if cfg.wrot: st(f"""
        s_and_b32 s{S_T1}, s{S_RBK}, 3
        s_mul_i32 s{S_T1}, s{S_T1}, 3
        s_add_u32 s{S_T1}, s{S_T1}, 1
        s_lshr_b32 s{S_T1}, s{S_T1}, 1
        s_add_u32 s{S_T0}, s{S_T0}, s{S_T1}
        s_lshr_b32 s{S_T1}, s{S_RBK}, 2
        s_add_u32 s{S_T0}, s{S_T0}, s{S_T1}
        s_mul_i32 s{S_T1}, s{S_T0}, 43
        s_lshr_b32 s{S_T1}, s{S_T1}, 8
        s_mul_i32 s{S_T1}, s{S_T1}, 6
        s_sub_u32 s{S_T0}, s{S_T0}, s{S_T1}
        """)
    else: st(f"s_mov_b32 s{S_T0}, 0")
    for p in range(6):
        st(f"s_lshl_b32 s{S_T1}, s{S_T0}, 12", f"s_add_u32 s{S_CHO+p}, s{S_T1}, s{S_HO}",
           f"s_mul_i32 s{S_T1}, s{S_T0}, {256*1280}", f"s_add_u32 s{S_CWO+p}, s{S_T1}, s{S_WO}")
        if p < 5: st(f"s_add_u32 s{S_T0}, s{S_T0}, 1", f"s_cmp_eq_u32 s{S_T0}, 6\ns_cselect_b32 s{S_T0}, 0, s{S_T0}")
    st(f"""
    s_lshl_b32 s{S_UQ}, s{S_W}, 13
    s_add_u32 s{S_UQ}, s{S_UQ}, {W2_LDS + 2*8192}
    s_lshr_b32 s{S_T0}, s{S_IDX}, 1
    s_lshl_b32 s{S_T0}, s{S_T0}, 4
    v_mad_u32_u24 v{V_GD}, v1, v8, s{S_T0}
    v_add_u32 v{V_GD+1}, {64*1280-1024}, v{V_GD}
    s_lshr_b32 s{S_T1}, s{S_IDX}, 1
    s_and_b32 s{S_T1}, s{S_T1}, {2 if cfg.gswap else 0}
    s_xor_b32 s{S_T1}, s{S_T1}, s{S_W}
    s_lshl_b32 s{S_T0}, s{S_IDX}, 2
    s_add_u32 s{S_T0}, s{S_T0}, s{S_T1}
    """)
    for j in range(4):
        st(f"s_add_u32 s{S_T1}, s{S_T0}, {4*j}", f"s_and_b32 s{S_T1}, s{S_T1}, 15", f"s_lshl_b32 s{S_GB+j}, s{S_T1}, 10", f"s_mul_i32 s{S_GO[j]}, s{S_T1}, {128*1280}")
    def gather(j, restore=True):
        return [f"s_add_u32 m0, s{S_UQ}, {2048*j}\ns_nop 0"] + \
               [VM(f"buffer_load_dwordx4 v{V_GD+i}, s[{SRD_U}:{SRD_U+3}], s{S_GO[j]} offen offset:{1024*i} {cfg.ntx} lds", ("raw", j)) for i in range(2)] + \
               ([f"s_mov_b32 m0, s{S_RB}\ns_nop 0"] if restore else [])
    st(f"""
    v_bfe_u32 v2, v1, 2, 2
    v_and_b32 v4, 3, v1
    v_lshrrev_b32 v5, 4, v1
    v_lshl_add_u32 v6, v5, 2, v4
    v_lshl_add_u32 v6, v6, 3, 3
    v_sub_u32 v6, v6, v2
    s_and_b32 s{S_T0}, s{S_IDX}, 1
    s_lshl_b32 s{S_T0}, s{S_T0}, 3
    s_add_u32 s{S_T0}, s{S_T0}, s{S_UQ}
    v_lshl_add_u32 v{V_TR}, v6, 4, s{S_T0}
    v_xor_b32 v6, v4, v5
    v_xor_b32 v6, 3, v6
    v_and_b32 v7, 60, v1
    v_sub_u32 v6, v6, v7
    v_lshlrev_b32 v6, 4, v6
    v_add_u32 v{V_TS}, {U_LDS + 64*255}, v6
    v_and_b32 v6, 15, v1
    """)
    st(f"v_lshl_add_u32 v9, v5, 4, s{S_RB}",
       "v_add_u32 v7, 1, v6", "v_and_b32 v7, 30, v7", "v_lshl_add_u32 v7, v7, 1, v9",
       f"v_add_u32 v8, {KB_OFF}, v7", f"v_cndmask_b32 v{V_F}, v8, v7, s[{S_M2}:{S_M2+1}]")
    for i in range(1, 4): st(f"v_add_u32 v{V_F+i}, {1024*i}, v{V_F}")
    st("v_lshlrev_b32 v7, 1, v6", "v_sub_u32 v7, v5, v7")
    for r in range(4):
        st(f"v_add_u32 v8, {30+4*r+U_LDS//64}, v7", f"v_add_u32 v9, {30+4*r}, v7", "v_bfe_u32 v9, v9, 2, 2", f"v_xor_b32 v9, s{S_W}, v9",
           "v_lshlrev_b32 v9, 4, v9", f"v_lshl_add_u32 v{V_G+r}, v8, 6, v9")
    st(f"""
    v_add_u32 v{V_KW}, s{S_RB}, v{V_L16}
    v_sub_u32 v7, 7, v1
    v_max_i32 v7, 0, v7
    v_lshl_add_u32 v{V_KP}, v7, 2, s{S_RB}
    """)
    late = f"""
    v_min_u32 v7, 5, v1
    s_lshl_b32 s{S_T0}, s{S_TB}, {5+FS}
    s_add_u32 s{S_T0}, s{S_T0}, {FL_H}
    v_lshl_add_u32 v{V_PH}, v7, {FS}, s{S_T0}
    v_and_b32 v5, 31, v1
    v_lshrrev_b32 v3, 5, v1
    s_lshl_b32 s{S_T1}, s{S_D10}, 7
    s_lshl_b32 s{S_T0}, s{S_TB}, 5
    v_add_u32 v7, s{S_T0}, v5
    v_lshlrev_b32 v{V_T}, 2, v7
    v_lshlrev_b32 v6, 17, v3
    v_lshl_add_u32 v{V_YA}, v7, 3, v6
    v_and_b32 v6, 7, v1
    v_lshrrev_b32 v7, 3, v1
    s_mul_i32 s{S_T0}, s{S_T0}, 1280
    s_add_u32 s{S_T0}, s{S_T0}, s{S_T1}
    v_mul_u32_u24 v4, 1280, v7
    v_lshl_add_u32 v4, v6, 4, v4
    v_add_u32 v{V_OUT}, s{S_T0}, v4
    s_lshl_b32 s{S_T0}, s{S_W}, 12
    s_add_u32 s{S_T0}, s{S_T0}, {W2_LDS + 8*8192}
    v_xor_b32 v4, v6, v7
    v_lshl_add_u32 v4, v4, 4, s{S_T0}
    v_lshl_add_u32 v{V_OR}, v7, 7, v4
    v_lshlrev_b32 v4, 2, v3
    v_xor_b32 v4, v4, v6
    v_lshl_add_u32 v4, v4, 4, s{S_T0}
    v_lshl_add_u32 v{V_OW}, v5, 7, v4
    v_bfe_u32 v2, v1, 2, 2
    v_lshl_add_u32 v4, v3, 2, v2
    v_lshlrev_b32 v4, 7, v4
    v_lshrrev_b32 v5, 1, v2
    v_lshl_add_u32 v4, v5, 5, v4
    v_and_b32 v5, 1, v1
    v_lshl_add_u32 v4, v5, 6, v4
    v_bfe_u32 v5, v1, 4, 1
    v_lshl_add_u32 v4, v5, 4, v4
    v_bfe_u32 v5, v1, 1, 1
    v_lshl_add_u32 v{V_RW}, v5, 3, v4
    v_xor_b32 v{V_RW+1}, 32, v{V_RW}
    v_add_u32 v{V_RW+2}, 0x10000, v{V_RW}
    v_add_u32 v{V_RW+3}, 0x10000, v{V_RW+1}
    v_add_u32 v{V_RW+4}, 0x20000, v{V_RW}
    v_add_u32 v{V_RW+5}, 0x20000, v{V_RW+1}
    v_add_u32 v{V_WW}, s{S_LW}, v{V_L16}
    v_add_u32 v{V_WW+1}, 0x10000, v{V_WW}
    v_add_u32 v{V_WW+2}, 0x20000, v{V_WW}
    v_and_b32 v6, 15, v1
    v_lshrrev_b32 v5, 4, v1
    v_and_b32 v4, 3, v1
    v_lshlrev_b32 v7, 2, v5
    v_lshl_add_u32 v7, v6, 4, v7
    v_add_u32 v{V_YW}, s{S_RB}, v7
    v_mul_u32_u24 v7, {RSTRIDE}, v2
    v_lshl_add_u32 v7, v4, 3, v7
    v_lshl_add_u32 v7, v5, 5, v7
    s_lshl_b32 s{S_T0}, s{S_W}, 9
    v_add_u32 v{V_YR}, s{S_T0}, v7
    s_lshr_b32 s{S_T0}, s{S_RBK}, 2
    s_mul_i32 s{S_T0}, s{S_T0}, {160 << FS}
    s_lshl_b32 s{S_T1}, s{S_D10}, {4+FS}
    s_add_u32 s{S_T0}, s{S_T0}, s{S_T1}
    s_add_u32 s{S_T0}, s{S_T0}, {FL_Y}
    v_lshl_add_u32 v{V_PY}, v6, {FS}, s{S_T0}
    """
    late_l = []
    for t in late.split("\n"):
        t = t.strip()
        if t: late_l.append(t)
    b2l = [VM(f"global_load_dwordx4 {vr(B2R+4*i,4)}, v154, s[{P_B2}:{P_B2+1}] offset:{16*i}", "b2") for i in range(4)]
    late2 = [NEED("b2")] + [x for i in range(16) for x in (f"v_lshlrev_b32 v{ACC2+2*i}, 16, v{B2R+i}", f"v_and_b32 v{ACC2+2*i+1}, 0xffff0000, v{B2R+i}")]
    for j, gp in enumerate(cfg.g_pos):
        if not gp: st(gather(j))
    st(pf("B", "idle"))
    LH = f2u(1.4426950408889634); LHf = struct.unpack("<f", struct.pack("<I", LH))[0]
    st(f"s_mov_b32 s{S_T0}, {hx(LH)}", f"s_mov_b32 s{S_T1}, {hx(f2u(1.4426950408889634-LHf))}", f"s_mov_b32 s{S_T2}, {hx(f2u(0.6931471805599453))}",
      NEED("ldt"),
      f"v_mul_f32 v5, s{S_T0}, v{V_LDT}",
      f"v_fma_f32 v6, v{V_LDT}, s{S_T0}, -v5",
      f"v_exp_f32 v7, v5",
      f"v_fma_f32 v6, v{V_LDT}, s{S_T1}, v6",
      f"v_mul_f32 v6, s{S_T2}, v6",
      f"v_fma_f32 v7, v7, v6, v7",
      f"v_cvt_pk_bf16_f32 v{V_DT}, 0, v7",
      f"v_mul_f32 v{V_DTL}, s{S_T0}, v{V_DT}",
      f"v_mul_f32 v{V_DTP}, 0.15915494, v{V_DT}")
    def setup(g):
        p = VP + 6*g
        l = [NEED("p01" if g < 2 else "p2")]
        if g == 0: l += [f"v_lshlrev_b32 v{p+k}, 16, v{VRAW+k}" for k in range(6)]
        if g == 1: l += [f"v_and_b32 v{p+k}, 0xffff0000, v{VRAW+k}" for k in range(6)]
        l += [f"v_mul_f32 v{p}, v{p}, v{V_DTL}",
             f"v_mul_f32 v{p+1}, v{p+1}, v{V_DTP}",
             f"v_mul_f32 v{p+2}, v{p+2}, v{V_DT}",
             f"v_mul_f32 v{p+3}, v{p+3}, v{V_DT}",
             f"v_exp_f32 v2, v{p}",
             f"v_fract_f32 v3, v{p+1}",
             f"v_mul_f32 v4, 0x41000000, v{p}",
             f"v_mul_f32 v5, 0x41000000, v{p+1}",
             f"v_cos_f32 v{Z1}, v3",
             f"v_sin_f32 v{Z1+1}, v3",
             f"v_exp_f32 v4, v4",
             f"v_fract_f32 v5, v5",
             f"v_mul_f32 v6, 0x43800000, v{p}",
             f"v_mul_f32 v7, 0x43800000, v{p+1}",
             f"v_cos_f32 v{Z8}, v5",
             f"v_sin_f32 v{Z8+1}, v5",
             f"v_exp_f32 v6, v6",
             f"v_fract_f32 v7, v7",
             f"v_mul_f32 v{Z1}, v2, v{Z1}",
             f"v_mul_f32 v{Z1+1}, v2, v{Z1+1}",
             f"v_cos_f32 v{Z256}, v7",
             f"v_sin_f32 v{Z256+1}, v7",
             f"v_mul_f32 v{Z8}, v4, v{Z8}",
             f"v_mul_f32 v{Z8+1}, v4, v{Z8+1}",
             f"v_mul_f32 v{SV}, v{p+4}, v{p+2}",
             f"v_mul_f32 v{SV+1}, v{p+4}, v{p+3}",
             f"v_mul_f32 v{Z256}, v6, v{Z256}",
             f"v_mul_f32 v{Z256+1}, v6, v{Z256+1}",
             f"v_fma_f32 v{SV}, -v{p+5}, v{p+3}, v{SV}",
             f"v_fma_f32 v{SV+1}, -v{p+5}, v{p+2}, -v{SV+1}"]
        return l
    def chains(nscalar):
        vals = []
        def put(pre, x, row): vals.append((pre, x, row))
        def sc(): return len(vals) <= nscalar
        put([], SV, hi_row(0))
        prev = SV
        for j in range(1, 8):
            d = SV + j if j % 2 == 0 else X
            put(cmul(d, prev, Z1, T, True, sc()), d, hi_row(j)); prev = d
        for j in (0, 2, 4, 6): put(cmul(SV+j, SV+j, Z256, T, True, sc()), SV+j, hi_row(256+j))
        for b in (512, 768):
            for j in (0, 4): put(cmul(SV+j, SV+j, Z256, T, True), SV+j, hi_row(b+j))
        for b in (1024, 1280, 1536, 1792, 2048): put(cmul(SV, SV, Z256, T, True), SV, hi_row(b))
        put([], Z8, 1)
        prev = Z8
        for b in range(2, 32): put(cmul(X, prev, Z8, T), X, b); prev = X
        l = []; i = 0; nrd = 0
        while i < len(vals):
            n = 1 if (nscalar and i <= nscalar) else min(cfg.wb, len(vals) - i)
            g = []
            for j in range(n):
                pre, x, row = vals[i+j]; g += pre + [f"v_cvt_pk_bf16_f32 v{CV+(i+j)%6}, v{x}, v{x+1}"]
            for j in range(n): g.append(LG(f"ds_write_addtid_b32 v{CV+(i+j)%6} offset:{vals[i+j][2]*TROW}"))
            i += n
            if i >= 24:
                for k in range(nrd, min(nrd+2, 8)): g.append(LG(f"ds_read_b128 {ar(FA+4*k,4)}, v{V_AA} offset:{32*k}"))
                nrd = min(nrd+2, 8)
            l.append(g)
        assert nrd == 8
        return l
    def mm(g, k):
        c = "0" if (g == 0 and k == 0) else vr(D, 16)
        return [NEED(("fb", k)), f"v_mfma_f32_32x32x16_bf16 {vr(D,16)}, {ar(FA+4*k,4)}, {ar(FB+4*k,4)}, {c}"]
    fbreads = [LG(f"ds_read_b128 {ar(FB+4*k,4)}, v{V_BA} offset:{32*k}", ("fb", k)) for k in range(8)]
    def w2load(u):
        sg, p = divmod(u, 6)
        so = f"s_add_u32 s{S_DM}, s{S_CWO+p}, {sg*64*1280}"
        if u < 10:
            v = [VM(f"buffer_load_dwordx4 v{V_W2+i}, s[{SRD_W}:{SRD_W+3}], s{S_DM} offen offset:{1024*i} lds", ("w2", u)) for i in range(2)]
            return [[f"s_add_u32 m0, s{S_LW}, {w2slot(u)}", so, v[0]], v[1]]
        v = [VM(f"buffer_load_dwordx4 {rawreg(u,i)}, v{V_W2+i}, s[{SRD_W}:{SRD_W+3}], s{S_DM} offen offset:{1024*i}", ("w2", u)) for i in range(2)]
        return [[so, v[0]], v[1]]
    def w2put(u):
        l = []
        for i in range(2):
            o = w2slot(u) + 1024*i
            l.append([NEED(("w2", u)), LG(f"ds_write_b128 v{V_WW+(o>>16)}, {rawreg(u,i)} offset:{o & 0xffff}", ("put", u))])
        return l
    def w2touch(j): return [f"s_mov_b32 s{S_T3}, {128*1280*j}", VM(f"buffer_load_dword v{V_JUNK}, v{V_WT}, s[{SRD_W}:{SRD_W+3}], s{S_T3} offen")]
    def flag_store(soff): return [VM(f"buffer_store_dword v{V_TAG}, v{V_Z}, {WS}, s{soff} offen sc1")]
    ins = [{}, {}, {}]
    def at(g, pos, items): ins[g].setdefault(pos, []).extend(items)
    for j, gp in enumerate(cfg.g_pos):
        if gp: at(*gp, gather(j))
    for j, gp in enumerate(cfg.ct): at(*gp, ctouch[j])
    tr = pf("B", "upre") + [NEED(("raw", 3))] + pf("B", "ugot")
    for j in range(4):
        tr += [LG(f"ds_read_b64_tr_b16 {vr(Q+4*j,2)}, v{V_TR} offset:{2048*j+64}"), LG(f"ds_read_b64_tr_b16 {vr(Q+4*j+2,2)}, v{V_TR} offset:{2048*j}", ("tr", j))]
    ts = [f"v_subrev_u32 v{Q+16+j}, s{S_GB+j}, v{V_TS}" for j in range(4)] + [f"v_add_u32 v{V_TAG}, {hx(TAG_STEP)}, v{V_TAG}"]
    for j in range(4): ts += [NEED(("tr", j)), LG(f"ds_write_b128 v{Q+16+j}, {vr(Q+4*j,4)}", "U")]
    at(2, cfg.ul_pos, tr); at(2, cfg.ul_pos+1, ts)
    for j, (g, pos) in enumerate(cfg.wt_pos): at(g, pos, w2touch(j))
    if cfg.w1t: at(*cfg.w1t, [VM(f"global_load_dword v{V_JUNK}, v{V_W1T}, s[{P_W1}:{P_W1+1}] offset:{128*q}") for q in (1, 2, 3)])
    vq = [w2load(u) for p in range(6) for u in (12+p, 18+p, p, 6+p)]
    for gp in cfg.wk:
        x = vq.pop(0); at(*gp, x + ([f"s_mov_b32 m0, s{S_RB}\ns_nop 0"] if len(x[0]) == 3 else []))
    assert len(cfg.wk) + cfg.w_early <= 8
    vq = [x for u in vq for x in u]
    st(setup(0))
    st(pf("B", "setup0"))
    st(insert(chains(0), ins[0]))
    for g in (1, 2):
        st(fbreads, setup(g))
        c = chains(8)
        for k in range(8): c[k+1] = mm(g-1, k) + c[k+1]
        st(pf("B", f"kgen{g-1}"))
        st(insert(c, ins[g]))
    st(fbreads, NEED("dsk"), "v_cmp_eq_u32 vcc, 0, v1")
    ne = 2*cfg.w_early
    st(weave([mm(2, k) for k in range(8)], vq[:ne])); vq = vq[ne:]
    st(f"v_cndmask_b32 v{V_DSK}, 0, v{V_DSK}, vcc", "s_nop 10")
    st(pf("B", "kgen2"))
    N = 10; TT = 14
    dpp = "row_mask:0xf bank_mask:0xf"
    st(f"v_add_f32 v{D}, v{D}, v{V_DSK}")
    for i, nx in enumerate((8, 10, 11, 12)): st(f"v_mov_b32_dpp v{N+i}, v{D+nx} wave_rol:1 {dpp}")
    for i, cu in enumerate((0, 8, 10, 11)): st(f"v_mov_b32_dpp v{N+i}, v{D+cu} wave_shl:1 {dpp}")
    st(f"v_cvt_pk_bf16_f32 v16, 0, v{D}",
       f"v_cndmask_b32 v{D+7}, v{D+7}, v{N}, s[{S_M1}:{S_M1+1}]",
       "v_cndmask_b32 v16, 0, v16, vcc",
       f"v_cndmask_b32 v{TT}, v{D+10}, v{N+2}, s[{S_M2}:{S_M2+1}]",
       f"v_cndmask_b32 v{TT+1}, v{D+11}, v{N+3}, s[{S_M2}:{S_M2+1}]",
       LG(f"ds_write_b32 v{V_KP}, v16 offset:{KB_OFF}"), LG(f"ds_write_b32 v{V_KP}, v{V_Z}"))
    seqs = [[D+i for i in range(8)] + [N],
            [D+8]*3 + [D+9]*3 + [N+1]*3,
            [D+10]*4 + [TT] + [N+2]*4,
            [D+11]*4 + [TT+1] + [N+3]*4]
    def floads(F, ms, r=0):
        l = []
        for m in ms:
            o = 128*(m & 1)
            l.append(LG(f"ds_read2_b32 {ar(F+4*m,2)}, v{V_F+(m>>1)} offset0:{o} offset1:{o+1}"))
            l.append(LG(f"ds_read2_b32 {ar(F+4*m+2,2)}, v{V_F+(m>>1)} offset0:{o+2} offset1:{o+3}", ("F", r, m)))
        return l
    def gload(G, n, r): return LG(f"ds_read_b128 {ar(G+4*n,4)}, v{V_G+(r&3)} offset:{2048*(7-n) + 1024*(r>>2)}", ("G", r, n))
    fadv = [f"v_add_u32 v{V_F+i}, 64, v{V_F+i}" for i in range(4)]
    for p, sq in enumerate(seqs):
        for cpy in range(2):
            q = Q + 8*p + 4*cpy
            for i in range(4): st(f"v_cvt_pk_bf16_f32 v{q+i}, v{sq[2*i+cpy]}, v{sq[2*i+1+cpy]}")
            st(LG(f"ds_write_b128 v{V_KW}, {vr(q,4)} offset:{32 + 1024*p + KB_OFF*cpy}"))
    st(floads(F0, range(8)), fadv)
    st(pf("B", "expand"))
    st(NEED("U"), "s_barrier")
    st(pf("B", "ubar"))
    st([gload(G0, n, 0) for n in range(7, -1, -1)])
    def hreg(k): return ar(4*(k % 24) + (128 if (k//24) & 1 else 0), 4)
    def hload(k):
        sg, rem = divmod(k, 24); p, q = divmod(rem, 4)
        l = [f"s_add_u32 s{S_H2}, s{S_CHO+p}, {H_OFF + sg*24*1024*(0 if 'hq0' in cfg.exp else 1)}"] if q == 0 else []
        return l + [VM(f"buffer_load_dwordx4 {hreg(k)}, v{V_L16}, {WS}, s{S_H2} offen offset:{1024*q} sc1", ("h", k))]
    def hpoll(sg): return f"buffer_load_dword v{V_POLL}, v{V_PH}, {WS}, 0 offen offset:{(8*sg) << FS} sc1"
    def mfmas(F, G, first):
        return [f"v_mfma_f32_16x16x32_bf16 {vr(ACC+4*(m+n),4)}, {ar(F+4*m,4)}, {ar(G+4*n,4)}, {'0' if (first and m == 0) else vr(ACC+4*(m+n),4)}"
                for m in range(8) for n in range(7-m, -1, -1)]
    def flat(items): return [y for x in items for y in (x if isinstance(x, list) else [x])]
    mf = []; mand = {}
    for r in range(8):
        F, G, Fn, Gn = (F0, G0, F1, G1) if r % 2 == 0 else (F1, G1, F0, G0)
        m_ = mfmas(F, G, r == 0)
        if r == 0:
            for n in (7, 5, 3, 1): m_[7-n] = [NEED(("G", 0, n-1)), m_[7-n]]
        else:
            m_[0] = [NEED(("G", r, 0)), m_[0]]; m_[8] = [NEED(("F", r, 7)), m_[8]]
        if r < 7:
            ld = floads(Fn, [0], r+1) + [gload(Gn, n, r+1) for n in range(7, -1, -1)]
            for m in range(1, 8):
                ld += floads(Fn, [m], r+1)
                if m & 1: ld[-1] = [ld[-1], fadv[m >> 1]]
            gaps = [g for g in range(36) if g % 3 != 1]
            for g, it in zip(gaps, ld): mand[36*r + g] = [it]
        mf += m_
    gh = 36*cfg.h0_it
    free = [g for g in range(288) if g % 3 == 1]
    def onfree(items, g0, g1):
        fr = [g for g in free if g0 <= g < g1]; out = []
        for j, it in enumerate(items):
            g = fr[j*len(fr)//len(items)]
            if isinstance(it, list):
                out += [(x, max(g-3, g0), g) for x in it[:-1]]; it = it[-1]
            out.append((it, g, g))
        return out
    sv = onfree(vq + b2l, 0, gh)
    k = next((j for j, x in enumerate(sv) if x[2] >= gh - 40 and (j == 0 or callable(sv[j-1][0]))), len(sv))
    sv.insert(k, (VM(hpoll(0), "hp"), gh - 44, gh - 40))
    hq = [hload(k) for k in range(24)]
    chk = polls.check("hp", V_POLL, V_TAG, hpoll(0), pf, "h0") + pf("B", "h0seen")
    if cfg.h0_it < 8: sv += [(chk, gh, gh)] + onfree(hq, gh + 1, 288)
    sched(st, mf, 9.5, mand, [sv, [(x, 0, 140) for x in late_l], [(x, 252, 287) for x in late2]])
    if cfg.h0_it >= 8: st(chk, hq)
    st(pf("B", "conv"))
    st(f"s_lshl_b32 s{S_T0}, s{S_IDX}, 14", f"s_lshl_b32 s{S_T1}, s{S_W}, 12", f"s_add_u32 s{S_T0}, s{S_T0}, s{S_T1}",
       f"s_add_u32 s{S_T0}, s{S_T0}, {YA_OFF}")
    for cb in range(8):
        r = ACC + 4*cb
        st(f"v_cvt_pk_bf16_f32 v{8+2*cb}, v{r}, v{r+2}", f"v_cvt_pk_bf16_f32 v{9+2*cb}, v{r+1}, v{r+3}",
           LG(f"ds_write2st64_b32 v{V_YW}, v{8+2*cb}, v{9+2*cb} offset0:{cb} offset1:{8+cb}"))
    st(NEED(*[("w2", u) for u in range(10)]), DRAIN("lg"), "s_barrier")
    def reads(k):
        u, q = k >> 2, k & 3
        o = w2slot(u) + q*2048; l = []
        if k == 40: l += [NEED(("put", 15)), "s_barrier"]
        if k == 64: l += [NEED(("put", 23)), "s_barrier"]
        b = WF + 8*(k & 3)
        for T_ in range(2):
            for s in range(2):
                oo = o + 1024*s
                l.append(LG(f"ds_read_b64_tr_b16 {vr(b+4*T_+2*s,2)}, v{V_RW+2*(oo>>16)+T_} offset:{oo & 0xffff}", ("w", k)))
        return l
    LEAD = 2
    for k in range(LEAD): st(reads(k))
    for x in range(4):
        st(LG(f"ds_read_b64_tr_b16 {vr(24+4*x,2)}, v{V_YR} offset:{128*x}"), LG(f"ds_read_b64_tr_b16 {vr(26+4*x,2)}, v{V_YR} offset:{2048+128*x}", ("y", x)))
    st(VM(hpoll(1), "hp1"), pf("B", "g2start"))
    ysto = [[NEED(("y", x)), VM(f"buffer_store_dwordx4 {vr(24+4*x,4)}, v{V_L16}, {WS}, s{S_T0} offen offset:{1024*x} sc1", "ys")] for x in range(4)]
    ypub = [f"s_mul_i32 s{S_T0}, s{S_W}, {160 << FS}", f"s_lshl_b32 s{S_T1}, s{S_IDX}, {FS}", f"s_add_u32 s{S_T0}, s{S_T0}, s{S_T1}",
            f"s_add_u32 s{S_T0}, s{S_T0}, {FL_Y}", NEED("ys")] + flag_store(S_T0)
    ypoll = f"buffer_load_dword v{V_JUNK}, v{V_PY}, {WS}, 0 offen sc1"
    ein = [polls.check("yp", V_JUNK, V_TAG, ypoll, pf, "y") + pf("B", "yseen"), f"s_mov_b32 s{S_T1}, {G_OFF}",
           VM(f"buffer_load_dword v{V_GT}, v{V_T}, {WS}, s{S_T1} offen sc1", "g"),
           f"s_lshl_b32 s{S_T1}, s{S_D10}, 18", f"s_add_u32 s{S_T1}, s{S_T1}, {YA_OFF}"]
    for i in range(8):
        ein += [[VM(f"buffer_load_dwordx2 {vr(YA+2*i,2)}, v{V_YA}, {WS}, s{S_T1} offen sc1", "ya"), f"s_add_u32 s{S_T1}, s{S_T1}, 16384"]]
    pre = [NEED("ya"), f"v_sub_f32 v{V_OG}, 1.0, v{V_GT}"]
    for i in range(16):
        pre += [f"v_lshlrev_b32 v{GA+2*i}, 16, v{YA+i}", f"v_and_b32 v{GA+2*i+1}, 0xffff0000, v{YA+i}",
                f"v_mul_f32 v{GA+2*i}, v{GA+2*i}, v{V_GT}", f"v_mul_f32 v{GA+2*i+1}, v{GA+2*i+1}, v{V_GT}"]
    pre += srd(SRD_OUT, P_OUT, 2048*1280) + [f"v_xor_b32 v{2+i}, {16*i}, v{V_OW}" for i in range(1, 4)]
    HL, PL = cfg.hl, cfg.pl
    mf = []; mand = {}; post = {}
    for k in range(96):
        b = WF + 8*(k & 3)
        m_ = [f"v_mfma_f32_32x32x16_bf16 {vr(ACC2+16*T_,16)}, {vr(b+4*T_,4)}, {hreg(k)}, {vr(ACC2+16*T_,16)}" for T_ in range(2)]
        mf += [[NEED(("w", k), ("h", k)), m_[0]], m_[1]]
        if k + LEAD < 96: mand[2*k] = reads(k+LEAD)
        if k % 12 == 0: post[2*k] = pf("B", f"k{k}")
    sh = []
    for k in range(24, 96):
        g = 2*(k - HL) + 1
        if k % 24 == 0: sh.append((polls.check("hp%d" % (k//24), V_POLL, V_TAG, hpoll(k//24), pf, f"h{k//24}") + pf("B", f"h{k//24}seen"), g-1, g-1))
        l = hload(k); sh += [(x, g-1, g) for x in l[:-1]] + [(l[-1], g, g)]
    sp = [(VM(hpoll(sg), "hp%d" % sg), 2*(24*sg-HL-PL), 2*(24*sg-HL-PL)+1) for sg in (2, 3)]
    sy = paced(ysto, 1, 9, 1) + [(x, 40, 46) for x in ypub] + [(VM(ypoll, "yp"), 88, 90)] + paced(ein, 108, 136, 2) + [(x, 150, 191) for x in pre]
    sw = paced([x for u in range(10, 16) for x in w2put(u)], 9, 60, 4) + paced([x for u in range(16, 24) for x in w2put(u)], 78, 118, 3)
    if 'noput' in cfg.exp: sw = [(lambda s_: s_.tok.update({("put", 15): ("lg", 0), ("put", 23): ("lg", 0)}), 0, 0)]
    if 'noh' in cfg.exp:
        sh = [x for x in sh if isinstance(x[0], list)]
        for k in range(24, 96): st.tok[("h", k)] = ("vm", 0)
    if 'nopoll' in cfg.exp:
        sh = [x for x in sh if not isinstance(x[0], list)]; sp = []
        polls.tail = polls.tail[:-30]
    sched(st, mf, 24, mand, [sh, sp, sy, sw], post)
    st(pf("B", "g2"))
    st(f"s_mov_b32 s{S_T1}, {8*1280}", f"s_mov_b32 s{S_T2}, {16*1280}", f"s_mov_b32 s{S_T3}, {24*1280}", "s_nop 7")
    for i in range(4):
        for e in range(0, 8, 2): st(f"v_pk_fma_f32 {vr(GA+8*i+e,2)}, {vr(ACC2+8*i+e,2)}, {vr(V_GT,2)}, {vr(GA+8*i+e,2)} op_sel:[0,1,0]")
        for e in range(4): st(f"v_cvt_pk_bf16_f32 v{WF+4*i+e}, v{GA+8*i+2*e}, v{GA+8*i+2*e+1}")
        st(LG(f"ds_write_b128 v{2+i if i else V_OW}, {vr(WF+4*i,4)}"))
    for i in range(4): st(LG(f"ds_read_b128 {vr(WF+16+4*i,4)}, v{V_OR} offset:{1024*i}", ("o", i)))
    for i in range(4):
        st(NEED(("o", i)), VM(f"buffer_store_dwordx4 {vr(WF+16+4*i,4)}, v{V_OUT}, s[{SRD_OUT}:{SRD_OUT+3}], {f's{S_T0+i}' if i else 0} offen"))

A_WR   = 65536
A_MISC = 131072
def role_a(a, cfg, pf, polls):
    def wslot(u): return (u & 7)*8192 + (0 if (cfg.deep and u >= 16 and not u & 8) else A_WR)
    S_RBK, S_C6, S_XO, S_WO, S_HO, S_LW, S_LX, S_TB, S_ES, S_FL = 60, 61, 62, 63, 43, 3, 64, 65, 57, 58
    S_CX, S_CW, S_KR = 4, 14, 69
    VX, VW, VRW, VRX, V_ST = 4, 8, 10, 12, 16
    V_GR, VRW0, V_TAG, V_Z = 17, 18, 20, 21
    WF, PK, GF, GACC, ACC = 32, 64, 80, 96, 128
    st = Stream(a)
    st(f"""
    s_and_b32 s{S_RBK}, s{S_XCD}, 6
    s_lshl_b32 s{S_RBK}, s{S_RBK}, 1
    s_and_b32 s{S_KR}, s{S_SLOT}, 3
    s_add_u32 s{S_RBK}, s{S_RBK}, s{S_KR}
    s_mul_i32 s{S_KR}, s{S_KR}, {5 if cfg.krot else 0}
    s_add_u32 s{S_KR}, s{S_KR}, 1
    s_lshr_b32 s{S_KR}, s{S_KR}, 1
    s_and_b32 s{S_C6}, s{S_XCD}, 1
    s_mul_i32 s{S_C6}, s{S_C6}, 3
    s_lshr_b32 s{S_T0}, s{S_SLOT}, 2
    s_add_u32 s{S_C6}, s{S_C6}, s{S_T0}
    s_lshl_b32 s{S_TB}, s{S_RBK}, 2
    s_add_u32 s{S_TB}, s{S_TB}, s{S_W}
    s_mul_i32 s{S_XO}, s{S_TB}, {32*1280}
    s_mul_i32 s{S_HO}, s{S_TB}, {96*1024}
    s_lshl_b32 s{S_T0}, s{S_C6}, 12
    s_add_u32 s{S_HO}, s{S_HO}, s{S_T0}
    s_mul_i32 s{S_WO}, s{S_W}, {16*3072}
    s_lshl_b32 s{S_T0}, s{S_C6}, 9
    s_add_u32 s{S_WO}, s{S_WO}, s{S_T0}
    s_lshl_b32 s{S_LW}, s{S_W}, 11
    s_lshl_b32 s{S_LX}, s{S_W}, 12
    v_lshrrev_b32 v2, 3, v1
    v_and_b32 v3, 7, v1
    v_lshrrev_b32 v24, 1, v2
    v_xor_b32 v25, v3, v24
    v_lshlrev_b32 v25, 4, v25
    v_mov_b32 v26, 1280
    v_mad_u32_u24 v{VX}, v2, v26, v25
    v_xor_b32 v{VX+1}, 64, v{VX}
    v_add_u32 v{VX+1}, {8*1280-1024}, v{VX+1}
    v_add_u32 v{VX+2}, {16*1280-2048}, v{VX}
    v_add_u32 v{VX+3}, {16*1280-2048}, v{VX+1}
    v_and_b32 v24, 1, v24
    v_lshlrev_b32 v24, 2, v24
    v_xor_b32 v25, v3, v24
    v_lshlrev_b32 v25, 4, v25
    v_mov_b32 v26, 3072
    v_mad_u32_u24 v{VW}, v2, v26, v25
    v_add_u32 v{VW+1}, {8*3072-1024}, v{VW}
    v_lshl_add_u32 v27, v1, 3, s{S_T0}
    v_lshlrev_b32 v{V_ST}, 4, v1
    v_mov_b32 v{V_Z}, 0
    v_mov_b32 v22, {EP_OFF}
    s_lshl_b32 s{S_T1}, s{S_KR}, 3
    v_add_u32 v24, s{S_T1}, v0
    v_subrev_u32 v25, 80, v24
    v_min_u32 v24, v24, v25
    v_lshlrev_b32 v24, 4, v24
    s_mov_b32 s{SRD_U+2}, {2048*1280}
    s_mov_b32 s{SRD_U+3}, 0x20000
    s_mov_b32 s{SRD_W+2}, {640*3072}
    s_mov_b32 s{SRD_W+3}, 0x20000
    s_mov_b32 s{SRD_OUT+2}, 1280
    s_mov_b32 s{SRD_OUT+3}, 0x20000
    s_lshr_b32 s{S_T1}, s{S_LW}, 1
    s_add_u32 m0, s{S_T1}, {A_MISC+4096}
    s_waitcnt lgkmcnt(0)
    """)
    st(pf("A", "karg"))
    st(srd(SRD_U, P_U, 0)[:2], srd(SRD_W, P_W1, 0)[:2], srd(SRD_OUT, P_GATE, 0)[:2])
    def ctab(j):
        l = [f"s_lshl_b32 s{S_T0}, s{S_KR}, 7", f"s_add_u32 s{S_CX+j}, s{S_T0}, s{S_XO}",
             f"s_mul_i32 s{S_T0}, s{S_KR}, {64*3072}", f"s_add_u32 s{S_CW+j}, s{S_T0}, s{S_WO}"]
        if j < 9: l += [f"s_add_u32 s{S_KR}, s{S_KR}, 1", f"s_cmp_eq_u32 s{S_KR}, 10\ns_cselect_b32 s{S_KR}, 0, s{S_KR}"]
        return l
    def xdma(c):
        v = [VM(f"buffer_load_dwordx4 v{VX+i}, s[{SRD_U}:{SRD_U+3}], s{S_CX+c} offen offset:{1024*i} {cfg.ntx} lds") for i in range(4)]
        return [f"s_add_u32 m0, s{S_LX}, {(c & 3)*16384}", [M0GAP, v[0]]] + v[1:]
    def wdma(u):
        sg, c = divmod(u, 10)
        v = [VM(f"buffer_load_dwordx4 v{VW+i}, s[{SRD_W}:{SRD_W+3}], s{S_CW+c} offen offset:{1024*i} lds", ("w", u)) for i in range(2)]
        adv = [f"v_add_u32 v{VW+i}, 0x80, v{VW+i}" for i in range(2)] if (c == 0 and sg) else []
        return [f"s_add_u32 m0, s{S_LW}, {wslot(u)}"] + adv + [[M0GAP, v[0]], v[1]]
    st(VM(f"global_load_dwordx2 v[28:29], v27, s[{P_B1}:{P_B1+1}]", "b1"),
       VM(f"buffer_load_dwordx4 v24, s[{SRD_OUT}:{SRD_OUT+3}], 0 offen lds"))
    st(ctab(0), xdma(0), wdma(0), ctab(1), xdma(1), wdma(1))
    st(VM(f"global_load_dword v{V_TAG}, v22, s[{P_WS}:{P_WS+1}] sc1", "tag"))
    st(srd(SRD_WS, P_WS, WS_SIZE))
    st(f"""
    v_bfe_u32 v2, v1, 2, 2
    v_lshrrev_b32 v3, 5, v1
    v_lshl_add_u32 v24, v3, 3, v2
    v_lshlrev_b32 v24, 7, v24
    v_lshrrev_b32 v2, 1, v2
    v_lshl_add_u32 v24, v2, 6, v24
    v_bfe_u32 v2, v1, 4, 1
    v_lshl_add_u32 v24, v2, 5, v24
    v_and_b32 v2, 3, v1
    v_lshl_add_u32 v24, v2, 3, v24
    v_add_u32 v{VRW}, {A_WR}, v24
    v_xor_b32 v{VRW+1}, 64, v{VRW}
    v_mov_b32 v{VRW0}, v24
    v_xor_b32 v{VRW0+1}, 64, v24
    v_and_b32 v2, 31, v1
    v_bfe_u32 v24, v1, 1, 3
    v_xor_b32 v24, v24, v3
    v_lshlrev_b32 v24, 4, v24
    v_lshl_add_u32 v24, v2, 7, v24
    v_add_u32 v{VRX}, s{S_LX}, v24
    v_lshlrev_b32 v{V_GR}, 4, v3
    v_add_u32 v{V_GR}, {A_MISC+4096}, v{V_GR}
    s_add_u32 s{S_T2}, s{S_T1}, {A_MISC}
    v_add_u32 v23, s{S_T2}, v{V_ST}
    v_lshl_add_u32 v30, v3, 4, s{S_T2}
    s_lshl_b32 s{S_FL}, s{S_TB}, {5+FS}
    s_lshl_b32 s{S_T1}, s{S_C6}, {FS}
    s_add_u32 s{S_FL}, s{S_FL}, s{S_T1}
    s_add_u32 s{S_FL}, s{S_FL}, {FL_H}
    """)
    for q in range(1, 4): st(f"v_xor_b32 v{VRX+q}, {32*q}, v{VRX}")
    for j in range(2, 10): st(ctab(j))
    st(pf("A", "issued"))
    st(NEED("b1"), "v_lshlrev_b32 v24, 16, v28", "v_and_b32 v25, 0xffff0000, v28", "v_lshlrev_b32 v26, 16, v29", "v_and_b32 v27, 0xffff0000, v29",
       LG("ds_write_b128 v23, v[24:27]"))
    bias = [LG(f"ds_read_b128 {vr(ACC+4*i,4)}, v30 offset:{32*i}") for i in range(32)]
    st(bias[:8])
    def barrier_at(u): return u < 10 or u % 2 == 0
    def reads(i):
        u, q = i >> 2, i & 3
        l = []
        if q == 0 and barrier_at(u):
            l += [[NEED(("w", u if u < 10 else u+1)), "s_barrier"]]
        if u < 10:
            l.append(LG(f"ds_read_b128 {ar(4*i,4)}, v{VRX+q} offset:{(u & 3)*16384}"))
            l.append(LG(f"ds_read_b128 {vr(GF+4*(i&3),4)}, v{V_GR} offset:{32*i}"))
        b = WF + 8*(i & 3)
        for T_ in range(2):
            for s in range(2):
                l.append(LG(f"ds_read_b64_tr_b16 {vr(b+4*T_+2*s,2)}, v{(VRW if wslot(u) >= A_WR else VRW0)+T_} offset:{(u & 7)*8192+(16*q+4*s)*128}", ("r", i)))
        return l
    def epi(sg):
        l = [f"s_add_u32 s{S_ES}, s{S_HO}, {H_OFF + sg*24*1024}"]
        for k in range(4):
            r = ACC + 32*sg + 8*k; p = PK + 4*k
            l += [f"v_mul_f32_e64 v{r+e}, v{r+e}, |v{r+e}|" for e in range(8)]
            l += [f"v_cvt_pk_bf16_f32 v{p+e}, v{r+2*e}, v{r+2*e+1}" for e in range(4)]
            l += [f"v_pk_max_i16 v{p+e}, v{p+e}, 0" for e in range(4)]
            l += [VM(f"buffer_store_dwordx4 {vr(p,4)}, v{V_ST}, {WS}, s{S_ES} offen offset:{1024*k} sc1", ("h", sg))]
        return l
    def pub(sg): return [NEED(("h", sg)), VM(f"buffer_store_dword v{V_TAG}, v{V_Z}, {WS}, s{S_FL} offen offset:{(8*sg) << FS} sc1")] + pf("A", f"pub{sg}")
    gate = [f"s_lshl_b32 s{S_T1}, s{S_TB}, 7", f"s_add_u32 s{S_T1}, s{S_T1}, {G_OFF}",
            f"s_cmp_eq_u32 s{S_C6}, 0\ns_cselect_b32 s{S_T1}, s{S_T1}, {hx(WS_SIZE)}",
            f"v_mul_f32 v24, {hx(f2u(-1.4426950408889634))}, v{GACC}", "v_exp_f32 v24, v24", f"v_lshl_add_u32 v25, v2, 2, s{S_T1}",
            "v_add_f32 v24, 1.0, v24", "v_rcp_f32 v24, v24\ns_nop 0",
            VM(f"buffer_store_dword v24, v25, {WS}, 0 offen sc1")]
    LEAD = 2
    NE, PD = cfg.ne, cfg.pd
    mf = []; mand = {}; post = {}; g0 = []
    for i in range(160):
        sg, kk = divmod(i, 40)
        b = WF + 8*(i & 3)
        m_ = [f"v_mfma_f32_32x32x16_bf16 {vr(ACC+32*sg+16*T_,16)}, {vr(b+4*T_,4)}, {ar(4*kk,4)}, {vr(ACC+32*sg+16*T_,16)}" for T_ in range(2)]
        if sg == 0: m_.append(f"v_mfma_f32_32x32x16_bf16 {vr(GACC,16)}, {vr(GF+4*(i&3),4)}, {ar(4*kk,4)}, {vr(GACC,16) if i else 0}")
        m_[0] = [NEED(("r", i)), m_[0]]
        g0.append(len(mf))
        if i + LEAD < 160:
            rd = reads(i+LEAD)
            if len(rd) > 4: mand[len(mf)] = rd[:-4]; mand[len(mf)+1] = rd[-4:]
            else: mand[len(mf)] = rd
        if i == 0: post[0] = pf("A", "first")
        if i == 20: post[len(mf)] = pf("A", "half0")
        if kk == 39: post[len(mf)+len(m_)-1] = pf("A", f"q{sg}")
        mf += m_
    g0.append(len(mf))
    sd = []; nextw = 2
    for u in range(0, 40):
        if not barrier_at(u): continue
        gb = g0[max(4*u - LEAD, 0)]
        ge = g0[min(4*(u + (1 if u < 10 else 2)) - LEAD, 160)] - 1
        l = []
        XL = cfg.xlead
        if u == 0 and XL == 3: l += xdma(2) + wdma(2); nextw = 3
        if u + XL < 10:
            l += xdma(u+XL)
            if XL == 3 and u: gb = g0[4*u - 1]
        lim = u + XL if u + XL < 10 else min(u + 5, nextw + 2)
        if cfg.deep and u >= 10: lim = min(15 if u == 10 else u + cfg.wlead, nextw + 2)
        while nextw <= min(lim, 39): l += wdma(nextw); nextw += 1
        sd += [(x, gb, ge) for x in l]
    assert nextw == 40
    se = [(x, g0[4], g0[36]) for x in bias[8:]] + [([NEED("tag"), f"v_add_u32 v{V_TAG}, {hx(TAG_STEP)}, v{V_TAG}"], g0[8], g0[38])]
    spub = []
    for sg in range(3):
        l = (gate if sg == 1 else []) + epi(sg)
        ga = g0[40*(sg+1) + 1]
        se += [(x, ga, ga + 2 + 2*(j//NE)) for j, x in enumerate(l)]
        gp = min(ga + 2*(len(l)//NE + PD), len(mf)-1)
        spub.append((pub(sg), gp, gp+1 if gp+1 < len(mf) else gp))
    for i in range(LEAD): st(reads(i))
    sched(st, mf, 24, mand, [spub, sd, se], post)
    st("s_nop 9", epi(3), pub(3))
    a(f"s_or_b32 s{S_T0}, s2, s{S_W}", f"s_cmp_lg_u32 s{S_T0}, 0", "s_cbranch_scc1 L_a_done",
      f"v_lshlrev_b32 v2, {FS}, v1", f"v_add_u32 v2, {FL_Y}, v2",
      "v_and_b32 v3, 15, v1", f"v_lshlrev_b32 v3, {7+FS}, v3", "v_lshrrev_b32 v4, 4, v1", f"v_lshl_add_u32 v3, v4, {FS}, v3", f"v_add_u32 v3, {FL_H}, v3",
      f"s_mov_b32 s{S_T0}, {64 << FS}", f"s_mov_b32 s{S_T1}, {96 << FS}",
      "L_ep:", "s_sleep 8", "s_add_u32 s100, s100, 1", f"s_cmp_gt_u32 s100, {cfg.spin_limit}", "s_cbranch_scc1 L_exit",
      f"buffer_load_dword v32, v2, {WS}, 0 offen sc1", f"buffer_load_dword v33, v2, {WS}, s{S_T0} offen sc1", f"buffer_load_dword v34, v2, {WS}, s{S_T1} offen sc1",
      f"buffer_load_dword v35, v3, {WS}, 0 offen sc1", f"buffer_load_dword v36, v3, {WS}, 0 offen offset:{2 << FS} sc1",
      "s_waitcnt vmcnt(0)", "v_mov_b32 v4, 0")
    for i in range(5): a(f"v_xor_b32 v{32+i}, v{32+i}, v{V_TAG}", f"v_or_b32 v4, v4, v{32+i}")
    a("v_cmp_ne_u32 vcc, 0, v4", "s_cbranch_vccnz L_ep",
      f"global_store_dword v22, v{V_TAG}, s[{P_WS}:{P_WS+1}] sc1", "L_a_done:")

def kdesc(name):
    return f""".section .rodata,"a"
.p2align 6
.amdhsa_kernel {name}
  .amdhsa_next_free_vgpr 512
  .amdhsa_next_free_sgpr 102
  .amdhsa_accum_offset 256
  .amdhsa_group_segment_fixed_size 0
  .amdhsa_kernarg_size 144
  .amdhsa_user_sgpr_count 2
  .amdhsa_user_sgpr_kernarg_segment_ptr 1
  .amdhsa_system_sgpr_workgroup_id_x 1
.end_amdhsa_kernel
.text
"""
def khead(name):
    return f""".globl {name}
.p2align 8
.type {name},@function
{name}:
"""

def build_fused(cfg):
    pf = Prof(cfg); a = Asm(); s0 = Stream(a)
    a(f"""
    s_cmp_ge_u32 s2, 256
    s_cbranch_scc1 L_exit
    s_load_dwordx16 s[4:19], s[0:1], 0
    s_load_dwordx16 s[20:35], s[0:1], 64
    s_load_dwordx4 s[36:39], s[0:1], 128
    v_lshrrev_b32 v2, 6, v0
    v_and_b32 v1, 63, v0
    s_and_b32 s{S_XCD}, s2, 7
    v_readfirstlane_b32 s{S_W}, v2
    s_lshr_b32 s{S_SLOT}, s2, 3
    s_mov_b32 s100, 0
    """)
    if cfg.codepf:
        a(f"""
        s_getpc_b64 s[66:67]
        s_lshl_b32 s68, s{S_SLOT}, 2
        s_add_u32 s68, s68, s{S_W}
        s_mul_i32 s68, s68, 384
        v_min_u32 v2, 2, v1
        v_lshl_add_u32 v2, v2, 7, s68
        v_min_u32 v2, L_code_end-{NAME}_kernel-128, v2
        global_load_dword a255, v2, s[66:67]
        """)
    a(f"s_cmp_lt_u32 s{S_SLOT}, 12", "s_cbranch_scc1 L_roleA")
    pb = Polls(cfg)
    s0(pf("B", "start_real", real=True), pf("B", "start"))
    role_b(a, cfg, pf, pb)
    if cfg.prof: a("s_waitcnt vmcnt(0)")
    s0(pf("B", "end"), pf("B", "end_real", real=True))
    pf.flush(a, "B")
    a("L_exit:", "s_endpgm")
    a(*pb.tail); pb.tail = []
    a("L_roleA:")
    s0(pf("A", "start_real", real=True), pf("A", "start"))
    role_a(a, cfg, pf, pb)
    if cfg.prof: a("s_waitcnt vmcnt(0)")
    s0(pf("A", "end"), pf("A", "end_real", real=True))
    pf.flush(a, "A")
    a("s_endpgm")
    a(*pb.tail)
    a("L_code_end:", "s_endpgm")
    txt = "; @launch grid=(256,1,1) block=(256,1,1) lds=163840\n"
    txt += '.amdgcn_target "amdgcn-amd-amdhsa--gfx950"\n.text\n'
    txt += khead(NAME + "_kernel") + a.text() + kdesc(NAME + "_kernel")
    return txt, pf

if __name__ == "__main__":
    cfg = Cfg()
    for kv in sys.argv[2:]:
        k, v = kv.split("="); setattr(cfg, k, eval(v))
    open(sys.argv[1], "w").write(build_fused(cfg)[0])
```

```python
import sys, struct

NAME = "gated_mix__ssm_conv_s4__dense_activation_squared_relu__prompt"

def f2u(x): return struct.unpack("<I", struct.pack("<f", x))[0]
def hx(x): return "0x%08x" % (x & 0xffffffff)

class Asm:
    def __init__(self):
        self.l = []
    def __call__(self, *lines):
        for s in lines:
            for t in s.split("\n"):
                t = t.strip()
                if t:
                    self.l.append(t if t.endswith(":") else "    " + t)
    def text(self): return "\n".join(self.l) + "\n"

def vr(a, n=1, p="v"): return f"{p}{a}" if n == 1 else f"{p}[{a}:{a+n-1}]"
def ar(a, n=1): return vr(a, n, "a")
def sr(a, n=1): return vr(a, n, "s")

def weave(main, fill, start=0, end=None):
    end = len(main) if end is None else end
    out = []; n = end - start; k = 0
    for i, m in enumerate(main):
        out.append(m)
        if start <= i < end:
            tgt = (len(fill)*(i-start+1) + n - 1)//n
            while k < tgt:
                out.append(fill[k]); k += 1
    assert k == len(fill)
    return out
def insert(main, pos_items):
    out = []
    for i, m in enumerate(main):
        out += pos_items.get(i, [])
        out.append(m)
    assert all(k < len(main) for k in pos_items)
    return out

class Stream:
    def __init__(self, a):
        self.a = a; self.n = {"vm": 0, "lg": 0}; self.done = {"vm": 0, "lg": 0}; self.tok = {}
    def __call__(self, *l): self.run(l)
    def op(self, kind, ins, tag=None):
        self.a(ins); self.n[kind] += 1
        if tag is not None: self.tok[tag] = (kind, self.n[kind])
    def need(self, *tags):
        w = {}
        for t in tags:
            k, i = self.tok[t]
            if i > self.done[k]: w[k] = max(w.get(k, 0), i)
        parts = []
        for k, i in w.items():
            left = min(self.n[k] - i, 63 if k == "vm" else 15)
            self.done[k] = self.n[k] - left
            parts.append(f"{'vmcnt' if k == 'vm' else 'lgkmcnt'}({left})")
        if parts: self.a("s_waitcnt " + " ".join(parts))
    def drain(self, kind):
        if self.done[kind] < self.n[kind]:
            self.a(f"s_waitcnt {'vmcnt' if kind == 'vm' else 'lgkmcnt'}(0)"); self.done[kind] = self.n[kind]
    def run(self, items):
        for it in items:
            if callable(it): it(self)
            elif isinstance(it, (list, tuple)): self.run(it)
            else:
                for t in it.split("\n"):
                    t = t.strip()
                    assert not t.startswith(("ds_", "buffer_", "global_")), t
                self.a(it)
def _c(f, c): f.cost = c; return f
def VM(ins, tag=None): return _c(lambda s: s.op("vm", ins, tag), 16 if "store_dwordx4" in ins else 14)
def LG(ins, tag=None): return _c(lambda s: s.op("lg", ins, tag), 16 if "write_b128" in ins else 8 if "write" in ins else 4.5)
def NEED(*t): return _c(lambda s: s.need(*t), 4)
def DRAIN(k): return _c(lambda s: s.drain(k), 4)
def M0GAP(s):
    if "m0," in s.a.l[-1]: s.a("s_nop 0")
def cost(it):
    if callable(it): return getattr(it, "cost", 0)
    if isinstance(it, (list, tuple)): return sum(cost(x) for x in it)
    c = 0
    for t in it.split("\n"):
        t = t.strip()
        if not t or t.endswith(":"): continue
        op = t.split()[0]
        if op == "s_barrier": c += 8
        elif op.startswith("s_"): c += 4
        elif op.startswith(("v_exp", "v_rcp", "v_sin", "v_cos")): c += 8
        elif op in ("v_mul_f32", "v_add_u32", "v_mov_b32", "v_lshlrev_b32", "v_lshrrev_b32", "v_xor_b32", "v_and_b32", "v_sub_u32", "v_add_f32", "v_sub_f32") and "0x" not in t: c += 4
        else: c += 5
    return c
def sched(st, mf, cap, mand, streams, post=None):
    streams = [list(x) for x in streams]
    for g in range(len(mf)):
        st(mf[g])
        used = cost(mand.get(g, []))
        if g + 1 < len(mf) and isinstance(mf[g+1], list): used += cost(mf[g+1][:-1])
        st(mand.get(g, []))
        while True:
            pick = None
            for q in streams:
                if q and q[0][1] <= g and min(x[2] for x in q) <= g: pick = q; break
            if pick is None:
                for q in streams:
                    if q and q[0][1] <= g and (used == 0 or used + cost(q[0][0]) <= cap): pick = q; break
            if pick is None: break
            x = pick.pop(0); it = x[0]; used += cost(it); st(it)
            if len(x) > 3:
                gp = min(g + x[3][2], len(mf) - 2); streams[x[3][0]].append((x[3][1], gp, gp + 1))
        if post and g in post: st(post[g])
    assert not any(streams), [len(q) for q in streams]
def paced(items, g0, g1, slack):
    n = len(items)
    return [(it, g0 + j*(g1-g0)//n, g0 + j*(g1-g0)//n + slack) for j, it in enumerate(items)]

H_OFF    = 0
YA_OFF   = 6 << 20
G_OFF    = 11 << 20
FL_OFF   = (12 << 20) + 65536
FL_H     = FL_OFF
FL_Y     = FL_H + 32768
OOB      = 0x7ffff000
EP_OFF   = FL_OFF - 4096
TAG_STEP = 0x9e3779b1
PROF_OFF = 13 << 20
DBG_OFF  = 14 << 20
WS_SIZE  = 268435456

P_U, P_ARE, P_AIM, P_BRE, P_BIM, P_CRE, P_CIM, P_LDT = 4, 6, 8, 10, 12, 14, 16, 18
P_DSK, P_BX, P_W1, P_B1, P_W2, P_B2, P_GATE, P_OUT = 20, 22, 24, 26, 28, 30, 32, 34
P_DBG, P_WS = 36, 38
S_W, S_XCD, S_SLOT, S_IDX = 40, 41, 42, 43
SRD_U, SRD_W, SRD_WS, SRD_OUT = 44, 48, 52, 56
S_T0, S_T1, S_T2, S_T3 = 66, 67, 68, 69
S_PROF = 70
WS = f"s[{SRD_WS}:{SRD_WS+3}]"

class Cfg:
    prof = False
    fused = True
    allreal = False
    xtouch = False
    krot = True
    hrot = True
    h0_it = 6
    codepf = True
    fine = False
    show = 'setup0 kgen2 ugot3 ubar h0pre h0seen conv h1seen h3seen g2'
    spin_limit = 200000
    sleep = 2
    g_pos = ((0,4),(0,10),(1,12),(2,2)); tr1 = 3; w0touch = False
    ntx = ''
    nt = ''
    wb = 4
    wk = (); w_its = 6
    ct = ((2, 10), (2, 10))
    gswap = True; wrot = True; deep = True
    exp = ''
    showa = 'u0 u2 u5 q0 pub0 q1 pub1 q2 pub2 q3 pub3'
    gate_all = True
    w1t = None
    wt_pos = ()
    w_early = 0
    hs = (8, 34, 60); pl = 10; ys = 52; yn = 12; yp = 23
    ne = 8; pd = 11; cap = 24; pre_chunks = 2; dma_gap = 1; crot = True; s0 = 1; head1 = 3; wlead = 4; gate_at = 0; alead = 3; epi_first = True; align = True; layout = False

def srd(d, p, size):
    return [f"s_mov_b32 s{d}, s{p}", f"s_mov_b32 s{d+1}, s{p+1}", f"s_mov_b32 s{d+2}, {hx(size)}", f"s_mov_b32 s{d+3}, 0x20000"]

class Prof:
    def __init__(self, cfg): self.cfg = cfg; self.names = {}
    def __call__(self, role, name, real=False):
        if not self.cfg.prof or not (name in (self.cfg.showa if role == "A" else self.cfg.show).split() or name in ("start", "end", "start_real", "end_real")): return []
        def f(s):
            l = self.names.setdefault(role, [])
            i = len(l); assert i < 15; l.append(name)
            s.a(f"{'s_memrealtime' if (real or self.cfg.allreal) else 's_memtime'} s[{S_PROF+2*i}:{S_PROF+2*i+1}]")
        return [f]
    def flush(self, a, role):
        if not self.cfg.prof: return
        n = len(self.names[role])
        a("s_waitcnt lgkmcnt(0)",
          f"s_lshl_b32 s60, s2, 2", f"s_add_u32 s60, s60, s{S_W}", "s_lshl_b32 s60, s60, 6",
          f"s_add_u32 s60, s60, {PROF_OFF}", "v_mov_b32 v2, s60")
        for i in range(n):
            a(f"v_mov_b32 v3, s{S_PROF+2*i}", f"global_store_dword v2, v3, s[{P_WS}:{P_WS+1}] offset:{4*i}")
        a("s_waitcnt vmcnt(0)")

class Polls:
    def __init__(self, cfg): self.tail = []; self.n = 0; self.cfg = cfg
    def issue(self, tag, vreg, vaddr, off): return [f"v_mov_b32 v{vreg}, 0", VM(self.op(vreg, vaddr, off), tag)]
    def op(self, vreg, vaddr, off): return f"buffer_atomic_or v{vreg}, v{vaddr}, {WS}, 0 offen offset:{off} sc0 sc1"
    def check(self, tag, vreg, vtag, vaddr, off, mask, pf=None, nm=None):
        i = self.n; self.n += 1
        test = f"v_cmp_ne_u32 vcc, v{vtag}, v{vreg}\ns_and_b32 vcc_lo, vcc_lo, {mask}\ns_cbranch_scc1 L_spin{i}"
        self.tail += [f"L_spin{i}:", f"s_sleep {self.cfg.sleep}", "s_add_u32 s100, s100, 1", f"s_cmp_gt_u32 s100, {self.cfg.spin_limit}", "s_cbranch_scc1 L_exit",
                      f"v_mov_b32 v{vreg}, 0", self.op(vreg, vaddr, off), "s_waitcnt vmcnt(0)", test, f"s_branch L_back{i}"]
        return (pf("B", nm+"pre") if pf else []) + [NEED(tag)] + (pf("B", nm+"got") if pf else []) + [test + f"\nL_back{i}:"]

def one_lane(v): return [f"v_min_u32 v{v}, 1, v1", f"v_sub_u32 v{v}, 0, v{v}", f"v_and_b32 v{v}, {hx(OOB)}, v{v}"]
def flag_set(vtag, v1l, soff, off=0): return VM(f"buffer_atomic_swap v{vtag}, v{v1l}, {WS}, s{soff} offen offset:{off} sc1")

RSTRIDE = 14656
TROW    = 272
KB_OFF  = 4160
U_LDS   = 4*RSTRIDE
W2_LDS  = U_LDS + 18432
def w2slot(u):
    if u < 10: return W2_LDS + 8192*u
    if u < 12: return U_LDS + 8192*(u-10)
    if u < 16: return RSTRIDE*(u-12) + 4096
    return W2_LDS + 8192*(u-16)

HI_VALS = [0,1,2,3,4,5,6,7, 256,258,260,262, 512,516,768,772, 1024,1280,1536,1792,2048]
def hi_row(v): return 32 + HI_VALS.index(v)
ROWMAP_REG = [
    [0,1,2,3,4,5,6,7, 512,516,1024,1536, 2048,2048,2048,2048],
    [256,256,258,260,260,260,262,262, 768,772,1280,1792, 1792,1792,1792,1792]]
def rowmap(m):
    i, half, j = m >> 3, (m >> 2) & 1, m & 3
    return hi_row(ROWMAP_REG[half][4*i+j]) - 32

def cmul(d, x, z, t, conj=False, scalar=False):
    if scalar:
        n1, n2 = ("", "-") if conj else ("-", "")
        return [f"v_mul_f32 v{t}, v{x}, v{z}", f"v_mul_f32 v{t+1}, v{x}, v{z+1}",
                f"v_fma_f32 v{d}, {n1}v{x+1}, v{z+1}, v{t}", f"v_fma_f32 v{d+1}, v{x+1}, v{z}, {n2}v{t+1}"]
    neg = "neg_hi:[1,0,0]" if conj else "neg_lo:[1,0,0]"
    return [f"v_pk_mul_f32 {vr(t,2)}, {vr(x,2)}, {vr(z,2)} op_sel_hi:[1,0]",
            f"v_pk_fma_f32 {vr(d,2)}, {vr(x,2)}, {vr(z,2)}, {vr(t,2)} op_sel:[1,1,0] op_sel_hi:[0,1,1] {neg}"]

def role_b(a, cfg, pf, polls):
    st = Stream(a)
    S_CH, S_RB, S_M1, S_M2 = 60, 61, 62, 64
    S_RBK, S_D10, S_TB, S_LW, S_WO, S_HO, S_H2, S_UQ = 56, 57, 3, 26, 27, 32, 33, 59
    S_CHO, S_CWO = 4, 10
    S_DM = 16
    VP = 10; V_LDT, V_DSK, V_DT, V_DTL, V_DTP = 28, 29, 30, 31, 32
    VRAW = 34
    Z1, Z8, Z256, X, T, SV, CV = 40, 42, 44, 46, 48, 50, 58
    D = 64
    Q = 80
    V_AA, V_BA, V_F, V_G = 112, 113, 114, 118
    V_GD, V_TR, V_TS = 125, 127, 128
    S_GB, S_GO = 22, (58, 0, 1, 101)
    V_L16, V_Z, V_PU, V_PH, V_PY, V_POLL, V_TAG = 131, 132, 133, 134, 135, 136, 137
    V_YW, V_YR, V_W2, V_RW, V_T, V_YA, V_OUT, V_KW, V_KP = 138, 139, 140, 142, 148, 149, 150, 151, 152
    V_WT, V_WW, V_JUNK, V_GT, V_OG, V_OW, V_OR = 153, 122, 155, 156, 157, 158, 159
    ACC2, ACC = 160, 224
    WF, YA, GA, B2R = 224, 44, 8, 44
    FA, FB = 128, 160
    F0, G0, F1, G1 = 128, 160, 192, 224
    def rawreg(u, i):
        j = 2*(12, 13, 18, 19, 14, 20, 15, 21, 10, 11, 16, 17, 22, 23).index(u) + i
        return ar(96+4*j, 4) if j < 8 else vr(192+4*(j-8), 4) if j < 16 else vr(64+4*(j-16), 4)
    def gather(j, restore=True):
        return [f"s_add_u32 m0, s{S_UQ}, {2048*j}\ns_nop 0"] + \
               [VM(f"buffer_load_dwordx4 v{V_GD+i}, s[{SRD_U}:{SRD_U+3}], s{S_GO[j]} offen offset:{1024*i} lds", ("raw", j)) for i in range(2)] + \
               ([f"s_mov_b32 m0, s{S_RB}\ns_nop 0"] if restore else [])
    def gblock(j): return [f"s_add_u32 s{S_T1}, s{S_T3}, {4*j}", f"s_and_b32 s{S_T1}, s{S_T1}, 15", f"s_lshl_b32 s{S_GB+j}, s{S_T1}, 10", f"s_mul_i32 s{S_GO[j]}, s{S_T1}, {128*1280}"]
    st(f"""
    s_mul_i32 s{S_IDX}, s{S_XCD}, 20
    s_add_u32 s{S_IDX}, s{S_IDX}, s{S_SLOT}
    s_sub_u32 s{S_IDX}, s{S_IDX}, 12
    s_lshl_b32 s{S_CH}, s{S_IDX}, 2
    s_add_u32 s{S_CH}, s{S_CH}, s{S_W}
    s_mul_i32 s{S_T0}, s{S_CH}, 384
    v_lshl_add_u32 v2, v1, 2, s{S_T0}
    v_lshl_add_u32 v4, v1, 1, s{S_T0}
    s_lshl_b32 s{S_T0}, s{S_CH}, 1
    v_mov_b32 v3, s{S_T0}
    v_mov_b32 v{V_LDT}, 0
    s_lshl_b32 s{S_UQ}, s{S_W}, 13
    s_add_u32 s{S_UQ}, s{S_UQ}, {W2_LDS + 2*8192}
    s_lshr_b32 s{S_T0}, s{S_IDX}, 1
    s_and_b32 s{S_T3}, s{S_T0}, {2 if cfg.gswap else 0}
    s_xor_b32 s{S_T3}, s{S_T3}, s{S_CH}
    s_lshl_b32 s{S_T0}, s{S_T0}, 4
    v_mov_b32 v8, 1280
    v_mad_u32_u24 v{V_GD}, v1, v8, s{S_T0}
    v_add_u32 v{V_GD+1}, {64*1280-1024}, v{V_GD}
    s_mov_b32 s{SRD_U+2}, {2048*1280}
    s_mov_b32 s{SRD_U+3}, 0x20000
    s_and_b32 s{S_T1}, s{S_T3}, 15
    s_mul_i32 s{S_GO[0]}, s{S_T1}, {128*1280}
    s_waitcnt lgkmcnt(0)
    """)
    st(pf("B", "karg"))
    st(VM(f"global_load_short_d16_hi v{V_LDT}, v3, s[{P_LDT}:{P_LDT+1}]", "ldt"))
    PP = (P_ARE, P_AIM, P_BRE, P_BIM, P_CRE, P_CIM)
    for k, p in enumerate(PP): st(VM(f"global_load_dword v{VRAW+k}, v2, s[{p}:{p+1}] {cfg.nt}", "p01"))
    for i in list(range(VP+12, VP+18)) + [V_DSK]: st(f"v_mov_b32 v{i}, 0")
    st(f"v_mov_b32 v9, {EP_OFF}")
    st([VM(f"global_load_short_d16_hi v{VP+12+k}, v4, s[{p}:{p+1}] offset:256 {cfg.nt}", "p2") for k, p in enumerate(PP)],
       VM(f"global_load_short_d16_hi v{V_DSK}, v3, s[{P_DSK}:{P_DSK+1}]", "dsk"), VM(f"global_load_dword v{V_TAG}, v9, s[{P_WS}:{P_WS+1}] sc1", "tag"))
    st(srd(SRD_U, P_U, 0)[:2])
    st(f"""
    s_and_b32 s{S_RBK}, s{S_XCD}, 6
    s_lshl_b32 s{S_RBK}, s{S_RBK}, 1
    s_and_b32 s{S_T0}, s{S_SLOT}, 3
    s_add_u32 s{S_RBK}, s{S_RBK}, s{S_T0}
    s_lshl_b32 s{S_TB}, s{S_RBK}, 2
    s_add_u32 s{S_TB}, s{S_TB}, s{S_W}
    s_lshr_b32 s{S_D10}, s{S_SLOT}, 2
    s_sub_u32 s{S_D10}, s{S_D10}, 3
    v_and_b32 v5, 31, v1
    """)
    V_W1T = 33
    if cfg.xtouch: st(f"""
    s_mul_i32 s{S_T2}, s{S_TB}, {32*1280}
    s_lshl_b32 s{S_T0}, s{S_D10}, 8
    s_add_u32 s{S_T0}, s{S_T0}, s{S_T2}
    v_lshrrev_b32 v6, 1, v1
    v_mul_u32_u24 v6, 1280, v6
    v_and_b32 v7, 1, v1
    v_lshl_add_u32 v6, v7, 7, v6
    """, VM(f"buffer_load_dword v{V_JUNK}, v6, s[{SRD_U}:{SRD_U+3}], s{S_T0} offen"))
    if cfg.w1t or cfg.w0touch: st(f"""
    s_lshl_b32 s{S_T0}, s{S_SLOT}, 2
    s_add_u32 s{S_T0}, s{S_T0}, s{S_W}
    s_sub_u32 s{S_T0}, s{S_T0}, 48
    s_mul_i32 s{S_T0}, s{S_T0}, {8*3072}
    s_and_b32 s{S_T2}, s{S_XCD}, 1
    s_mul_i32 s{S_T2}, s{S_T2}, 1536
    s_add_u32 s{S_T0}, s{S_T0}, s{S_T2}
    v_and_b32 v4, 7, v1
    v_mul_u32_u24 v4, 3072, v4
    v_bfe_u32 v6, v1, 3, 2
    v_min_u32 v6, 2, v6
    v_lshl_add_u32 v4, v6, 9, v4
    v_add_u32 v{V_W1T}, s{S_T0}, v4
    """)
    if cfg.w0touch: st(f"v_lshrrev_b32 v6, {7-cfg.s0}, v1", f"v_lshl_add_u32 v6, v6, 7, v{V_W1T}", VM(f"global_load_dword v{V_JUNK}, v6, s[{P_W1}:{P_W1+1}]"))
    if cfg.g_pos[0] == "head": st(gather(0, False))
    a("@SPLIT:")
    st(pf("B", "body"))
    st(f"""
    s_mul_i32 s{S_RB}, s{S_W}, {RSTRIDE}
    s_and_b32 s{S_T0}, s{S_XCD}, 1
    s_mul_i32 s{S_T0}, s{S_T0}, 5
    s_add_u32 s{S_D10}, s{S_D10}, s{S_T0}
    """)
    st(srd(SRD_WS, P_WS, WS_SIZE), srd(SRD_W, P_W2, 1536*1280))
    st(f"s_lshl_b32 s{S_T1}, s{S_D10}, 7")
    st(f"s_mov_b32 m0, s{S_RB}", "v_mov_b32 v9, 0x3f80",
       f"s_mov_b32 s{S_M1}, 0", f"s_mov_b32 s{S_M1+1}, -1",
       LG("ds_write_addtid_b32 v9"),
       f"s_mov_b32 s{S_M2}, 0xaaaaaaaa", f"s_mov_b32 s{S_M2+1}, 0xaaaaaaaa",
       "v_mov_b32 v6, 0", "v_mov_b32 v7, 0", "v_lshlrev_b32 v9, 3, v0", f"v_add_u32 v9, {U_LDS+16384}, v9",
       LG("ds_write_b64 v9, v[6:7]"))
    st("v_lshrrev_b32 v3, 5, v1", f"v_lshl_add_u32 v6, v3, 4, s{S_RB}",
       f"v_mov_b32 v8, {TROW}", f"v_mad_u32_u24 v{V_BA}, v5, v8, v6", "v_mov_b32 v7, 32")
    for k in range(5):
        mask = sum(((rowmap(m) >> k) & 1) << m for m in range(32))
        st(f"s_mov_b32 s{S_T0}, {hx(mask)}", f"v_bfe_u32 v9, s{S_T0}, v5, 1", f"v_lshl_add_u32 v7, v9, {k}, v7")
    st(f"v_mad_u32_u24 v{V_AA}, v7, v8, v6")
    st(f"""
    s_mul_i32 s{S_WO}, s{S_W}, {16*1280}
    s_add_u32 s{S_WO}, s{S_WO}, s{S_T1}
    s_lshl_b32 s{S_LW}, s{S_W}, 11
    s_mul_i32 s{S_HO}, s{S_TB}, {96*1024}
    v_lshrrev_b32 v2, 3, v1
    v_and_b32 v4, 2, v2
    v_and_b32 v5, 7, v1
    v_xor_b32 v4, v4, v5
    v_lshlrev_b32 v4, 4, v4
    v_mov_b32 v8, 1280
    v_mad_u32_u24 v{V_W2}, v2, v8, v4
    v_add_u32 v{V_W2+1}, {8*1280-1024}, v{V_W2}
    v_lshlrev_b32 v{V_L16}, 4, v1
    v_mov_b32 v{V_Z}, 0
    v_lshl_add_u32 v154, v3, 6, s{S_T1}
    """)
    if cfg.wt_pos: st(f"""
    s_and_b32 s{S_T0}, s{S_TB}, 15
    s_mul_i32 s{S_T0}, s{S_T0}, 48
    v_min_u32 v4, 47, v1
    v_add_u32 v4, s{S_T0}, v4
    v_and_b32 v5, 0x380, v4
    v_add_u32 v4, v4, v5
    v_mad_u32_u24 v{V_WT}, v4, v8, s{S_T1}
    """)
    V_CT = 129
    if cfg.ct: st(f"""
    s_sub_u32 s{S_T0}, s{S_SLOT}, 12
    s_lshl_b32 s{S_T0}, s{S_T0}, 2
    s_add_u32 s{S_T0}, s{S_T0}, s{S_W}
    s_lshr_b32 s{S_T2}, s{S_XCD}, 1
    s_mul_i32 s{S_T2}, s{S_T2}, 80
    s_add_u32 s{S_T0}, s{S_T0}, s{S_T2}
    s_mul_i32 s{S_T0}, s{S_T0}, {2*3072}
    s_and_b32 s{S_T2}, s{S_XCD}, 1
    s_mul_i32 s{S_T2}, s{S_T2}, 1536
    s_add_u32 s{S_T0}, s{S_T0}, s{S_T2}
    v_and_b32 v4, 3, v1
    v_max_u32 v4, {cfg.s0}, v4
    v_bfe_u32 v5, v1, 2, 2
    v_min_u32 v5, 2, v5
    v_lshl_add_u32 v4, v5, 2, v4
    v_bfe_u32 v5, v1, 4, 1
    v_mad_u32_u24 v4, v5, 24, v4
    v_lshl_add_u32 v{V_CT}, v4, 7, s{S_T0}
    s_mul_i32 s{S_T0}, s{S_TB}, {24*1280}
    s_add_u32 s{S_T0}, s{S_T0}, s{S_T1}
    v_min_u32 v4, 23, v1
    v_mad_u32_u24 v{V_CT+1}, v4, v8, s{S_T0}
    """)
    ctouch = [[VM(f"global_load_dword v{V_JUNK}, v{V_CT}, s[{P_W1}:{P_W1+1}]")], [VM(f"buffer_load_dword v{V_JUNK}, v{V_CT+1}, s[{SRD_W}:{SRD_W+3}], 0 offen")]]
    def tables():
        l = []
        if cfg.hrot:
            l += [f"s_sub_u32 s{S_T0}, s{S_SLOT}, 12", f"s_lshr_b32 s{S_T0}, s{S_T0}, 2"]
            if cfg.wrot: l += f"""s_and_b32 s{S_T1}, s{S_RBK}, 3
            s_mul_i32 s{S_T1}, s{S_T1}, 3
            s_add_u32 s{S_T1}, s{S_T1}, 1
            s_lshr_b32 s{S_T1}, s{S_T1}, 1
            s_add_u32 s{S_T0}, s{S_T0}, s{S_T1}
            s_lshr_b32 s{S_T1}, s{S_RBK}, 2
            s_add_u32 s{S_T0}, s{S_T0}, s{S_T1}
            s_mul_i32 s{S_T1}, s{S_T0}, 43
            s_lshr_b32 s{S_T1}, s{S_T1}, 8
            s_mul_i32 s{S_T1}, s{S_T1}, 6
            s_sub_u32 s{S_T0}, s{S_T0}, s{S_T1}""".split("\n")
        else: l += [f"s_mov_b32 s{S_T0}, 0"]
        for p in range(6):
            l += [f"s_lshl_b32 s{S_T1}, s{S_T0}, 12", f"s_add_u32 s{S_CHO+p}, s{S_T1}, s{S_HO}",
                  f"s_mul_i32 s{S_T1}, s{S_T0}, {256*1280}", f"s_add_u32 s{S_CWO+p}, s{S_T1}, s{S_WO}"]
            if p < 5: l += [f"s_add_u32 s{S_T0}, s{S_T0}, 1", f"s_cmp_eq_u32 s{S_T0}, 6\ns_cselect_b32 s{S_T0}, 0, s{S_T0}"]
        return l
    S_GB = (18, 19, 22, 23)
    for j in range(4):
        st(f"s_add_u32 s{S_T1}, s{S_T3}, {4*j}", f"s_and_b32 s{S_T1}, s{S_T1}, 15", f"s_lshl_b32 s{S_GB[j]}, s{S_T1}, 10")
        if j: st(f"s_mul_i32 s{S_GO[j]}, s{S_T1}, {128*1280}")
    st(f"""
    v_bfe_u32 v2, v1, 2, 2
    v_and_b32 v4, 3, v1
    v_lshrrev_b32 v5, 4, v1
    v_lshl_add_u32 v6, v5, 2, v4
    v_lshl_add_u32 v6, v6, 3, 3
    v_sub_u32 v6, v6, v2
    s_and_b32 s{S_T0}, s{S_IDX}, 1
    s_lshl_b32 s{S_T0}, s{S_T0}, 3
    s_add_u32 s{S_T0}, s{S_T0}, s{S_UQ}
    v_lshl_add_u32 v{V_TR}, v6, 4, s{S_T0}
    v_xor_b32 v6, v4, v5
    v_xor_b32 v6, 3, v6
    v_and_b32 v7, 60, v1
    v_sub_u32 v6, v6, v7
    v_lshlrev_b32 v6, 4, v6
    v_add_u32 v{V_TS}, {U_LDS + 64*255}, v6
    v_and_b32 v6, 15, v1
    """)
    st(f"v_lshl_add_u32 v9, v5, 4, s{S_RB}",
       "v_add_u32 v7, 1, v6", "v_and_b32 v7, 30, v7", "v_lshl_add_u32 v7, v7, 1, v9",
       f"v_add_u32 v8, {KB_OFF}, v7", f"v_cndmask_b32 v{V_F}, v8, v7, s[{S_M2}:{S_M2+1}]")
    for i in range(1, 4): st(f"v_add_u32 v{V_F+i}, {1024*i}, v{V_F}")
    st("v_lshlrev_b32 v7, 1, v6", "v_sub_u32 v7, v5, v7")
    for r in range(4):
        st(f"v_add_u32 v8, {30+4*r+U_LDS//64}, v7", f"v_add_u32 v9, {30+4*r}, v7", "v_bfe_u32 v9, v9, 2, 2", f"v_xor_b32 v9, s{S_W}, v9",
           "v_lshlrev_b32 v9, 4, v9", f"v_lshl_add_u32 v{V_G+r}, v8, 6, v9")
    st(f"""
    v_add_u32 v{V_KW}, s{S_RB}, v{V_L16}
    v_sub_u32 v7, 7, v1
    v_max_i32 v7, 0, v7
    v_lshl_add_u32 v{V_KP}, v7, 2, s{S_RB}
    """)
    late = f"""
    s_lshr_b32 s{S_T0}, s{S_TB}, 1
    s_lshl_b32 s{S_T0}, s{S_T0}, 10
    s_add_u32 s{S_T0}, s{S_T0}, {FL_H}
    v_lshl_add_u32 v7, v1, 2, s{S_T0}
    v_subrev_u32 v6, 12, v1
    v_ashrrev_i32 v6, 31, v6
    v_mov_b32 v5, {hx(OOB)}
    v_bfi_b32 v{V_PH}, v6, v7, v5
    s_lshr_b32 s{S_T0}, s{S_RBK}, 2
    s_mul_i32 s{S_T0}, s{S_T0}, 10
    s_add_u32 s{S_T0}, s{S_T0}, s{S_D10}
    s_lshl_b32 s{S_T0}, s{S_T0}, 8
    s_add_u32 s{S_T0}, s{S_T0}, {FL_Y}
    v_lshl_add_u32 v7, v1, 2, s{S_T0}
    v_subrev_u32 v6, 16, v1
    v_ashrrev_i32 v6, 31, v6
    v_bfi_b32 v{V_PY}, v6, v7, v5
    v_subrev_u32 v6, 1, v1
    v_ashrrev_i32 v6, 31, v6
    v_bfi_b32 v{V_PU}, v6, 0, v5
    v_and_b32 v5, 31, v1
    v_lshrrev_b32 v3, 5, v1
    s_lshl_b32 s{S_T1}, s{S_D10}, 7
    s_lshl_b32 s{S_T0}, s{S_TB}, 5
    v_add_u32 v7, s{S_T0}, v5
    s_lshl_b32 s{S_T2}, s{S_TB}, 10
    v_lshl_add_u32 v{V_T}, v5, 2, s{S_T2}
    v_lshlrev_b32 v6, 17, v3
    v_lshl_add_u32 v{V_YA}, v7, 3, v6
    v_and_b32 v6, 7, v1
    v_lshrrev_b32 v7, 3, v1
    s_mul_i32 s{S_T0}, s{S_T0}, 1280
    s_add_u32 s{S_T0}, s{S_T0}, s{S_T1}
    v_mul_u32_u24 v4, 1280, v7
    v_lshl_add_u32 v4, v6, 4, v4
    v_add_u32 v{V_OUT}, s{S_T0}, v4
    s_lshl_b32 s{S_T0}, s{S_W}, 12
    s_add_u32 s{S_T0}, s{S_T0}, {W2_LDS + 8*8192}
    v_xor_b32 v4, v6, v7
    v_lshl_add_u32 v4, v4, 4, s{S_T0}
    v_lshl_add_u32 v{V_OR}, v7, 7, v4
    v_lshlrev_b32 v4, 2, v3
    v_xor_b32 v4, v4, v6
    v_lshl_add_u32 v4, v4, 4, s{S_T0}
    v_lshl_add_u32 v{V_OW}, v5, 7, v4
    v_bfe_u32 v2, v1, 2, 2
    v_lshl_add_u32 v4, v3, 2, v2
    v_lshlrev_b32 v4, 7, v4
    v_lshrrev_b32 v5, 1, v2
    v_lshl_add_u32 v4, v5, 5, v4
    v_and_b32 v5, 1, v1
    v_lshl_add_u32 v4, v5, 6, v4
    v_bfe_u32 v5, v1, 4, 1
    v_lshl_add_u32 v4, v5, 4, v4
    v_bfe_u32 v5, v1, 1, 1
    v_lshl_add_u32 v{V_RW}, v5, 3, v4
    v_xor_b32 v{V_RW+1}, 32, v{V_RW}
    v_add_u32 v{V_RW+2}, 0x10000, v{V_RW}
    v_add_u32 v{V_RW+3}, 0x10000, v{V_RW+1}
    v_add_u32 v{V_RW+4}, 0x20000, v{V_RW}
    v_add_u32 v{V_RW+5}, 0x20000, v{V_RW+1}
    v_add_u32 v{V_WW}, s{S_LW}, v{V_L16}
    v_add_u32 v{V_WW+1}, 0x10000, v{V_WW}
    v_add_u32 v{V_WW+2}, 0x20000, v{V_WW}
    v_and_b32 v6, 15, v1
    v_lshrrev_b32 v5, 4, v1
    v_and_b32 v4, 3, v1
    v_lshlrev_b32 v7, 2, v5
    v_lshl_add_u32 v7, v6, 4, v7
    v_add_u32 v{V_YW}, s{S_RB}, v7
    v_mul_u32_u24 v7, {RSTRIDE}, v2
    v_lshl_add_u32 v7, v4, 3, v7
    v_lshl_add_u32 v7, v5, 5, v7
    s_lshl_b32 s{S_T0}, s{S_W}, 9
    v_add_u32 v{V_YR}, s{S_T0}, v7
    """
    late_l = []
    for t in late.split("\n"):
        t = t.strip()
        if t: late_l.append(t)
    b2l = [VM(f"global_load_dwordx4 {vr(B2R+4*i,4)}, v154, s[{P_B2}:{P_B2+1}] offset:{16*i}", "b2") for i in range(4)]
    late2 = [NEED("b2")] + [x for i in range(16) for x in (f"v_lshlrev_b32 v{ACC2+2*i}, 16, v{B2R+i}", f"v_and_b32 v{ACC2+2*i+1}, 0xffff0000, v{B2R+i}")]
    for j, gp in enumerate(cfg.g_pos):
        if not gp: st(gather(j))
    for j, gp in enumerate(cfg.ct):
        if not gp: st(ctouch[j])
    st(pf("B", "idle"))
    LH = f2u(1.4426950408889634); LHf = struct.unpack("<f", struct.pack("<I", LH))[0]
    st(f"s_mov_b32 s{S_T0}, {hx(LH)}", f"s_mov_b32 s{S_T1}, {hx(f2u(1.4426950408889634-LHf))}", f"s_mov_b32 s{S_T2}, {hx(f2u(0.6931471805599453))}",
      NEED("ldt"),
      f"v_mul_f32 v5, s{S_T0}, v{V_LDT}",
      f"v_fma_f32 v6, v{V_LDT}, s{S_T0}, -v5",
      f"v_exp_f32 v7, v5",
      f"v_fma_f32 v6, v{V_LDT}, s{S_T1}, v6",
      f"v_mul_f32 v6, s{S_T2}, v6",
      f"v_fma_f32 v7, v7, v6, v7",
      f"v_cvt_pk_bf16_f32 v{V_DT}, 0, v7",
      f"v_mul_f32 v{V_DTL}, s{S_T0}, v{V_DT}",
      f"v_mul_f32 v{V_DTP}, 0.15915494, v{V_DT}")
    def setup(g):
        p = VP + 6*g
        l = [NEED("p01" if g < 2 else "p2")]
        if g == 0: l += [f"v_lshlrev_b32 v{p+k}, 16, v{VRAW+k}" for k in range(6)]
        if g == 1: l += [f"v_and_b32 v{p+k}, 0xffff0000, v{VRAW+k}" for k in range(6)]
        l += [f"v_mul_f32 v{p}, v{p}, v{V_DTL}",
             f"v_mul_f32 v{p+1}, v{p+1}, v{V_DTP}",
             f"v_mul_f32 v{p+2}, v{p+2}, v{V_DT}",
             f"v_mul_f32 v{p+3}, v{p+3}, v{V_DT}",
             f"v_exp_f32 v2, v{p}",
             f"v_fract_f32 v3, v{p+1}",
             f"v_mul_f32 v4, 0x41000000, v{p}",
             f"v_mul_f32 v5, 0x41000000, v{p+1}",
             f"v_cos_f32 v{Z1}, v3",
             f"v_sin_f32 v{Z1+1}, v3",
             f"v_exp_f32 v4, v4",
             f"v_fract_f32 v5, v5",
             f"v_mul_f32 v6, 0x43800000, v{p}",
             f"v_mul_f32 v7, 0x43800000, v{p+1}",
             f"v_cos_f32 v{Z8}, v5",
             f"v_sin_f32 v{Z8+1}, v5",
             f"v_exp_f32 v6, v6",
             f"v_fract_f32 v7, v7",
             f"v_mul_f32 v{Z1}, v2, v{Z1}",
             f"v_mul_f32 v{Z1+1}, v2, v{Z1+1}",
             f"v_cos_f32 v{Z256}, v7",
             f"v_sin_f32 v{Z256+1}, v7",
             f"v_mul_f32 v{Z8}, v4, v{Z8}",
             f"v_mul_f32 v{Z8+1}, v4, v{Z8+1}",
             f"v_mul_f32 v{SV}, v{p+4}, v{p+2}",
             f"v_mul_f32 v{SV+1}, v{p+4}, v{p+3}",
             f"v_mul_f32 v{Z256}, v6, v{Z256}",
             f"v_mul_f32 v{Z256+1}, v6, v{Z256+1}",
             f"v_fma_f32 v{SV}, -v{p+5}, v{p+3}, v{SV}",
             f"v_fma_f32 v{SV+1}, -v{p+5}, v{p+2}, -v{SV+1}"]
        return l
    def chains(nscalar):
        vals = []
        def put(pre, x, row): vals.append((pre, x, row))
        def sc(): return len(vals) <= nscalar
        put([], SV, hi_row(0))
        prev = SV
        for j in range(1, 8):
            d = SV + j if j % 2 == 0 else X
            put(cmul(d, prev, Z1, T, True, sc()), d, hi_row(j)); prev = d
        for j in (0, 2, 4, 6): put(cmul(SV+j, SV+j, Z256, T, True, sc()), SV+j, hi_row(256+j))
        for b in (512, 768):
            for j in (0, 4): put(cmul(SV+j, SV+j, Z256, T, True), SV+j, hi_row(b+j))
        for b in (1024, 1280, 1536, 1792, 2048): put(cmul(SV, SV, Z256, T, True), SV, hi_row(b))
        put([], Z8, 1)
        prev = Z8
        for b in range(2, 32): put(cmul(X, prev, Z8, T), X, b); prev = X
        l = []; i = 0; nrd = 0
        while i < len(vals):
            n = 1 if (nscalar and i <= nscalar) else min(cfg.wb, len(vals) - i)
            g = []
            for j in range(n):
                pre, x, row = vals[i+j]; g += pre + [f"v_cvt_pk_bf16_f32 v{CV+(i+j)%6}, v{x}, v{x+1}"]
            for j in range(n): g.append(LG(f"ds_write_addtid_b32 v{CV+(i+j)%6} offset:{vals[i+j][2]*TROW}"))
            i += n
            if i >= 24:
                for k in range(nrd, min(nrd+2, 8)): g.append(LG(f"ds_read_b128 {ar(FA+4*k,4)}, v{V_AA} offset:{32*k}"))
                nrd = min(nrd+2, 8)
            l.append(g)
        assert nrd == 8
        return l
    def mm(g, k):
        c = "0" if (g == 0 and k == 0) else vr(D, 16)
        return [NEED(("fb", k)), f"v_mfma_f32_32x32x16_bf16 {vr(D,16)}, {ar(FA+4*k,4)}, {ar(FB+4*k,4)}, {c}"]
    fbreads = [LG(f"ds_read_b128 {ar(FB+4*k,4)}, v{V_BA} offset:{32*k}", ("fb", k)) for k in range(8)]
    def w2load(u):
        sg, p = divmod(u, 6)
        so = f"s_add_u32 s{S_DM}, s{S_CWO+p}, {sg*64*1280}"
        if u < 10:
            v = [VM(f"buffer_load_dwordx4 v{V_W2+i}, s[{SRD_W}:{SRD_W+3}], s{S_DM} offen offset:{1024*i} lds", ("w2", u)) for i in range(2)]
            return [[f"s_add_u32 m0, s{S_LW}, {w2slot(u)}", so, v[0]], v[1]]
        v = [VM(f"buffer_load_dwordx4 {rawreg(u,i)}, v{V_W2+i}, s[{SRD_W}:{SRD_W+3}], s{S_DM} offen offset:{1024*i}", ("w2", u)) for i in range(2)]
        return [[so, v[0]], v[1]]
    def w2put(u):
        l = []
        for i in range(2):
            o = w2slot(u) + 1024*i
            l.append([NEED(("w2", u)), LG(f"ds_write_b128 v{V_WW+(o>>16)}, {rawreg(u,i)} offset:{o & 0xffff}", ("put", u))])
        return l
    def w2touch(j): return [f"s_mov_b32 s{S_T3}, {128*1280*j}", VM(f"buffer_load_dword v{V_JUNK}, v{V_WT}, s[{SRD_W}:{SRD_W+3}], s{S_T3} offen")]
    ins = [{}, {}, {}]
    def at(g, pos, items): ins[g].setdefault(pos, []).extend(items)
    for j, gp in enumerate(cfg.g_pos):
        if isinstance(gp, tuple): at(*gp, gather(j))
    for j, gp in enumerate(cfg.ct):
        if gp: at(*gp, ctouch[j])
    QT = 40
    def trans(js):
        l = pf("B", f"upre{js[-1]}") + [NEED(("raw", js[-1]))] + pf("B", f"ugot{js[-1]}")
        for j in js: l += [LG(f"ds_read_b64_tr_b16 {vr(QT+4*j,2)}, v{V_TR} offset:{2048*j+64}"), LG(f"ds_read_b64_tr_b16 {vr(QT+4*j+2,2)}, v{V_TR} offset:{2048*j}", ("tr", j))]
        return l
    def tput(js): return [x for j in js for x in (NEED(("tr", j)), LG(f"ds_write_b128 v{QT+16+j}, {vr(QT+4*j,4)}", "U"))]
    for j, (g, pos) in enumerate(cfg.wt_pos): at(g, pos, w2touch(j))
    if cfg.w1t: at(*cfg.w1t, [VM(f"global_load_dword v{V_JUNK}, v{V_W1T}, s[{P_W1}:{P_W1+1}] offset:{128*q}") for q in range(cfg.s0, 4)])
    vq = [w2load(u) for p in range(6) for u in (12+p, 18+p, p, 6+p)]
    for gp in cfg.wk:
        x = vq.pop(0); at(*gp, x + ([f"s_mov_b32 m0, s{S_RB}\ns_nop 0"] if len(x[0]) == 3 else []))
    assert not cfg.wk and cfg.w_early <= 8
    vq = [x for u in vq for x in u]
    st(setup(0))
    st(pf("B", "setup0"))
    st(insert(chains(0), ins[0]))
    for g in (1, 2):
        st(fbreads, setup(g))
        c = chains(8)
        for k in range(8): c[k+1] = mm(g-1, k) + c[k+1]
        st(pf("B", f"kgen{g-1}"))
        st(insert(c, ins[g]))
    st(fbreads, NEED("dsk", "tag"), "v_cmp_eq_u32 vcc, 0, v1", [f"v_subrev_u32 v{QT+16+j}, s{S_GB[j]}, v{V_TS}" for j in range(4)],
       f"v_add_u32 v{V_TAG}, {hx(TAG_STEP)}, v{V_TAG}", f"v_cndmask_b32 v{V_DSK}, 0, v{V_DSK}, vcc")
    ne = 2*cfg.w_early
    st(weave([mm(2, k) for k in range(8)], tables() + vq[:ne])); vq = vq[ne:]
    J1 = list(range(cfg.tr1)); J2 = list(range(cfg.tr1, 4))
    if J1: st(trans(J1))
    st("s_nop 7")
    st(pf("B", "kgen2"))
    N = 10; TT = 14
    dpp = "row_mask:0xf bank_mask:0xf"
    st(f"v_add_f32 v{D}, v{D}, v{V_DSK}")
    for i, nx in enumerate((8, 10, 11, 12)): st(f"v_mov_b32_dpp v{N+i}, v{D+nx} wave_rol:1 {dpp}")
    for i, cu in enumerate((0, 8, 10, 11)): st(f"v_mov_b32_dpp v{N+i}, v{D+cu} wave_shl:1 {dpp}")
    st(f"v_cvt_pk_bf16_f32 v16, 0, v{D}",
       f"v_cndmask_b32 v{D+7}, v{D+7}, v{N}, s[{S_M1}:{S_M1+1}]",
       "v_cndmask_b32 v16, 0, v16, vcc",
       f"v_cndmask_b32 v{TT}, v{D+10}, v{N+2}, s[{S_M2}:{S_M2+1}]",
       f"v_cndmask_b32 v{TT+1}, v{D+11}, v{N+3}, s[{S_M2}:{S_M2+1}]",
       LG(f"ds_write_b32 v{V_KP}, v16 offset:{KB_OFF}"), LG(f"ds_write_b32 v{V_KP}, v{V_Z}"))
    seqs = [[D+i for i in range(8)] + [N],
            [D+8]*3 + [D+9]*3 + [N+1]*3,
            [D+10]*4 + [TT] + [N+2]*4,
            [D+11]*4 + [TT+1] + [N+3]*4]
    def floads(F, ms, r=0):
        l = []
        for m in ms:
            o = 128*(m & 1)
            l.append(LG(f"ds_read2_b32 {ar(F+4*m,2)}, v{V_F+(m>>1)} offset0:{o} offset1:{o+1}"))
            l.append(LG(f"ds_read2_b32 {ar(F+4*m+2,2)}, v{V_F+(m>>1)} offset0:{o+2} offset1:{o+3}", ("F", r, m)))
        return l
    def gload(G, n, r): return LG(f"ds_read_b128 {ar(G+4*n,4)}, v{V_G+(r&3)} offset:{2048*(7-n) + 1024*(r>>2)}", ("G", r, n))
    fadv = [f"v_add_u32 v{V_F+i}, 64, v{V_F+i}" for i in range(4)]
    st(tput(J1))
    for p, sq in enumerate(seqs):
        if p == 3 and J2: st(trans(J2))
        for cpy in range(2):
            q = Q + 8*p + 4*cpy
            for i in range(4): st(f"v_cvt_pk_bf16_f32 v{q+i}, v{sq[2*i+cpy]}, v{sq[2*i+1+cpy]}")
            st(LG(f"ds_write_b128 v{V_KW}, {vr(q,4)} offset:{32 + 1024*p + KB_OFF*cpy}"))
    st(tput(J2), floads(F0, range(8)), fadv)
    st(pf("B", "expand"))
    st(NEED("U"), "s_barrier")
    st(pf("B", "ubar"))
    st([gload(G0, n, 0) for n in range(7, -1, -1)])
    def hreg(k): return ar(4*(k % 24) + (128 if (k//24) & 1 else 0), 4)
    def hload(k):
        sg, rem = divmod(k, 24); p, q = divmod(rem, 4)
        l = [f"s_add_u32 s{S_H2}, s{S_CHO+p}, {H_OFF + sg*24*1024*(0 if 'hq0' in cfg.exp else 1)}"] if q == 0 else []
        return l + [VM(f"buffer_load_dwordx4 {hreg(k)}, v{V_L16}, {WS}, s{S_H2} offen offset:{1024*q} sc1", ("h", k))]
    def hpoll(sg): return polls.issue(("hp", sg), V_POLL, V_PH, 256*sg)
    def hcheck(sg): return polls.check(("hp", sg), V_POLL, V_TAG, V_PH, 256*sg, "0xfff", pf, f"h{sg}") + pf("B", f"h{sg}seen")
    def mfmas(F, G, first):
        return [f"v_mfma_f32_16x16x32_bf16 {vr(ACC+4*(m+n),4)}, {ar(F+4*m,4)}, {ar(G+4*n,4)}, {'0' if (first and m == 0) else vr(ACC+4*(m+n),4)}"
                for m in range(8) for n in range(7-m, -1, -1)]
    def flat(items): return [y for x in items for y in (x if isinstance(x, list) else [x])]
    mf = []; mand = {}
    for r in range(8):
        F, G, Fn, Gn = (F0, G0, F1, G1) if r % 2 == 0 else (F1, G1, F0, G0)
        m_ = mfmas(F, G, r == 0)
        if r == 0:
            for n in (7, 5, 3, 1): m_[7-n] = [NEED(("G", 0, n-1)), m_[7-n]]
        else:
            m_[0] = [NEED(("G", r, 0)), m_[0]]; m_[8] = [NEED(("F", r, 7)), m_[8]]
        if r < 7:
            ld = floads(Fn, [0], r+1) + [gload(Gn, n, r+1) for n in range(7, -1, -1)]
            for m in range(1, 8):
                ld += floads(Fn, [m], r+1)
                if m & 1: ld[-1] = [ld[-1], fadv[m >> 1]]
            gaps = [g for g in range(36) if g % 3 != 1]
            for g, it in zip(gaps, ld): mand[36*r + g] = [it]
        mf += m_
    gh = 36*cfg.h0_it
    free = [g for g in range(288) if g % 3 == 1]
    def onfree(items, g0, g1):
        fr = [g for g in free if g0 <= g < g1]; out = []
        for j, it in enumerate(items):
            g = fr[j*len(fr)//len(items)]
            if isinstance(it, list):
                out += [(x, max(g-3, g0), g) for x in it[:-1]]; it = it[-1]
            out.append((it, g, g))
        return out
    sv = onfree(b2l + vq, 0, min(gh, 36*cfg.w_its))
    k = next((j for j, x in enumerate(sv) if x[2] >= gh - 40 and (j == 0 or callable(sv[j-1][0]))), len(sv))
    sv.insert(k, (hpoll(0), gh - 44, gh - 40))
    hq = [hload(k) for k in range(24)]
    chk = hcheck(0)
    if cfg.h0_it < 8: sv += [(chk, gh, gh)] + onfree(hq, gh + 1, 288)
    sched(st, mf, 9.5, mand, [sv, [(x, 0, 140) for x in late_l], [(x, 252, 287) for x in late2]])
    if cfg.h0_it >= 8: st(chk, hq)
    st(pf("B", "conv"))
    st(f"s_lshl_b32 s{S_T0}, s{S_IDX}, 14", f"s_lshl_b32 s{S_T1}, s{S_W}, 12", f"s_add_u32 s{S_T0}, s{S_T0}, s{S_T1}",
       f"s_add_u32 s{S_T0}, s{S_T0}, {YA_OFF}")
    for cb in range(8):
        r = ACC + 4*cb
        st(f"v_cvt_pk_bf16_f32 v{8+2*cb}, v{r}, v{r+2}", f"v_cvt_pk_bf16_f32 v{9+2*cb}, v{r+1}, v{r+3}",
           LG(f"ds_write2st64_b32 v{V_YW}, v{8+2*cb}, v{9+2*cb} offset0:{cb} offset1:{8+cb}"))
    st(NEED(*[("w2", u) for u in range(10)]), DRAIN("lg"), "s_barrier")
    def reads(k):
        u, q = k >> 2, k & 3
        o = w2slot(u) + q*2048; l = []
        if k == 40: l += [NEED(("put", 15)), "s_barrier"]
        if k == 64: l += [NEED(("put", 23)), "s_barrier"]
        b = WF + 8*(k & 3)
        for T_ in range(2):
            for s in range(2):
                oo = o + 1024*s
                l.append(LG(f"ds_read_b64_tr_b16 {vr(b+4*T_+2*s,2)}, v{V_RW+2*(oo>>16)+T_} offset:{oo & 0xffff}", ("w", k)))
        return l
    LEAD = 2
    for k in range(LEAD): st(reads(k))
    for x in range(4):
        st(LG(f"ds_read_b64_tr_b16 {vr(24+4*x,2)}, v{V_YR} offset:{128*x}"), LG(f"ds_read_b64_tr_b16 {vr(26+4*x,2)}, v{V_YR} offset:{2048+128*x}", ("y", x)))
    st(hpoll(1), pf("B", "g2start"))
    ysto = [[NEED(("y", x)), VM(f"buffer_store_dwordx4 {vr(24+4*x,4)}, v{V_L16}, {WS}, s{S_T0} offen offset:{1024*x} sc1", "ys")] for x in range(4)]
    ypub = [f"s_mul_i32 s{S_T0}, s{S_W}, 10", f"s_lshr_b32 s{S_T1}, s{S_IDX}, 4", f"s_add_u32 s{S_T0}, s{S_T0}, s{S_T1}", f"s_lshl_b32 s{S_T0}, s{S_T0}, 6",
            f"s_and_b32 s{S_T1}, s{S_IDX}, 15", f"s_add_u32 s{S_T0}, s{S_T0}, s{S_T1}", f"s_lshl_b32 s{S_T0}, s{S_T0}, 2",
            f"s_add_u32 s{S_T0}, s{S_T0}, {FL_Y}", [NEED("ys"), flag_set(V_TAG, V_PU, S_T0)]]
    ypoll = polls.issue("yp", V_JUNK, V_PY, 0)
    ein = [polls.check("yp", V_JUNK, V_TAG, V_PY, 0, "0xffff", pf, "y") + pf("B", "yseen"), f"s_mov_b32 s{S_T1}, {G_OFF}",
           *[VM(f"buffer_load_dword v{40+j if j < 4 else V_GT}, v{V_T}, {WS}, s{S_T1} offen offset:{128*j} sc1", "g") for j in range(5)],
           f"s_lshl_b32 s{S_T1}, s{S_D10}, 18", f"s_add_u32 s{S_T1}, s{S_T1}, {YA_OFF}"]
    for i in range(8):
        ein += [[VM(f"buffer_load_dwordx2 {vr(YA+2*i,2)}, v{V_YA}, {WS}, s{S_T1} offen sc1", "ya"), f"s_add_u32 s{S_T1}, s{S_T1}, 16384"]]
    pre = [NEED("g"), "v_add_f32 v40, v40, v41", "v_add_f32 v42, v42, v43", f"v_add_f32 v40, v40, v{V_GT}", "v_add_f32 v40, v40, v42",
           f"v_mul_f32 v40, {hx(f2u(-1.4426950408889634))}, v40", "v_exp_f32 v40, v40\ns_nop 0", "v_add_f32 v40, 1.0, v40", f"v_rcp_f32 v{V_GT}, v40\ns_nop 0",
           f"v_sub_f32 v{V_OG}, 1.0, v{V_GT}", NEED("ya")]
    for i in range(16):
        pre += [f"v_lshlrev_b32 v{GA+2*i}, 16, v{YA+i}", f"v_and_b32 v{GA+2*i+1}, 0xffff0000, v{YA+i}",
                f"v_mul_f32 v{GA+2*i}, v{GA+2*i}, v{V_GT}", f"v_mul_f32 v{GA+2*i+1}, v{GA+2*i+1}, v{V_GT}"]
    pre += srd(SRD_OUT, P_OUT, 2048*1280) + [f"v_xor_b32 v{2+i}, {16*i}, v{V_OW}" for i in range(1, 4)]
    PL = cfg.pl
    mf = []; mand = {}; post = {}
    for k in range(96):
        b = WF + 8*(k & 3)
        m_ = [f"v_mfma_f32_32x32x16_bf16 {vr(ACC2+16*T_,16)}, {vr(b+4*T_,4)}, {hreg(k)}, {vr(ACC2+16*T_,16)}" for T_ in range(2)]
        mf += [[NEED(("w", k), ("h", k)), m_[0]], m_[1]]
        if k + LEAD < 96: mand[2*k] = reads(k+LEAD)
        if k % 12 == 0: post[2*k] = pf("B", f"k{k}")
    sh = []; sp = []
    for sg in (1, 2, 3):
        k0 = cfg.hs[sg-1]
        if sg > 1: sp.append((hpoll(sg), max(2*(k0-PL), 0), max(2*(k0-PL), 0)+1))
        sh.append((hcheck(sg), 2*k0, 2*k0))
        for j in range(24):
            g = 2*(k0 + j) + 1
            assert k0 + j < 24*sg + j and (sg == 1 or k0 + j >= 24*(sg-2) + j)
            l = hload(24*sg + j); sh += [(x, g-1, g) for x in l[:-1]] + [(l[-1], g, g)]
    Y0 = cfg.ys
    sy = paced(ysto, 1, 9, 1) + [(x, 30, 46) for x in ypub[:-1]] + [(ypub[-1], 2*cfg.yp, 2*cfg.yp+2)] + [(ypoll, 2*(Y0-PL), 2*(Y0-PL)+2)] + paced(ein, 2*Y0, 2*(Y0+cfg.yn), 2) + [(x, 2*(Y0+cfg.yn)+16, 191) for x in pre]
    sw = paced([x for u in range(10, 16) for x in w2put(u)], 9, 60, 4) + paced([x for u in range(16, 24) for x in w2put(u)], 78, 118, 3)
    if 'noput' in cfg.exp: sw = [(lambda s_: s_.tok.update({("put", 15): ("lg", 0), ("put", 23): ("lg", 0)}), 0, 0)]
    if 'noh' in cfg.exp:
        sh = [x for x in sh if isinstance(x[0], list)]
        for k in range(24, 96): st.tok[("h", k)] = ("vm", 0)
    if 'nopoll' in cfg.exp:
        sh = [x for x in sh if not isinstance(x[0], list)]; sp = []
        polls.tail = polls.tail[:-30]
    sched(st, mf, 24, mand, [sh, sp, sy, sw], post)
    st(pf("B", "g2"))
    st(f"s_mov_b32 s{S_T1}, {8*1280}", f"s_mov_b32 s{S_T2}, {16*1280}", f"s_mov_b32 s{S_T3}, {24*1280}", "s_nop 7")
    for i in range(4):
        for e in range(0, 8, 2): st(f"v_pk_fma_f32 {vr(GA+8*i+e,2)}, {vr(ACC2+8*i+e,2)}, {vr(V_GT,2)}, {vr(GA+8*i+e,2)} op_sel:[0,1,0]")
        for e in range(4): st(f"v_cvt_pk_bf16_f32 v{WF+4*i+e}, v{GA+8*i+2*e}, v{GA+8*i+2*e+1}")
        st(LG(f"ds_write_b128 v{2+i if i else V_OW}, {vr(WF+4*i,4)}"))
    for i in range(4): st(LG(f"ds_read_b128 {vr(WF+16+4*i,4)}, v{V_OR} offset:{1024*i}", ("o", i)))
    for i in range(4):
        st(NEED(("o", i)), VM(f"buffer_store_dwordx4 {vr(WF+16+4*i,4)}, v{V_OUT}, s[{SRD_OUT}:{SRD_OUT+3}], {f's{S_T0+i}' if i else 0} offen"))

A_MISC = 131072
def role_a(a, cfg, pf, polls):
    S_RBK, S_C6, S_XO, S_WO, S_HO, S_LX, S_TB, S_ES, S_FL = 60, 61, 62, 63, 56, 64, 65, 58, 43
    S_CX, S_CW, S_KR = 4, 14, 69
    VX, VW, VRX, VRW = 4, 8, 12, 20
    V_EP, V_ST, V_TAG, V_Z, V_BR, V_GL = 22, 23, 28, 29, 30, 31
    WF, PK, GF, ACC = 32, 48, 48, 128
    GACC = ACC + 96
    def xreg(kk, tau):
        n = 2*kk + tau
        return ar(4*n, 4) if n < 64 else vr(64 + 4*(n-64), 4)
    S0 = cfg.s0
    LEAD = cfg.alead
    pairs = []; periods = []
    for c in range(10):
        periods.append((len(pairs), c, c if S0 == 2 else c >> 1, (0, 1) if S0 == 2 else (c & 1,)))
        if S0 == 1: pairs += [(c >> 1, c & 1, q, 4*c+q, 0) for q in range(4)]
        elif c < 9: pairs += [(c, u, q, 4*c+q, u) for q in range(4) for u in range(2)]
        else: pairs += [(c, u, q, 4*c+q, u) for u in range(2) for q in range(4)]
    for b in range(5*S0, 20):
        periods.append((len(pairs), None, b, (0, 1)))
        pairs += [(b, u, q, 8*(b % 5)+4*u+q, b//5) for u in range(2) for q in range(4)]
    NP = len(periods)
    bar_pos = [max(p[0] - LEAD, 0) for p in periods] + [160]
    def free_after(last): return next(e for e in range(NP+1) if bar_pos[e] >= last)
    last_use = {b: max(i for i, p in enumerate(pairs) if p[0] == b) for b in range(20)}
    slot_free = {65536 + 16384*j: 0 for j in range(4)}
    for j in range(4): slot_free[16384*j] = free_after(periods[(8, 9, 6, 7)[j] + 1][0] - 1)
    wsl = {}; wearliest = {}
    for b in range(20):
        sl = min(slot_free, key=lambda x: (slot_free[x], -x >> 16))
        wsl[b] = sl; wearliest[b] = slot_free[sl]; slot_free[sl] = free_after(last_use[b])
    st = Stream(a)
    st(f"""
    s_and_b32 s{S_RBK}, s{S_XCD}, 6
    s_lshl_b32 s{S_RBK}, s{S_RBK}, 1
    s_and_b32 s{S_KR}, s{S_SLOT}, 3
    s_add_u32 s{S_RBK}, s{S_RBK}, s{S_KR}
    s_mul_i32 s{S_KR}, s{S_KR}, {5 if cfg.krot else 0}
    s_add_u32 s{S_KR}, s{S_KR}, 1
    s_lshr_b32 s{S_KR}, s{S_KR}, 1
    s_and_b32 s{S_C6}, s{S_XCD}, 1
    s_mul_i32 s{S_C6}, s{S_C6}, 3
    s_lshr_b32 s{S_T0}, s{S_SLOT}, 2
    s_add_u32 s{S_C6}, s{S_C6}, s{S_T0}
    s_lshl_b32 s{S_T0}, s{S_C6}, 2
    s_lshr_b32 s{S_T0}, {0x962840 if cfg.crot else 0}, s{S_T0}
    s_and_b32 s{S_T0}, s{S_T0}, 15
    s_add_u32 s{S_KR}, s{S_KR}, s{S_T0}
    s_cmp_ge_u32 s{S_KR}, 10
    s_cselect_b32 s{S_T0}, 10, 0
    s_sub_u32 s{S_KR}, s{S_KR}, s{S_T0}
    s_lshl_b32 s{S_TB}, s{S_RBK}, 2
    s_add_u32 s{S_TB}, s{S_TB}, s{S_W}
    s_mul_i32 s{S_XO}, s{S_TB}, {32*1280}
    s_mul_i32 s{S_WO}, s{S_W}, {16*3072}
    s_lshl_b32 s{S_T0}, s{S_C6}, 9
    s_add_u32 s{S_WO}, s{S_WO}, s{S_T0}
    s_lshl_b32 s{S_LX}, s{S_W}, 12
    v_lshrrev_b32 v2, 3, v1
    v_and_b32 v3, 7, v1
    v_lshrrev_b32 v24, 1, v2
    v_xor_b32 v25, v3, v24
    v_lshlrev_b32 v25, 4, v25
    v_mov_b32 v26, 1280
    v_mad_u32_u24 v{VX}, v2, v26, v25
    v_xor_b32 v{VX+1}, 64, v{VX}
    v_add_u32 v{VX+1}, {8*1280-1024}, v{VX+1}
    v_add_u32 v{VX+2}, {16*1280-2048}, v{VX}
    v_add_u32 v{VX+3}, {16*1280-2048}, v{VX+1}
    v_and_b32 v24, 1, v24
    v_lshlrev_b32 v24, 2, v24
    v_xor_b32 v25, v3, v24
    v_lshlrev_b32 v25, 4, v25
    v_mov_b32 v26, 3072
    v_mad_u32_u24 v25, v2, v26, v25
    v_add_u32 v{VW}, 4096, v25
    v_add_u32 v{VW+1}, {4096+8*3072-1024}, v25
    v_add_u32 v{VW+2}, {4096+128*(S0-1)-2048}, v25
    v_add_u32 v{VW+3}, {4096+128*(S0-1)+8*3072-3072}, v25
    v_lshl_add_u32 v27, v1, 3, s{S_T0}
    s_lshl_b32 s{S_T2}, s{S_KR}, 3
    s_mov_b32 s{SRD_U+2}, {2048*1280}
    s_mov_b32 s{SRD_U+3}, 0x20000
    s_mov_b32 s{SRD_W+2}, {640*3072+4096}
    s_mov_b32 s{SRD_W+3}, 0x20000
    s_waitcnt lgkmcnt(0)
    """)
    st(pf("A", "karg"))
    st(srd(SRD_U, P_U, 0)[:2], f"s_sub_u32 s{SRD_W}, s{P_W1}, 4096\ns_subb_u32 s{SRD_W+1}, s{P_W1+1}, 0")
    def ctab(j):
        l = [f"s_lshl_b32 s{S_T0}, s{S_KR}, 7", f"s_add_u32 s{S_CX+j}, s{S_T0}, s{S_XO}",
             f"s_mul_i32 s{S_T0}, s{S_KR}, {64*3072}", f"s_add_u32 s{S_CW+j}, s{S_T0}, s{S_WO}"]
        if j < 9: l += [f"s_add_u32 s{S_KR}, s{S_KR}, 1", f"s_cmp_eq_u32 s{S_KR}, 10\ns_cselect_b32 s{S_KR}, 0, s{S_KR}"]
        return l
    def dma(P):
        _, c, b, us = periods[P]
        l = []
        if c is not None:
            v = [VM(f"buffer_load_dwordx4 v{VX+i}, s[{SRD_U}:{SRD_U+3}], s{S_CX+c} offen offset:{1024*i} lds") for i in range(4)]
            l += [f"s_add_u32 m0, s{S_LX}, {(c & 3)*16384}", [M0GAP, v[0]]] + v[1:]
        v = [VM(f"buffer_load_dwordx4 v{VW+j}, s[{SRD_W}:{SRD_W+3}], s{S_CW+(c if c is not None else 2*(b % 5)+(j >> 1))} offen offset:{1024*j} lds", ("w", P))
             for j in range(4) if j >> 1 in us]
        if c is None and b % 5 == 0: l += [f"v_add_u32 v{VW+j}, {0x100 if (j < 2 and S0 == 2 and b == 10) else 0x80}, v{VW+j}" for j in range(4)]
        return l + [f"s_add_u32 m0, s{S_LX}, {wsl[b]}", [M0GAP, v[0]]] + v[1:]
    st(VM(f"global_load_dwordx2 v[{V_TAG}:{V_TAG+1}], v27, s[{P_B1}:{P_B1+1}]", "b1"))
    st(ctab(0), dma(0), ctab(1), dma(1)[:cfg.head1])
    a("@SPLIT:")
    st(pf("A", "body"))
    st(srd(SRD_WS, P_WS, WS_SIZE), f"""
    s_and_b32 s{S_T1}, s{S_W}, 1
    s_lshl_b32 s{S_T0}, s{S_C6}, 1
    s_add_u32 s{S_T0}, s{S_T0}, s{S_T1}
    s_lshr_b32 s{S_FL}, s{S_TB}, 1
    s_lshl_b32 s{S_FL}, s{S_FL}, 8
    s_add_u32 s{S_FL}, s{S_FL}, s{S_T0}
    s_lshl_b32 s{S_FL}, s{S_FL}, 2
    s_add_u32 s{S_FL}, s{S_FL}, {FL_H}
    s_lshl_b32 s{S_T0}, s{S_T0}, 11
    s_mul_i32 s{S_HO}, s{S_TB}, {96*1024}
    s_add_u32 s{S_HO}, s{S_HO}, s{S_T0}
    s_xor_b32 s{S_HO+1}, s{S_TB}, 1
    s_mul_i32 s{S_HO+1}, s{S_HO+1}, {96*1024}
    s_add_u32 s{S_HO+1}, s{S_HO+1}, s{S_T0}
    v_lshlrev_b32 v{V_ST}, 4, v1
    v_mov_b32 v{V_EP}, {EP_OFF}
    v_and_b32 v24, 15, v1
    v_add_u32 v24, s{S_T2}, v24
    v_subrev_u32 v25, 80, v24
    v_min_u32 v24, v24, v25
    v_lshlrev_b32 v{V_GL}, 4, v24
    v_bfe_u32 v2, v1, 2, 2
    v_lshrrev_b32 v3, 5, v1
    v_lshl_add_u32 v24, v3, 3, v2
    v_lshlrev_b32 v24, 7, v24
    v_lshrrev_b32 v2, 1, v2
    v_xor_b32 v2, s{S_T1}, v2
    v_lshl_add_u32 v24, v2, 6, v24
    v_bfe_u32 v2, v1, 4, 1
    v_lshl_add_u32 v24, v2, 5, v24
    v_and_b32 v2, 3, v1
    v_lshl_add_u32 v{VRW}, v2, 3, v24
    v_add_u32 v{VRW+1}, 0x10000, v{VRW}
    v_and_b32 v2, 31, v1
    v_bfe_u32 v24, v1, 1, 3
    v_xor_b32 v24, v24, v3
    v_lshlrev_b32 v24, 4, v24
    v_lshl_add_u32 v24, v2, 7, v24
    v_add_u32 v{VRX}, s{S_LX}, v24
    s_lshr_b32 s{S_T2}, s{S_LX}, 1
    s_add_u32 s{S_T2}, s{S_T2}, {A_MISC}
    v_add_u32 v{WF}, s{S_T2}, v{V_ST}
    v_lshl_add_u32 v3, v3, 4, s{S_T2}
    s_lshl_b32 s{S_T1}, s{S_T1}, 7
    v_add_u32 v{V_BR}, s{S_T1}, v3
    """)
    for j in range(1, 8): st(f"v_xor_b32 v{VRX+j}, {32*(j & 3) + 4096*(j >> 2)}, v{VRX}")
    for j in range(2, 10): st(ctab(j))
    st(pf("A", "setup"), dma(1)[cfg.head1:])
    st(f"s_add_u32 m0, s{S_T2}, 1024\ns_nop 0", VM(f"global_load_lds_dwordx4 v{V_GL}, s[{P_GATE}:{P_GATE+1}]", "gw"))
    st(NEED("b1"), f"v_lshlrev_b32 v24, 16, v{V_TAG}", f"v_and_b32 v25, 0xffff0000, v{V_TAG}", f"v_lshlrev_b32 v26, 16, v{V_TAG+1}", f"v_and_b32 v27, 0xffff0000, v{V_TAG+1}",
       LG(f"ds_write_b128 v{WF}, v[24:27]"), one_lane(V_Z), VM(f"global_load_dword v{V_TAG}, v{V_EP}, s[{P_WS}:{P_WS+1}] sc1", "tag"))
    bias = [LG(f"ds_read_b128 {vr(ACC+4*i,4)}, v{V_BR} offset:{256*(i >> 3)+32*(i & 3)}") for i in range(32)]
    st(bias[:8*S0])
    for P in range(2, cfg.pre_chunks): st(dma(P))
    st(pf("A", "issued"))
    gate_pairs = [i for i, p in enumerate(pairs[:40*S0]) if p[4] == S0-1][cfg.gate_at:cfg.gate_at+8]
    first_of = {p[0]: P for P, p in enumerate(periods)}
    def reads(i):
        b, u, q, kk, sg = pairs[i]
        l = []
        if i in first_of: l += [[NEED(("w", first_of[i])), "s_barrier"]]
        if sg == 0: l += [LG(f"ds_read_b128 {xreg(kk,tau)}, v{VRX+4*tau+q} offset:{((kk >> 2) & 3)*16384}") for tau in range(2)]
        if i in gate_pairs:
            j = gate_pairs.index(i)
            l += ([NEED("gw")] if j == 0 else []) + [LG(f"ds_read_b128 {vr(GF+4*(j & 3),4)}, v3 offset:{1024+32*j}")]
        o = wsl[b] + 4096*q + 2048*u
        return l + [LG(f"ds_read_b64_tr_b16 {vr(WF+4*(i & 3)+2*s,2)}, v{VRW+(o >> 16)} offset:{(o & 0xffff)+512*s}", ("r", i)) for s in range(2)]
    def epi(sg):
        l = [f"s_add_u32 s{S_ES+tau}, s{S_HO+tau}, {H_OFF + sg*24*1024}" for tau in range(2)]
        for k in range(4):
            r = ACC + 32*sg + 8*k; p = PK + 4*k
            l += [f"v_mul_f32_e64 v{r+e}, v{r+e}, |v{r+e}|" for e in range(8)]
            l += [f"v_cvt_pk_bf16_f32 v{p+e}, v{r+2*e}, v{r+2*e+1}" for e in range(4)]
            l += [f"v_pk_max_i16 v{p+e}, v{p+e}, 0" for e in range(4)]
            l += [VM(f"buffer_store_dwordx4 {vr(p,4)}, v{V_ST}, {WS}, s{S_ES+(k >> 1)} offen offset:{1024*(k & 1)} sc1", ("h", sg))]
        return l
    def pub(sg): return [NEED(("h", sg)), flag_set(V_TAG, V_Z, S_FL, 256*sg)] + pf("A", f"pub{sg}")
    gate = [f"s_lshl_b32 s{S_T1}, s{S_TB}, 10", f"s_add_u32 s{S_T1}, s{S_T1}, {G_OFF}", f"s_lshl_b32 s{S_T2}, s{S_C6}, 7",
            f"v_lshl_add_u32 v25, v2, 2, s{S_T2}", VM(f"buffer_store_dword v{V_GL}, v25, {WS}, s{S_T1} offen sc1")]
    mf = []; mand = {}; post = {}; g0 = []
    qend = [max(i for i, p in enumerate(pairs) if p[4] == sg) for sg in range(4)]
    for i, (b, u, q, kk, sg) in enumerate(pairs):
        m_ = [f"v_mfma_f32_32x32x16_bf16 {vr(ACC+32*sg+16*tau,16)}, {vr(WF+4*(i & 3),4)}, {xreg(kk,tau)}, {vr(ACC+32*sg+16*tau,16)}" for tau in range(2)]
        if i in gate_pairs:
            j = gate_pairs.index(i)
            m_.append(f"v_mfma_f32_32x32x16_bf16 {vr(GACC,16)}, {vr(GF+4*(j & 3),4)}, {xreg(j,0)}, {vr(GACC,16) if j else 0}")
        m_[0] = [NEED(("r", i)), m_[0]]
        g0.append(len(mf))
        if i + LEAD < 160: mand[len(mf)] = reads(i+LEAD)
        if i in first_of: post[len(mf)] = pf("A", f"u{first_of[i]}")
        if i in qend: post[len(mf)+1] = pf("A", f"q{qend.index(i)}")
        mf += m_
    g0.append(len(mf))
    sd = []; nxt = max(cfg.pre_chunks, 2)
    for e in range(NP):
        gb = g0[bar_pos[e]]; ge = g0[bar_pos[e+1]] - 1
        l = []; n = 0
        while nxt < NP and wearliest[periods[nxt][2]] <= e and nxt <= e + (2 if nxt < 10 else cfg.wlead) and (nxt <= e + 2 or n < (2 if S0 == 2 or e >= 10 else 1)):
            if nxt >= 10 and e < 8: break
            l += dma(nxt); nxt += 1; n += 1
        assert nxt > e + 1 or nxt == NP
        sd += [(x, gb, min(gb + int(j*cfg.dma_gap), ge) if e < 10 else ge) for j, x in enumerate(l)]
    assert nxt == NP
    gg = g0[gate_pairs[-1]+3]; gl = g0[40*S0-6]
    se = [(x, g0[4], gl) for x in bias[8*S0:24]] + [(f"v_mov_b32 v{V_GL}, v{GACC}\ns_nop 0", gg, gl)] + [(x, gg, gl) for x in bias[24:]] + \
         [([NEED("tag"), f"v_add_u32 v{V_TAG}, {hx(TAG_STEP)}, v{V_TAG}"], gg, gl)]
    spub = []
    NE, PD = cfg.ne, cfg.pd
    ga = 0
    for sg in range(3):
        ga0 = g0[qend[sg]+2]; ga = max(ga, ga0)
        l = epi(sg)
        se += [(x, ga0, ga + 1 + 2*(j//NE)) for j, x in enumerate(l)]
        se[-1] += ((0, pub(sg), 2*PD),)
        ga += 2*(len(l)//NE)
        if sg == 0: se += [(x, ga0, ga + 8) for x in gate]
    for i in range(LEAD): st(reads(i))
    sched(st, mf, cfg.cap, mand, [spub, se, sd] if cfg.epi_first else [spub, sd, se], post)
    st("s_nop 8", epi(3), pub(3))
    a(f"s_or_b32 s{S_T0}, s2, s{S_W}", f"s_cmp_lg_u32 s{S_T0}, 0", "s_cbranch_scc1 L_a_done",
      "v_and_b32 v3, 15, v1", "v_lshrrev_b32 v4, 4, v1", "v_lshlrev_b32 v2, 8, v4", "v_lshl_add_u32 v2, v3, 2, v2", f"v_add_u32 v2, {FL_Y}, v2",
      "v_lshlrev_b32 v3, 11, v3", "v_lshl_add_u32 v3, v4, 3, v3", f"v_add_u32 v3, {FL_H}, v3",
      "L_ep:", "s_sleep 8", "s_add_u32 s100, s100, 1", f"s_cmp_gt_u32 s100, {cfg.spin_limit}", "s_cbranch_scc1 L_exit",
      *[f"v_mov_b32 v{32+i}, 0" for i in range(5)],
      polls.op(32, 2, 0), polls.op(33, 2, 1024), polls.op(34, 2, 1536), polls.op(35, 3, 0), polls.op(36, 3, 16),
      "s_waitcnt vmcnt(0)", "v_mov_b32 v4, 0")
    for i in range(5): a(f"v_xor_b32 v{32+i}, v{32+i}, v{V_TAG}", f"v_or_b32 v4, v4, v{32+i}")
    a("v_cmp_ne_u32 vcc, 0, v4", "s_cbranch_vccnz L_ep",
      f"global_store_dword v{V_EP}, v{V_TAG}, s[{P_WS}:{P_WS+1}] sc1", "L_a_done:")

def kdesc(name):
    return f""".section .rodata,"a"
.p2align 6
.amdhsa_kernel {name}
  .amdhsa_next_free_vgpr 512
  .amdhsa_next_free_sgpr 102
  .amdhsa_accum_offset 256
  .amdhsa_group_segment_fixed_size 0
  .amdhsa_kernarg_size 144
  .amdhsa_user_sgpr_count 2
  .amdhsa_user_sgpr_kernarg_segment_ptr 1
  .amdhsa_system_sgpr_workgroup_id_x 1
.end_amdhsa_kernel
.text
"""
def khead(name):
    return f""".globl {name}
.p2align 8
.type {name},@function
{name}:
"""

def align8(a):
    import subprocess, re, os, tempfile
    d = tempfile.mkdtemp()
    open(d + "/a.s", "w").write('.amdgcn_target "amdgcn-amd-amdhsa--gfx950"\n.text\n' + NAME + "_kernel:\n" + a.text())
    subprocess.check_call(["clang", "-x", "assembler", "-target", "amdgcn-amd-amdhsa", "-mcpu=gfx950", "-c", d + "/a.s", "-o", d + "/a.o"])
    dis = subprocess.check_output(["llvm-objdump", "-d", "--mcpu=gfx950", d + "/a.o"], text=True)
    sizes = [4*len(m.group(1).split()) for m in re.finditer(r"// [0-9A-F]+: ([0-9A-F ]+?)(?: <.*)?$", dis, re.M)]
    idx = [i for i, l in enumerate(a.l) if not l.endswith(":")]
    assert len(idx) == len(sizes), (len(idx), len(sizes))
    WIDE = ("v_mul_f32", "v_add_f32", "v_sub_f32", "v_add_u32", "v_sub_u32", "v_subrev_u32", "v_mov_b32", "v_lshlrev_b32", "v_lshrrev_b32", "v_xor_b32",
            "v_and_b32", "v_or_b32", "v_exp_f32", "v_sin_f32", "v_cos_f32", "v_fract_f32", "v_rcp_f32", "v_min_u32", "v_max_u32", "v_max_i32", "v_mul_u32_u24")
    out = dict(); off = 0; n = len(idx); cand = None
    for j in range(n):
        line = a.l[idx[j]]; op = line.split()[0]
        if sizes[j] == 8 and off % 8 == 4:
            if cand is not None:
                l2 = a.l[idx[cand]]; o2 = l2.split()[0]
                a.l[idx[cand]] = l2.replace(o2, o2 + "_e64", 1); off += 4
            else:
                run = 0; mf = False
                while j + run < n and sizes[j+run] == 8:
                    mf |= "mfma" in a.l[idx[j+run]]; run += 1
                if run >= 6 and not mf: out[idx[j]] = "    s_nop 0"; off += 4
        if sizes[j] == 8: cand = None
        elif op in WIDE and off % 8 == 0: cand = j
        elif op in WIDE and cand is None: cand = j
        off += sizes[j]
    l = []
    for i, x in enumerate(a.l):
        if i in out: l.append(out[i])
        l.append(x)
    a.l = l

def build_fused(cfg):
    pf = Prof(cfg); a = Asm(); s0 = Stream(a)
    a(f"""
    s_cmp_ge_u32 s2, 256
    s_cbranch_scc1 L_exit
    s_load_dwordx16 s[4:19], s[0:1], 0
    s_load_dwordx16 s[20:35], s[0:1], 64
    s_load_dwordx4 s[36:39], s[0:1], 128
    v_lshrrev_b32 v2, 6, v0
    v_and_b32 v1, 63, v0
    s_and_b32 s{S_XCD}, s2, 7
    v_readfirstlane_b32 s{S_W}, v2
    s_lshr_b32 s{S_SLOT}, s2, 3
    s_mov_b32 s100, 0
    """)
    if cfg.codepf:
        a(f"""
        s_getpc_b64 s[66:67]
        s_lshl_b32 s68, s{S_SLOT}, 2
        s_add_u32 s68, s68, s{S_W}
        s_mul_i32 s68, s68, 384
        v_min_u32 v2, 2, v1
        v_lshl_add_u32 v2, v2, 7, s68
        v_min_u32 v2, L_code_end-{NAME}_kernel-128, v2
        global_load_dword a255, v2, s[66:67]
        """)
    a(f"s_cmp_lt_u32 s{S_SLOT}, 12", "s_cbranch_scc1 L_roleA")
    pb = Polls(cfg)
    parts = {}
    for role, fn in (("B", role_b), ("A", role_a)):
        b = Asm(); sb = Stream(b)
        sb(pf(role, "start_real", real=True), pf(role, "start"))
        fn(b, cfg, pf, pb)
        if cfg.prof: b("s_waitcnt vmcnt(0)")
        sb(pf(role, "end"), pf(role, "end_real", real=True))
        pf.flush(b, role)
        if role == "B": b("L_exit:")
        b("s_endpgm")
        b(*pb.tail); pb.tail = []
        k = b.l.index("@SPLIT:")
        parts[role] = (b.l[:k], b.l[k+1:])
    if cfg.layout:
        a.l += parts["B"][0]; a("s_branch L_bodyB", "L_roleA:"); a.l += parts["A"][0]; a("s_branch L_bodyA", "L_bodyB:")
        a.l += parts["B"][1]; a("L_bodyA:"); a.l += parts["A"][1]
    else:
        a.l += parts["B"][0] + parts["B"][1]; a("L_roleA:"); a.l += parts["A"][0] + parts["A"][1]
    a("L_code_end:", "s_endpgm")
    if cfg.align: align8(a)
    txt = "; @launch grid=(256,1,1) block=(256,1,1) lds=163840\n"
    txt += '.amdgcn_target "amdgcn-amd-amdhsa--gfx950"\n.text\n'
    txt += khead(NAME + "_kernel") + a.text() + kdesc(NAME + "_kernel")
    return txt, pf

if __name__ == "__main__":
    cfg = Cfg()
    for kv in sys.argv[2:]:
        k, v = kv.split("="); setattr(cfg, k, eval(v))
    open(sys.argv[1], "w").write(build_fused(cfg)[0])
```

```python
import sys, struct

NAME = "gated_mix__ssm_conv_s4__dense_activation_squared_relu__prompt"

def f2u(x): return struct.unpack("<I", struct.pack("<f", x))[0]
def hx(x): return "0x%08x" % (x & 0xffffffff)

class Asm:
    def __init__(self):
        self.l = []
    def __call__(self, *lines):
        for s in lines:
            for t in s.split("\n"):
                t = t.strip()
                if t:
                    self.l.append(t if t.endswith(":") else "    " + t)
    def text(self): return "\n".join(self.l) + "\n"

def vr(a, n=1, p="v"): return f"{p}{a}" if n == 1 else f"{p}[{a}:{a+n-1}]"
def ar(a, n=1): return vr(a, n, "a")
def sr(a, n=1): return vr(a, n, "s")

def weave(main, fill, start=0, end=None):
    end = len(main) if end is None else end
    out = []; n = end - start; k = 0
    for i, m in enumerate(main):
        out.append(m)
        if start <= i < end:
            tgt = (len(fill)*(i-start+1) + n - 1)//n
            while k < tgt:
                out.append(fill[k]); k += 1
    assert k == len(fill)
    return out
def insert(main, pos_items):
    out = []
    for i, m in enumerate(main):
        out += pos_items.get(i, [])
        out.append(m)
    assert all(k < len(main) for k in pos_items)
    return out

class Stream:
    def __init__(self, a):
        self.a = a; self.n = {"vm": 0, "lg": 0}; self.done = {"vm": 0, "lg": 0}; self.tok = {}
    def __call__(self, *l): self.run(l)
    def op(self, kind, ins, tag=None):
        self.a(ins); self.n[kind] += 1
        if tag is not None: self.tok[tag] = (kind, self.n[kind])
    def need(self, *tags):
        w = {}
        for t in tags:
            k, i = self.tok[t]
            if i > self.done[k]: w[k] = max(w.get(k, 0), i)
        parts = []
        for k, i in w.items():
            left = min(self.n[k] - i, 63 if k == "vm" else 15)
            self.done[k] = self.n[k] - left
            parts.append(f"{'vmcnt' if k == 'vm' else 'lgkmcnt'}({left})")
        if parts: self.a("s_waitcnt " + " ".join(parts))
    def drain(self, kind):
        if self.done[kind] < self.n[kind]:
            self.a(f"s_waitcnt {'vmcnt' if kind == 'vm' else 'lgkmcnt'}(0)"); self.done[kind] = self.n[kind]
    def run(self, items):
        for it in items:
            if callable(it): it(self)
            elif isinstance(it, (list, tuple)): self.run(it)
            else:
                for t in it.split("\n"):
                    t = t.strip()
                    assert not t.startswith(("ds_", "buffer_", "global_")), t
                self.a(it)
def _c(f, c): f.cost = c; return f
def VM(ins, tag=None): return _c(lambda s: s.op("vm", ins, tag), 16 if "store_dwordx4" in ins else 14 if ins.endswith("lds") else 10)
def LG(ins, tag=None): return _c(lambda s: s.op("lg", ins, tag), 16 if "write_b128" in ins else 8 if "write" in ins else 4.5)
def NEED(*t): return _c(lambda s: s.need(*t), 4)
def DRAIN(k): return _c(lambda s: s.drain(k), 4)
def M0GAP(s):
    if "m0," in s.a.l[-1]: s.a("s_nop 0")
def cost(it):
    if callable(it): return getattr(it, "cost", 0)
    if isinstance(it, (list, tuple)): return sum(cost(x) for x in it)
    c = 0
    for t in it.split("\n"):
        t = t.strip()
        if not t or t.endswith(":"): continue
        op = t.split()[0]
        if op == "s_barrier": c += 8
        elif op.startswith("s_"): c += 4
        elif op.startswith(("v_exp", "v_rcp", "v_sin", "v_cos")): c += 8
        elif op in ("v_mul_f32", "v_add_u32", "v_mov_b32", "v_lshlrev_b32", "v_lshrrev_b32", "v_xor_b32", "v_and_b32", "v_sub_u32", "v_add_f32", "v_sub_f32") and "0x" not in t: c += 4
        else: c += 5
    return c
def sched(st, mf, cap, mand, streams, post=None):
    streams = [list(x) for x in streams]
    for g in range(len(mf)):
        st(mf[g])
        used = cost(mand.get(g, []))
        if g + 1 < len(mf) and isinstance(mf[g+1], list): used += cost(mf[g+1][:-1])
        st(mand.get(g, []))
        while True:
            pick = None
            for q in streams:
                if q and q[0][1] <= g and min(x[2] for x in q) <= g: pick = q; break
            if pick is None:
                for q in streams:
                    if q and q[0][1] <= g and (used == 0 or used + cost(q[0][0]) <= (cap(g) if callable(cap) else cap)): pick = q; break
            if pick is None: break
            x = pick.pop(0); it = x[0]; used += cost(it); st(it)
            if len(x) > 3:
                gp = min(g + x[3][2], len(mf) - 2); streams[x[3][0]].append((x[3][1], gp, gp + 1) + tuple(x[3][3:])); streams[x[3][0]].sort(key=lambda y: y[1])
        if post and g in post: st(post[g])
    assert not any(streams), [len(q) for q in streams]
def paced(items, g0, g1, slack):
    n = len(items)
    return [(it, g0 + j*(g1-g0)//n, g0 + j*(g1-g0)//n + slack) for j, it in enumerate(items)]

H_OFF    = 0
YA_OFF   = 6 << 20
G_OFF    = 11 << 20
FL_OFF   = (12 << 20) + 65536
FL_H     = FL_OFF
FL_Y     = FL_H + 32768
OOB      = 0x7ffff000
EP_OFF   = FL_OFF - 4096
TAG_STEP = 0x9e3779b1
PROF_OFF = 13 << 20
DBG_OFF  = 14 << 20
WS_SIZE  = 268435456

P_U, P_ARE, P_AIM, P_BRE, P_BIM, P_CRE, P_CIM, P_LDT = 4, 6, 8, 10, 12, 14, 16, 18
P_DSK, P_BX, P_W1, P_B1, P_W2, P_B2, P_GATE, P_OUT = 20, 22, 24, 26, 28, 30, 32, 34
P_DBG, P_WS = 36, 38
S_W, S_XCD, S_SLOT, S_IDX = 40, 41, 42, 43
SRD_U, SRD_W, SRD_WS, SRD_OUT = 44, 48, 52, 56
S_T0, S_T1, S_T2, S_T3 = 66, 67, 68, 69
S_PROF = 70
WS = f"s[{SRD_WS}:{SRD_WS+3}]"

class Cfg:
    prof = False
    fused = True
    allreal = False
    xtouch = False
    krot = True
    hrot = True
    h0_it = 8
    codepf = True
    fine = False
    show = 'setup0 kgen1 kgen2 ubar h0pre h0seen k0 k48 h3pre h3seen g2'
    spin_limit = 200000
    sleep = 2
    g_pos = ((0,4),(0,10),(1,12),(2,2)); tr1 = 3; w0touch = False
    ntx = ''
    nt = ''
    wb = 4
    wk = (); w_last = 8; rs = 4; rd = 6; stream = 11; burst = 11; leads = (11, 11, 11); yst = 0; ysfirst = False; ylat = 18; ht = 0; mp = (6, 10); ownfirst = False; early = True; nput = 0
    ct = (0, (2, 14))
    gswap = True; wrot = True; deep = True
    exp = ''
    showa = 'u0 u1 u2 u3 u5 q0 pub0 q1 q2 q3 pub3'
    gate_all = True
    w1t = (2, 10)
    wt_pos = ()
    w_early = 0
    hs = (8, 34, 60); pl = 10; ys = 44; yn = 9; yp = 20
    ne = (16, 4, 4); pd = (11, 10, 10); wmin = 2; paced = 9; cap = 20; cap2 = 27; pre_chunks = 2; dma_gap = 1.7; crot = True; s0 = 2; head1 = 5; wlead = 4; gate_at = 0; alead = 3; epi_first = True; align = True; layout = False

def srd(d, p, size):
    return [f"s_mov_b32 s{d}, s{p}", f"s_mov_b32 s{d+1}, s{p+1}", f"s_mov_b32 s{d+2}, {hx(size)}", f"s_mov_b32 s{d+3}, 0x20000"]

class Prof:
    def __init__(self, cfg): self.cfg = cfg; self.names = {}
    def __call__(self, role, name, real=False):
        if not self.cfg.prof or not (name in (self.cfg.showa if role == "A" else self.cfg.show).split() or name in ("start", "end", "start_real", "end_real")): return []
        def f(s):
            l = self.names.setdefault(role, [])
            i = len(l); assert i < 15; l.append(name)
            s.a(f"{'s_memrealtime' if (real or self.cfg.allreal) else 's_memtime'} s[{S_PROF+2*i}:{S_PROF+2*i+1}]")
        return [f]
    def flush(self, a, role):
        if not self.cfg.prof: return
        n = len(self.names[role])
        a("s_waitcnt lgkmcnt(0)",
          f"s_lshl_b32 s60, s2, 2", f"s_add_u32 s60, s60, s{S_W}", "s_lshl_b32 s60, s60, 6",
          f"s_add_u32 s60, s60, {PROF_OFF}", "v_mov_b32 v2, s60")
        for i in range(n):
            a(f"v_mov_b32 v3, s{S_PROF+2*i}", f"global_store_dword v2, v3, s[{P_WS}:{P_WS+1}] offset:{4*i}")
        a("s_waitcnt vmcnt(0)")

class Polls:
    def __init__(self, cfg): self.tail = []; self.n = 0; self.cfg = cfg
    def issue(self, tag, vreg, vaddr, off): return [f"v_mov_b32 v{vreg}, 0", VM(self.op(vreg, vaddr, off), tag)]
    def op(self, vreg, vaddr, off): return f"buffer_atomic_or v{vreg}, v{vaddr}, {WS}, 0 offen offset:{off} sc0 sc1"
    def check(self, tag, vreg, vtag, vaddr, off, mask, pf=None, nm=None):
        i = self.n; self.n += 1
        test = f"v_cmp_ne_u32 vcc, v{vtag}, v{vreg}\ns_and_b32 vcc_lo, vcc_lo, {mask}\ns_cbranch_scc1 L_spin{i}"
        self.tail += [f"L_spin{i}:", f"s_sleep {self.cfg.sleep}", "s_add_u32 s100, s100, 1", f"s_cmp_gt_u32 s100, {self.cfg.spin_limit}", "s_cbranch_scc1 L_exit",
                      f"v_mov_b32 v{vreg}, 0", self.op(vreg, vaddr, off), "s_waitcnt vmcnt(0)", test, f"s_branch L_back{i}"]
        return (pf("B", nm+"pre") if pf else []) + [NEED(tag)] + (pf("B", nm+"got") if pf else []) + [test + f"\nL_back{i}:"]

def one_lane(v): return [f"v_min_u32 v{v}, 1, v1", f"v_sub_u32 v{v}, 0, v{v}", f"v_and_b32 v{v}, {hx(OOB)}, v{v}"]
def flag_set(vtag, v1l, soff, off=0): return VM(f"buffer_atomic_swap v{vtag}, v{v1l}, {WS}, s{soff} offen offset:{off} sc1")

RSTRIDE = 14656
TROW    = 272
KB_OFF  = 2240
TT_OFF  = 4384
NDMA    = 14
U_LDS   = 4*RSTRIDE
W2_LDS  = U_LDS + 18432
def w2slot(u):
    if u < 10: return W2_LDS + 8192*u
    if u < 14: return RSTRIDE*(u-10) + 4864
    if u < 16: return U_LDS + 8192*(u-14)
    return W2_LDS + 8192*(u-16)

HI_VALS = [0,1,2,3,4,5,6,7, 256,258,260,262, 512,516,768,772, 1024,1280,1536,1792,2048]
def hi_row(v): return 32 + HI_VALS.index(v)
ROWMAP_REG = [
    [0,1,2,3,4,5,6,7, 512,516,1024,1536, 2048,2048,2048,2048],
    [256,256,258,260,260,260,262,262, 768,772,1280,1792, 1792,1792,1792,1792]]
def rowmap(m):
    i, half, j = m >> 3, (m >> 2) & 1, m & 3
    return hi_row(ROWMAP_REG[half][4*i+j]) - 32

def cmul(d, x, z, t, conj=False, scalar=False):
    if scalar:
        n1, n2 = ("", "-") if conj else ("-", "")
        return [f"v_mul_f32 v{t}, v{x}, v{z}", f"v_mul_f32 v{t+1}, v{x}, v{z+1}",
                f"v_fma_f32 v{d}, {n1}v{x+1}, v{z+1}, v{t}", f"v_fma_f32 v{d+1}, v{x+1}, v{z}, {n2}v{t+1}"]
    neg = "neg_hi:[1,0,0]" if conj else "neg_lo:[1,0,0]"
    return [f"v_pk_mul_f32 {vr(t,2)}, {vr(x,2)}, {vr(z,2)} op_sel_hi:[1,0]",
            f"v_pk_fma_f32 {vr(d,2)}, {vr(x,2)}, {vr(z,2)}, {vr(t,2)} op_sel:[1,1,0] op_sel_hi:[0,1,1] {neg}"]

def role_b(a, cfg, pf, polls):
    st = Stream(a)
    S_CH, S_RB, S_M1, S_M2 = 60, 61, 62, 64
    S_RBK, S_D10, S_TB, S_LW, S_WO, S_HO, S_H2, S_UQ = 56, 57, 3, 26, 27, 32, 33, 59
    S_CHO, S_CWO = 4, 10
    S_DM = 16
    VP = 10; V_LDT, V_DSK, V_DT, V_DTL, V_DTP = 28, 29, 30, 31, 32
    VRAW = 34
    Z1, Z8, Z256, X, T, SV, CV = 40, 42, 44, 46, 48, 50, 58
    D = 64
    Q = 80
    V_AA, V_BA, V_F, V_G = 112, 113, 114, 118
    V_GD, V_TR, V_TS = 125, 127, 128
    S_GB, S_GO = 22, (58, 0, 1, 101)
    V_L16, V_Z, V_PU, V_PH, V_PY, V_POLL, V_TAG = 131, 132, 133, 134, 135, 136, 137
    V_YW, V_YR, V_W2, V_RW, V_T, V_YA, V_OUT, V_KW, V_KP = 138, 139, 140, 142, 148, 149, 150, 151, 152
    V_WT, V_WW, V_JUNK, V_GT, V_OG, V_OW, V_OR = 153, 122, 155, 156, 157, 158, 159
    ACC2, ACC = 160, 224
    WF, YA, GA, B2R = 224, 44, 8, 44
    FA, FB = 128, 160
    F0, G0, F1, G1 = 128, 160, 192, 224
    def rawreg(u, i): return ar(8*(u-NDMA) + 4*i, 4)
    GS, TF = 80, 112
    SD, BX, V_TT, V_TW, V_TA, V_TM, V_G9 = 64, 96, 104, 105, 106, 107, 117
    def gather(j, restore=True):
        return [f"s_add_u32 m0, s{S_UQ}, {2048*j}\ns_nop 0"] + \
               [VM(f"buffer_load_dwordx4 v{V_GD+i}, s[{SRD_U}:{SRD_U+3}], s{S_GO[j]} offen offset:{1024*i} lds", ("raw", j)) for i in range(2)] + \
               ([f"s_mov_b32 m0, s{S_RB}\ns_nop 0"] if restore else [])
    def gblock(j): return [f"s_add_u32 s{S_T1}, s{S_T3}, {4*j}", f"s_and_b32 s{S_T1}, s{S_T1}, 15", f"s_lshl_b32 s{S_GB+j}, s{S_T1}, 10", f"s_mul_i32 s{S_GO[j]}, s{S_T1}, {128*1280}"]
    st(f"""
    s_mul_i32 s{S_IDX}, s{S_XCD}, 20
    s_add_u32 s{S_IDX}, s{S_IDX}, s{S_SLOT}
    s_sub_u32 s{S_IDX}, s{S_IDX}, 12
    s_lshl_b32 s{S_CH}, s{S_IDX}, 2
    s_add_u32 s{S_CH}, s{S_CH}, s{S_W}
    s_mul_i32 s{S_T0}, s{S_CH}, 384
    v_lshl_add_u32 v2, v1, 2, s{S_T0}
    v_lshl_add_u32 v4, v1, 1, s{S_T0}
    s_lshl_b32 s{S_T0}, s{S_CH}, 1
    v_mov_b32 v3, s{S_T0}
    v_mov_b32 v{V_LDT}, 0
    s_lshl_b32 s{S_UQ}, s{S_W}, 13
    s_add_u32 s{S_UQ}, s{S_UQ}, {W2_LDS + 2*8192}
    s_lshr_b32 s{S_T0}, s{S_IDX}, 1
    s_and_b32 s{S_T3}, s{S_T0}, {2 if cfg.gswap else 0}
    s_xor_b32 s{S_T3}, s{S_T3}, s{S_CH}
    s_lshl_b32 s{S_T0}, s{S_T0}, 4
    v_mov_b32 v8, 1280
    v_mad_u32_u24 v{V_GD}, v1, v8, s{S_T0}
    v_add_u32 v{V_GD+1}, {64*1280-1024}, v{V_GD}
    s_mov_b32 s{SRD_U+2}, {2048*1280}
    s_mov_b32 s{SRD_U+3}, 0x20000
    s_and_b32 s{S_T1}, s{S_T3}, 15
    s_mul_i32 s{S_GO[0]}, s{S_T1}, {128*1280}
    s_waitcnt lgkmcnt(0)
    """)
    st(pf("B", "karg"))
    st(VM(f"global_load_short_d16_hi v{V_LDT}, v3, s[{P_LDT}:{P_LDT+1}]", "ldt"))
    PP = (P_ARE, P_AIM, P_BRE, P_BIM, P_CRE, P_CIM)
    for k, p in enumerate(PP): st(VM(f"global_load_dword v{VRAW+k}, v2, s[{p}:{p+1}] {cfg.nt}", "p01"))
    for i in list(range(VP+12, VP+18)) + [V_DSK]: st(f"v_mov_b32 v{i}, 0")
    st(f"v_mov_b32 v9, {EP_OFF}")
    st([VM(f"global_load_short_d16_hi v{VP+12+k}, v4, s[{p}:{p+1}] offset:256 {cfg.nt}", "p2") for k, p in enumerate(PP)],
       VM(f"global_load_short_d16_hi v{V_DSK}, v3, s[{P_DSK}:{P_DSK+1}]", "dsk"), VM(f"global_load_dword v{V_TAG}, v9, s[{P_WS}:{P_WS+1}] sc1", "tag"))
    st(srd(SRD_U, P_U, 0)[:2])
    st(f"""
    s_and_b32 s{S_RBK}, s{S_XCD}, 6
    s_lshl_b32 s{S_RBK}, s{S_RBK}, 1
    s_and_b32 s{S_T0}, s{S_SLOT}, 3
    s_add_u32 s{S_RBK}, s{S_RBK}, s{S_T0}
    s_lshl_b32 s{S_TB}, s{S_RBK}, 2
    s_add_u32 s{S_TB}, s{S_TB}, s{S_W}
    s_lshr_b32 s{S_D10}, s{S_SLOT}, 2
    s_sub_u32 s{S_D10}, s{S_D10}, 3
    v_and_b32 v5, 31, v1
    """)
    V_W1T = 33
    if cfg.xtouch: st(f"""
    s_mul_i32 s{S_T2}, s{S_TB}, {32*1280}
    s_lshl_b32 s{S_T0}, s{S_D10}, 8
    s_add_u32 s{S_T0}, s{S_T0}, s{S_T2}
    v_lshrrev_b32 v6, 1, v1
    v_mul_u32_u24 v6, 1280, v6
    v_and_b32 v7, 1, v1
    v_lshl_add_u32 v6, v7, 7, v6
    """, VM(f"buffer_load_dword v{V_JUNK}, v6, s[{SRD_U}:{SRD_U+3}], s{S_T0} offen"))
    if cfg.w1t or cfg.w0touch: st(f"""
    s_lshl_b32 s{S_T0}, s{S_SLOT}, 2
    s_add_u32 s{S_T0}, s{S_T0}, s{S_W}
    s_sub_u32 s{S_T0}, s{S_T0}, 48
    s_mul_i32 s{S_T0}, s{S_T0}, {8*3072}
    s_and_b32 s{S_T2}, s{S_XCD}, 1
    s_mul_i32 s{S_T2}, s{S_T2}, 1536
    s_add_u32 s{S_T0}, s{S_T0}, s{S_T2}
    v_and_b32 v4, 7, v1
    v_mul_u32_u24 v4, 3072, v4
    v_bfe_u32 v6, v1, 3, 2
    v_min_u32 v6, 2, v6
    v_lshl_add_u32 v4, v6, 9, v4
    v_add_u32 v{V_W1T}, s{S_T0}, v4
    """)
    if cfg.w0touch: st(f"v_lshrrev_b32 v6, {7-cfg.s0}, v1", f"v_lshl_add_u32 v6, v6, 7, v{V_W1T}", VM(f"global_load_dword v{V_JUNK}, v6, s[{P_W1}:{P_W1+1}]"))
    if cfg.g_pos[0] == "head": st(gather(0, False))
    a("@SPLIT:")
    st(pf("B", "body"))
    st(f"""
    s_mul_i32 s{S_RB}, s{S_W}, {RSTRIDE}
    s_and_b32 s{S_T0}, s{S_XCD}, 1
    s_mul_i32 s{S_T0}, s{S_T0}, 5
    s_add_u32 s{S_D10}, s{S_D10}, s{S_T0}
    """)
    st(srd(SRD_WS, P_WS, WS_SIZE), srd(SRD_W, P_W2, 1536*1280))
    st(f"s_lshl_b32 s{S_T1}, s{S_D10}, 7")
    st(f"s_mov_b32 m0, s{S_RB}", "v_mov_b32 v9, 0x3f80",
       f"s_mov_b32 s{S_M1}, 0", f"s_mov_b32 s{S_M1+1}, -1",
       LG("ds_write_addtid_b32 v9"),
       f"s_mov_b32 s{S_M2}, 0xaaaaaaaa", f"s_mov_b32 s{S_M2+1}, 0xaaaaaaaa",
       "v_mov_b32 v6, 0", "v_mov_b32 v7, 0", "v_lshlrev_b32 v9, 3, v0", f"v_add_u32 v9, {U_LDS+16384}, v9",
       LG("ds_write_b64 v9, v[6:7]"))
    st("v_lshrrev_b32 v3, 5, v1", f"v_lshl_add_u32 v6, v3, 4, s{S_RB}",
       f"v_mov_b32 v8, {TROW}", f"v_mad_u32_u24 v{V_BA}, v5, v8, v6", "v_mov_b32 v7, 32")
    for k in range(5):
        mask = sum(((rowmap(m) >> k) & 1) << m for m in range(32))
        st(f"s_mov_b32 s{S_T0}, {hx(mask)}", f"v_bfe_u32 v9, s{S_T0}, v5, 1", f"v_lshl_add_u32 v7, v9, {k}, v7")
    st(f"v_mad_u32_u24 v{V_AA}, v7, v8, v6")
    st(f"""
    s_mul_i32 s{S_WO}, s{S_W}, {16*1280}
    s_add_u32 s{S_WO}, s{S_WO}, s{S_T1}
    s_lshl_b32 s{S_LW}, s{S_W}, 11
    s_mul_i32 s{S_HO}, s{S_TB}, {96*1024}
    v_lshrrev_b32 v2, 3, v1
    v_and_b32 v4, 2, v2
    v_and_b32 v5, 7, v1
    v_xor_b32 v4, v4, v5
    v_lshlrev_b32 v4, 4, v4
    v_mov_b32 v8, 1280
    v_mad_u32_u24 v{V_W2}, v2, v8, v4
    v_add_u32 v{V_W2+1}, {8*1280-1024}, v{V_W2}
    v_lshlrev_b32 v{V_L16}, 4, v1
    v_mov_b32 v{V_Z}, 0
    v_lshl_add_u32 v154, v3, 6, s{S_T1}
    """)
    if cfg.wt_pos: st(f"""
    s_and_b32 s{S_T0}, s{S_TB}, 15
    s_mul_i32 s{S_T0}, s{S_T0}, 48
    v_min_u32 v4, 47, v1
    v_add_u32 v4, s{S_T0}, v4
    v_and_b32 v5, 0x380, v4
    v_add_u32 v4, v4, v5
    v_mad_u32_u24 v{V_WT}, v4, v8, s{S_T1}
    """)
    V_CT = 129
    if cfg.ct: st(f"""
    s_sub_u32 s{S_T0}, s{S_SLOT}, 12
    s_lshl_b32 s{S_T0}, s{S_T0}, 2
    s_add_u32 s{S_T0}, s{S_T0}, s{S_W}
    s_lshr_b32 s{S_T2}, s{S_XCD}, 1
    s_mul_i32 s{S_T2}, s{S_T2}, 80
    s_add_u32 s{S_T0}, s{S_T0}, s{S_T2}
    s_mul_i32 s{S_T0}, s{S_T0}, {2*3072}
    s_and_b32 s{S_T2}, s{S_XCD}, 1
    s_mul_i32 s{S_T2}, s{S_T2}, 1536
    s_add_u32 s{S_T0}, s{S_T0}, s{S_T2}
    v_and_b32 v4, 3, v1
    v_max_u32 v4, {cfg.s0}, v4
    v_bfe_u32 v5, v1, 2, 2
    v_min_u32 v5, 2, v5
    v_lshl_add_u32 v4, v5, 2, v4
    v_bfe_u32 v5, v1, 4, 1
    v_mad_u32_u24 v4, v5, 24, v4
    v_lshl_add_u32 v{V_CT}, v4, 7, s{S_T0}
    s_mul_i32 s{S_T0}, s{S_TB}, {24*1280}
    s_add_u32 s{S_T0}, s{S_T0}, s{S_T1}
    v_min_u32 v4, 23, v1
    v_mad_u32_u24 v{V_CT+1}, v4, v8, s{S_T0}
    """)
    ctouch = [[VM(f"global_load_dword v{V_JUNK}, v{V_CT}, s[{P_W1}:{P_W1+1}]")], [VM(f"buffer_load_dword v{V_JUNK}, v{V_CT+1}, s[{SRD_W}:{SRD_W+3}], 0 offen")]]
    def tables():
        l = []
        if cfg.hrot:
            l += [f"s_sub_u32 s{S_T0}, s{S_SLOT}, 12", f"s_lshr_b32 s{S_T0}, s{S_T0}, 2"]
            if cfg.wrot: l += f"""s_and_b32 s{S_T1}, s{S_RBK}, 3
            s_mul_i32 s{S_T1}, s{S_T1}, 3
            s_add_u32 s{S_T1}, s{S_T1}, 1
            s_lshr_b32 s{S_T1}, s{S_T1}, 1
            s_add_u32 s{S_T0}, s{S_T0}, s{S_T1}
            s_lshr_b32 s{S_T1}, s{S_RBK}, 2
            s_add_u32 s{S_T0}, s{S_T0}, s{S_T1}
            s_mul_i32 s{S_T1}, s{S_T0}, 43
            s_lshr_b32 s{S_T1}, s{S_T1}, 8
            s_mul_i32 s{S_T1}, s{S_T1}, 6
            s_sub_u32 s{S_T0}, s{S_T0}, s{S_T1}""".split("\n")
        else: l += [f"s_mov_b32 s{S_T0}, 0"]
        for p in range(6):
            l += [f"s_lshl_b32 s{S_T1}, s{S_T0}, 12", f"s_add_u32 s{S_CHO+p}, s{S_T1}, s{S_HO}",
                  f"s_mul_i32 s{S_T1}, s{S_T0}, {256*1280}", f"s_add_u32 s{S_CWO+p}, s{S_T1}, s{S_WO}"]
            if p < 5: l += [f"s_add_u32 s{S_T0}, s{S_T0}, 1", f"s_cmp_eq_u32 s{S_T0}, 6\ns_cselect_b32 s{S_T0}, 0, s{S_T0}"]
        if cfg.ownfirst: l[len(l)-34:len(l)-34] = [f"s_and_b32 s{S_T0}, s{S_XCD}, 1", f"s_mul_i32 s{S_T0}, s{S_T0}, 3"]
        return l
    S_GB = (18, 19, 22, 23)
    for j in range(4):
        st(f"s_add_u32 s{S_T1}, s{S_T3}, {4*j}", f"s_and_b32 s{S_T1}, s{S_T1}, 15", f"s_lshl_b32 s{S_GB[j]}, s{S_T1}, 10")
        if j: st(f"s_mul_i32 s{S_GO[j]}, s{S_T1}, {128*1280}")
    st(f"""
    v_bfe_u32 v2, v1, 2, 2
    v_and_b32 v4, 3, v1
    v_lshrrev_b32 v5, 4, v1
    v_lshl_add_u32 v6, v5, 2, v4
    v_lshl_add_u32 v6, v6, 3, 3
    v_sub_u32 v6, v6, v2
    s_and_b32 s{S_T0}, s{S_IDX}, 1
    s_lshl_b32 s{S_T0}, s{S_T0}, 3
    s_add_u32 s{S_T0}, s{S_T0}, s{S_UQ}
    v_lshl_add_u32 v{V_TR}, v6, 4, s{S_T0}
    v_xor_b32 v6, v4, v5
    v_xor_b32 v6, 3, v6
    v_and_b32 v7, 60, v1
    v_sub_u32 v6, v6, v7
    v_lshlrev_b32 v6, 4, v6
    v_add_u32 v{V_TS}, {U_LDS + 64*255}, v6
    v_and_b32 v6, 15, v1
    """)
    st(f"v_lshl_add_u32 v9, v5, 4, s{S_RB}",
       "v_add_u32 v7, 1, v6", "v_and_b32 v7, 30, v7", "v_lshl_add_u32 v7, v7, 1, v9",
       f"v_add_u32 v8, {KB_OFF}, v7", f"v_cndmask_b32 v{V_F}, v8, v7, s[{S_M2}:{S_M2+1}]")
    for i in range(1, 3): st(f"v_add_u32 v{V_F+i}, {1024*i}, v{V_F}")
    st(f"""
    v_lshrrev_b32 v7, 1, v1
    s_add_u32 s{S_T0}, s{S_RB}, {TT_OFF+64}
    v_lshl_add_u32 v{V_TW}, v7, 2, s{S_T0}
    v_min_u32 v7, 1, v5
    v_mul_u32_u24 v7, {KB_OFF}, v7
    v_lshl_add_u32 v7, v3, 6, v7
    v_lshl_add_u32 v7, v6, 2, v7
    s_add_u32 s{S_T0}, s{S_RB}, 2080
    v_add_u32 v{V_TA}, s{S_T0}, v7
    s_mov_b32 s{S_T0}, 0x30003
    v_bfe_i32 v7, s{S_T0}, v1, 1
    v_cndmask_b32 v{V_TM}, v7, 0, s[{S_M1}:{S_M1+1}]
    s_mov_b32 s{S_T0}, 0xffff
    v_writelane_b32 v{V_TM}, s{S_T0}, 2
    """)
    st("v_lshlrev_b32 v7, 1, v6", "v_sub_u32 v7, v5, v7")
    for r in range(4):
        st(f"v_add_u32 v8, {30+4*r+U_LDS//64}, v7", f"v_add_u32 v9, {30+4*r}, v7", "v_bfe_u32 v9, v9, 2, 2", f"v_xor_b32 v9, s{S_W}, v9",
           "v_lshlrev_b32 v9, 4, v9", f"v_lshl_add_u32 v{V_G+r}, v8, 6, v9")
    st(f"""
    v_add_u32 v{V_KW}, s{S_RB}, v{V_L16}
    v_sub_u32 v7, 7, v1
    v_max_i32 v7, 0, v7
    v_lshl_add_u32 v{V_KP}, v7, 2, s{S_RB}
    """)
    box = ""
    for j, (msk, sh) in enumerate(((0x7f, 20), (0x1ff, 19))):
        box += f"""
        v_sub_u32 v4, {sh}, v6
        v_mov_b32 v7, {msk}
        v_lshlrev_b32 v4, v4, v7
        v_lshrrev_b32 v4, v2, v4
        """
        for d in range(4): box += f"""
        v_bfe_u32 v7, v4, {2*d}, 2
        v_mul_u32_u24 v7, 0x8001, v7
        v_and_b32 v7, 0x10001, v7
        v_mul_u32_u24 v{BX+4*j+d}, 0x3f80, v7
        """
    late = f"""
    v_and_b32 v6, 15, v1
    v_lshrrev_b32 v5, 4, v1
    v_lshlrev_b32 v7, 1, v6
    v_sub_u32 v7, v5, v7
    v_add_u32 v4, {31+U_LDS//64}, v7
    v_add_u32 v7, 31, v7
    v_bfe_u32 v7, v7, 2, 2
    v_xor_b32 v7, s{S_W}, v7
    v_lshlrev_b32 v7, 4, v7
    v_lshl_add_u32 v{V_G9}, v4, 6, v7
    v_lshlrev_b32 v7, 2, v5
    v_sub_u32 v7, v6, v7
    s_add_u32 s{S_T0}, s{S_RB}, {TT_OFF+52}
    v_lshl_add_u32 v{V_TT}, v7, 2, s{S_T0}
    @addr
    v_lshlrev_b32 v2, 3, v5
    {box}
    @box
    s_lshr_b32 s{S_T0}, s{S_TB}, 1
    s_lshl_b32 s{S_T0}, s{S_T0}, 10
    s_add_u32 s{S_T0}, s{S_T0}, {FL_H}
    v_lshl_add_u32 v7, v1, 2, s{S_T0}
    v_subrev_u32 v6, 12, v1
    v_ashrrev_i32 v6, 31, v6
    v_mov_b32 v5, {hx(OOB)}
    v_bfi_b32 v{V_PH}, v6, v7, v5
    s_lshr_b32 s{S_T0}, s{S_RBK}, 2
    s_mul_i32 s{S_T0}, s{S_T0}, 10
    s_add_u32 s{S_T0}, s{S_T0}, s{S_D10}
    s_lshl_b32 s{S_T0}, s{S_T0}, 8
    s_add_u32 s{S_T0}, s{S_T0}, {FL_Y}
    v_lshl_add_u32 v7, v1, 2, s{S_T0}
    v_subrev_u32 v6, 16, v1
    v_ashrrev_i32 v6, 31, v6
    v_bfi_b32 v{V_PY}, v6, v7, v5
    v_subrev_u32 v6, 1, v1
    v_ashrrev_i32 v6, 31, v6
    v_bfi_b32 v{V_PU}, v6, 0, v5
    v_and_b32 v5, 31, v1
    v_lshrrev_b32 v3, 5, v1
    s_lshl_b32 s{S_T1}, s{S_D10}, 7
    s_lshl_b32 s{S_T0}, s{S_TB}, 5
    v_add_u32 v7, s{S_T0}, v5
    s_lshl_b32 s{S_T2}, s{S_TB}, 10
    v_lshl_add_u32 v{V_T}, v5, 2, s{S_T2}
    v_lshlrev_b32 v6, 17, v3
    v_lshl_add_u32 v{V_YA}, v7, 3, v6
    v_and_b32 v6, 7, v1
    v_lshrrev_b32 v7, 3, v1
    s_mul_i32 s{S_T0}, s{S_T0}, 1280
    s_add_u32 s{S_T0}, s{S_T0}, s{S_T1}
    v_mul_u32_u24 v4, 1280, v7
    v_lshl_add_u32 v4, v6, 4, v4
    v_add_u32 v{V_OUT}, s{S_T0}, v4
    s_lshl_b32 s{S_T0}, s{S_W}, 12
    s_add_u32 s{S_T0}, s{S_T0}, {W2_LDS + 8*8192}
    v_xor_b32 v4, v6, v7
    v_lshl_add_u32 v4, v4, 4, s{S_T0}
    v_lshl_add_u32 v{V_OR}, v7, 7, v4
    v_lshlrev_b32 v4, 2, v3
    v_xor_b32 v4, v4, v6
    v_lshl_add_u32 v4, v4, 4, s{S_T0}
    v_lshl_add_u32 v{V_OW}, v5, 7, v4
    v_bfe_u32 v2, v1, 2, 2
    v_lshl_add_u32 v4, v3, 2, v2
    v_lshlrev_b32 v4, 7, v4
    v_lshrrev_b32 v5, 1, v2
    v_lshl_add_u32 v4, v5, 5, v4
    v_and_b32 v5, 1, v1
    v_lshl_add_u32 v4, v5, 6, v4
    v_bfe_u32 v5, v1, 4, 1
    v_lshl_add_u32 v4, v5, 4, v4
    v_bfe_u32 v5, v1, 1, 1
    v_lshl_add_u32 v{V_RW}, v5, 3, v4
    v_xor_b32 v{V_RW+1}, 32, v{V_RW}
    v_add_u32 v{V_RW+2}, 0x10000, v{V_RW}
    v_add_u32 v{V_RW+3}, 0x10000, v{V_RW+1}
    v_add_u32 v{V_RW+4}, 0x20000, v{V_RW}
    v_add_u32 v{V_RW+5}, 0x20000, v{V_RW+1}
    v_add_u32 v{V_WW}, s{S_LW}, v{V_L16}
    v_add_u32 v{V_WW+1}, 0x10000, v{V_WW}
    v_add_u32 v{V_WW+2}, 0x20000, v{V_WW}
    v_and_b32 v6, 15, v1
    v_lshrrev_b32 v5, 4, v1
    v_and_b32 v4, 3, v1
    v_lshlrev_b32 v7, 2, v5
    v_lshl_add_u32 v7, v6, 4, v7
    v_add_u32 v{V_YW}, s{S_RB}, v7
    v_mul_u32_u24 v7, {RSTRIDE}, v2
    v_lshl_add_u32 v7, v4, 3, v7
    v_lshl_add_u32 v7, v5, 5, v7
    s_lshl_b32 s{S_T0}, s{S_W}, 9
    v_add_u32 v{V_YR}, s{S_T0}, v7
    """
    late_l = []
    for t in late.split("\n"):
        t = t.strip()
        if t: late_l.append(t)
    b2l = [VM(f"global_load_dwordx4 {vr(B2R+4*i,4)}, v154, s[{P_B2}:{P_B2+1}] offset:{16*i}", "b2") for i in range(4)]
    late2 = [NEED("b2")] + [x for i in range(16) for x in (f"v_lshlrev_b32 v{ACC2+2*i}, 16, v{B2R+i}", f"v_and_b32 v{ACC2+2*i+1}, 0xffff0000, v{B2R+i}")]
    for j, gp in enumerate(cfg.g_pos):
        if not gp: st(gather(j))
    for j, gp in enumerate(cfg.ct):
        if gp is None: st(ctouch[j])
    st(pf("B", "idle"))
    LH = f2u(1.4426950408889634); LHf = struct.unpack("<f", struct.pack("<I", LH))[0]
    st(f"s_mov_b32 s{S_T0}, {hx(LH)}", f"s_mov_b32 s{S_T1}, {hx(f2u(1.4426950408889634-LHf))}", f"s_mov_b32 s{S_T2}, {hx(f2u(0.6931471805599453))}",
      NEED("ldt"),
      f"v_mul_f32 v5, s{S_T0}, v{V_LDT}",
      f"v_fma_f32 v6, v{V_LDT}, s{S_T0}, -v5",
      f"v_exp_f32 v7, v5",
      f"v_fma_f32 v6, v{V_LDT}, s{S_T1}, v6",
      f"v_mul_f32 v6, s{S_T2}, v6",
      f"v_fma_f32 v7, v7, v6, v7",
      f"v_cvt_pk_bf16_f32 v{V_DT}, 0, v7",
      f"v_mul_f32 v{V_DTL}, s{S_T0}, v{V_DT}",
      f"v_mul_f32 v{V_DTP}, 0.15915494, v{V_DT}")
    def setup(g):
        p = VP + 6*g
        l = [NEED("p01" if g < 2 else "p2")]
        if g == 0: l += [f"v_lshlrev_b32 v{p+k}, 16, v{VRAW+k}" for k in range(6)]
        if g == 1: l += [f"v_and_b32 v{p+k}, 0xffff0000, v{VRAW+k}" for k in range(6)]
        l += [f"v_mul_f32 v{p}, v{p}, v{V_DTL}",
             f"v_mul_f32 v{p+1}, v{p+1}, v{V_DTP}",
             f"v_mul_f32 v{p+2}, v{p+2}, v{V_DT}",
             f"v_mul_f32 v{p+3}, v{p+3}, v{V_DT}",
             f"v_exp_f32 v2, v{p}",
             f"v_fract_f32 v3, v{p+1}",
             f"v_mul_f32 v4, 0x41000000, v{p}",
             f"v_mul_f32 v5, 0x41000000, v{p+1}",
             f"v_cos_f32 v{Z1}, v3",
             f"v_sin_f32 v{Z1+1}, v3",
             f"v_exp_f32 v4, v4",
             f"v_fract_f32 v5, v5",
             f"v_mul_f32 v6, 0x43800000, v{p}",
             f"v_mul_f32 v7, 0x43800000, v{p+1}",
             f"v_cos_f32 v{Z8}, v5",
             f"v_sin_f32 v{Z8+1}, v5",
             f"v_exp_f32 v6, v6",
             f"v_fract_f32 v7, v7",
             f"v_mul_f32 v{Z1}, v2, v{Z1}",
             f"v_mul_f32 v{Z1+1}, v2, v{Z1+1}",
             f"v_cos_f32 v{Z256}, v7",
             f"v_sin_f32 v{Z256+1}, v7",
             f"v_mul_f32 v{Z8}, v4, v{Z8}",
             f"v_mul_f32 v{Z8+1}, v4, v{Z8+1}",
             f"v_mul_f32 v{SV}, v{p+4}, v{p+2}",
             f"v_mul_f32 v{SV+1}, v{p+4}, v{p+3}",
             f"v_mul_f32 v{Z256}, v6, v{Z256}",
             f"v_mul_f32 v{Z256+1}, v6, v{Z256+1}",
             f"v_fma_f32 v{SV}, -v{p+5}, v{p+3}, v{SV}",
             f"v_fma_f32 v{SV+1}, -v{p+5}, v{p+2}, -v{SV+1}"]
        return l
    def chains(nscalar):
        vals = []
        def put(pre, x, row): vals.append((pre, x, row))
        def sc(): return len(vals) <= nscalar
        put([], SV, hi_row(0))
        prev = SV
        for j in range(1, 8):
            d = SV + j if j % 2 == 0 else X
            put(cmul(d, prev, Z1, T, True, sc()), d, hi_row(j)); prev = d
        for j in (0, 2, 4, 6): put(cmul(SV+j, SV+j, Z256, T, True, sc()), SV+j, hi_row(256+j))
        for b in (512, 768):
            for j in (0, 4): put(cmul(SV+j, SV+j, Z256, T, True), SV+j, hi_row(b+j))
        for b in (1024, 1280, 1536, 1792, 2048): put(cmul(SV, SV, Z256, T, True), SV, hi_row(b))
        put([], Z8, 1)
        prev = Z8
        for b in range(2, 32): put(cmul(X, prev, Z8, T), X, b); prev = X
        l = []; i = 0; nrd = 0
        while i < len(vals):
            n = 1 if (nscalar and i <= nscalar) else min(cfg.wb, len(vals) - i)
            g = []
            for j in range(n):
                pre, x, row = vals[i+j]; g += pre + [f"v_cvt_pk_bf16_f32 v{CV+(i+j)%6}, v{x}, v{x+1}"]
            for j in range(n): g.append(LG(f"ds_write_addtid_b32 v{CV+(i+j)%6} offset:{vals[i+j][2]*TROW}"))
            i += n
            if i >= 24:
                for k in range(nrd, min(nrd+2, 8)): g.append(LG(f"ds_read_b128 {ar(FA+4*k,4)}, v{V_AA} offset:{32*k}"))
                nrd = min(nrd+2, 8)
            l.append(g)
        assert nrd == 8
        return l
    def mm(g, k):
        c = "0" if (g == 0 and k == 0) else vr(D, 16)
        return [NEED(("fb", k)), f"v_mfma_f32_32x32x16_bf16 {vr(D,16)}, {ar(FA+4*k,4)}, {ar(FB+4*k,4)}, {c}"]
    fbreads = [LG(f"ds_read_b128 {ar(FB+4*k,4)}, v{V_BA} offset:{32*k}", ("fb", k)) for k in range(8)]
    def w2load(u):
        sg, p = divmod(u, 6)
        so = f"s_add_u32 s{S_DM}, s{S_CWO+p}, {sg*64*1280}"
        if u < NDMA:
            v = [VM(f"buffer_load_dwordx4 v{V_W2+i}, s[{SRD_W}:{SRD_W+3}], s{S_DM} offen offset:{1024*i} lds", ("w2", u)) for i in range(2)]
            return [[f"s_add_u32 m0, s{S_LW}, {w2slot(u)}", so, v[0]], v[1]]
        v = [VM(f"buffer_load_dwordx4 {rawreg(u,i)}, v{V_W2+i}, s[{SRD_W}:{SRD_W+3}], s{S_DM} offen offset:{1024*i}", ("w2", u)) for i in range(2)]
        return [[so, v[0]], v[1]]
    def w2put(u):
        l = []
        for i in range(2):
            o = w2slot(u) + 1024*i
            l.append([NEED(("w2", u)), LG(f"ds_write_b128 v{V_WW+(o>>16)}, {rawreg(u,i)} offset:{o & 0xffff}", ("put", u))])
        return l
    def w2touch(j): return [f"s_mov_b32 s{S_T3}, {128*1280*j}", VM(f"buffer_load_dword v{V_JUNK}, v{V_WT}, s[{SRD_W}:{SRD_W+3}], s{S_T3} offen")]
    ins = [{}, {}, {}]
    def at(g, pos, items): ins[g].setdefault(pos, []).extend(items)
    for j, gp in enumerate(cfg.g_pos):
        if isinstance(gp, tuple): at(*gp, gather(j))
    for j, gp in enumerate(cfg.ct):
        if gp: at(*gp, ctouch[j])
    QT = 40
    def trans(js):
        l = pf("B", f"upre{js[-1]}") + [NEED(("raw", js[-1]))] + pf("B", f"ugot{js[-1]}")
        for j in js: l += [LG(f"ds_read_b64_tr_b16 {vr(QT+4*j,2)}, v{V_TR} offset:{2048*j+64}"), LG(f"ds_read_b64_tr_b16 {vr(QT+4*j+2,2)}, v{V_TR} offset:{2048*j}", ("tr", j))]
        return l
    def tput(js): return [x for j in js for x in (NEED(("tr", j)), LG(f"ds_write_b128 v{QT+16+j}, {vr(QT+4*j,4)}", "U"))]
    for j, (g, pos) in enumerate(cfg.wt_pos): at(g, pos, w2touch(j))
    if cfg.w1t: at(*cfg.w1t, [VM(f"global_load_dword v{V_JUNK}, v{V_W1T}, s[{P_W1}:{P_W1+1}] offset:{128*q}") for q in range(cfg.s0, 4)])
    vq = [w2load(u) for p in range(6) for u in (18+p, p, 6+p, 12+p)]
    for gp in cfg.wk:
        x = vq.pop(0); at(*gp, x + ([f"s_mov_b32 m0, s{S_RB}\ns_nop 0"] if len(x[0]) == 3 else []))
    assert not cfg.wk and cfg.w_early <= 3
    vq = [x for u in vq for x in u]
    st(setup(0))
    st(pf("B", "setup0"))
    st(insert(chains(0), ins[0]))
    for g in (1, 2):
        st(fbreads, setup(g))
        c = chains(8)
        for k in range(8): c[k+1] = mm(g-1, k) + c[k+1]
        st(pf("B", f"kgen{g-1}"))
        st(insert(c, ins[g]))
    st(fbreads, NEED("dsk", "tag"), "v_cmp_eq_u32 vcc, 0, v1", [f"v_subrev_u32 v{QT+16+j}, s{S_GB[j]}, v{V_TS}" for j in range(4)],
       f"v_add_u32 v{V_TAG}, {hx(TAG_STEP)}, v{V_TAG}", f"v_cndmask_b32 v{V_DSK}, 0, v{V_DSK}, vcc")
    ne = 2*cfg.w_early
    st(weave([mm(2, k) for k in range(8)], tables() + vq[:ne])); vq = vq[ne:]
    J1 = list(range(cfg.tr1)); J2 = list(range(cfg.tr1, 4))
    if J1: st(trans(J1))
    st("s_nop 7")
    st(pf("B", "kgen2"))
    N = 10; TT = 14
    dpp = "row_mask:0xf bank_mask:0xf"
    st(f"v_add_f32 v{D}, v{D}, v{V_DSK}")
    for i, nx in enumerate((8, 10, 11, 12)): st(f"v_mov_b32_dpp v{N+i}, v{D+nx} wave_rol:1 {dpp}")
    for i, cu in enumerate((0, 8, 10, 11)): st(f"v_mov_b32_dpp v{N+i}, v{D+cu} wave_shl:1 {dpp}")
    st(f"v_cvt_pk_bf16_f32 v16, 0, v{D}",
       f"v_cvt_pk_bf16_f32 v17, v{D+10}, v{D+10}",
       f"v_cvt_pk_bf16_f32 v18, v{D+10}, v{N+2}",
       f"v_cvt_pk_bf16_f32 v19, v{D+11}, v{N+3}",
       f"v_readfirstlane_b32 s{S_T0}, v17",
       f"v_cndmask_b32 v{D+7}, v{D+7}, v{N}, s[{S_M1}:{S_M1+1}]",
       "v_cndmask_b32 v16, 0, v16, vcc",
       f"v_mov_b32_dpp v18, v18 quad_perm:[1,1,3,3] {dpp}", f"v_mov_b32_dpp v19, v19 quad_perm:[1,1,3,3] {dpp}",
       f"v_and_b32 v17, s{S_T0}, v{V_TM}",
       LG(f"ds_write_b32 v{V_KP}, v16 offset:{KB_OFF}"), LG(f"ds_write_b32 v{V_KP}, v{V_Z}"),
       LG(f"ds_write_b32 v{V_TA}, v17"), LG(f"ds_write2_b32 v{V_TW}, v18, v19 offset1:32"))
    seqs = [[D+i for i in range(8)] + [N],
            [D+8]*3 + [D+9]*3 + [N+1]*3]
    def floads(F, ms, r=0):
        l = []
        for m in ms:
            o = 128*(m & 1) + 16*r
            l.append(LG(f"ds_read2_b32 {ar(F+4*m,2)}, v{V_F+(m>>1)} offset0:{o} offset1:{o+1}"))
            l.append(LG(f"ds_read2_b32 {ar(F+4*m+2,2)}, v{V_F+(m>>1)} offset0:{o+2} offset1:{o+3}", ("F", r, m)))
        return l
    def gload(G, n, r): return LG(f"ds_read_b128 {ar(G+4*n,4)}, v{V_G+(r&3)} offset:{2048*(7-n) + 1024*(r>>2)}", ("G", r, n))
    st(tput(J1))
    for p, sq in enumerate(seqs):
        if p == 1 and J2: st(trans(J2))
        for cpy in range(2):
            q = Q + 8*p + 4*cpy
            for i in range(4): st(f"v_cvt_pk_bf16_f32 v{q+i}, v{sq[2*i+cpy]}, v{sq[2*i+1+cpy]}")
            st(LG(f"ds_write_b128 v{V_KW}, {vr(q,4)} offset:{32 + 1024*p + KB_OFF*cpy}"))
    st(tput(J2), floads(F0, range(5)))
    st(pf("B", "expand"))
    st(NEED("U"), "s_barrier")
    st(pf("B", "ubar"))
    st([gload(G0, n, 0) for n in range(7, -1, -1)])
    def hreg(k): return ar(128 + 4*(k % 32), 4)
    def hload(k):
        sg, rem = divmod(k, 24); p, q = divmod(rem, 4)
        l = [f"s_add_u32 s{S_H2}, s{S_CHO+p}, {H_OFF + sg*24*1024*(0 if 'hq0' in cfg.exp else 1)}"] if q == 0 else []
        return l + [VM(f"buffer_load_dwordx4 {hreg(k)}, v{V_L16}, {WS}, s{S_H2} offen offset:{1024*q} sc1", ("h", k))]
    def hpoll(sg): return polls.issue(("hp", sg), V_POLL, V_PH, 256*sg)
    def hcheck(sg): return polls.check(("hp", sg), V_POLL, V_TAG, V_PH, 256*sg, "0xfff", pf, f"h{sg}") + pf("B", f"h{sg}seen")
    M16 = "v_mfma_f32_16x16x32_bf16"
    def mfmas(F, G, first):
        return [f"{M16} {vr(ACC+4*(m+n),4)}, {ar(F+4*m,4)}, {ar(G+4*n,4)}, {'0' if (first and m == 0) else vr(ACC+4*(m+n),4)}"
                for m in range(5 if first else 4) for n in range(7-m, -1, -1)]
    mf = []; mand = {}; it0 = []
    RS, RD = cfg.rs, cfg.rd
    for r in range(8):
        F, G, Fn, Gn = (F0, G0, F1, G1) if r % 2 == 0 else (F1, G1, F0, G0)
        m_ = mfmas(F, G, r == 0)
        if r == 0:
            for n in (7, 5, 3, 1): m_[7-n] = [NEED(("G", 0, n-1)), m_[7-n]]
        else:
            m_[0] = [NEED(("G", r, 0)), m_[0]]; m_[8] = [NEED(("F", r, 3)), m_[8]]
        if r == RS - 1:
            x = [f"{M16} {vr(SD+4*j,4)}, {ar(GS+4*j,4)}, {vr(BX+4*(j >> 2),4)}, 0" for j in range(8)]
            m_ += [[NEED("gs"), x[0]]] + x[1:]
        if r == RD - 1:
            x = [f"{M16} {vr(ACC+4*(n+dl),4)}, {vr(SD+4*n,4)}, {ar(TF+4*(dl-4),4)}, {vr(ACC+4*(n+dl),4)}" for dl in range(4, 8) for n in range(8-dl)]
            m_ += [[NEED("tf"), x[0]]] + x[1:]
        it0.append(len(mf))
        if r < 7:
            ld = floads(Fn, [0], r+1) + [gload(Gn, n, r+1) for n in range(7, -1, -1)] + floads(Fn, [1, 2, 3], r+1)
            for j, it in enumerate(ld): mand[len(mf) + j*len(m_)//16] = [it]
        mf += m_
    NG = len(mf); it0.append(NG)
    free = [g for g in range(NG) if g not in mand]
    def onfree(items, g0, g1):
        fr = [g for g in free if g0 <= g < g1]; out = []
        for j, it in enumerate(items):
            g = fr[j*len(fr)//len(items)]
            if isinstance(it, list):
                out += [(x, max(g-3, g0), g) for x in it[:-1]]; it = it[-1]
            out.append((it, g, g))
        return out
    sv = onfree(b2l + vq, 0, it0[7] + cfg.w_last)
    L = cfg.stream
    if cfg.early:
        k = next((j for j, x in enumerate(sv) if x[2] >= NG - 40 and (j == 0 or callable(sv[j-1][0]))), len(sv))
        sv.insert(k, (hpoll(0), NG - 44, NG - 40))
    hq = [hload(k) for k in range(L)]
    chk = hcheck(0)
    gS = it0[RS] - 8; gD = it0[RD] - 10
    ka, kb = late_l.index("@addr"), late_l.index("@box")
    xl = [LG(f"ds_read_b128 {ar(GS+4*j,4)}, v{V_G9 if j >> 2 else V_G} offset:{2048*(7-(j & 3))}", "gs") for j in range(8)] + \
         [LG(f"ds_read2_b32 {ar(TF+2*j,2)}, v{V_TT} offset0:{16*(j >> 1)+3-2*(j & 1)} offset1:{16*(j >> 1)+2-2*(j & 1)}", "tf") for j in range(8)]
    sl = [(x, 0, gS-12) for x in late_l[:ka] + xl[:8]] + [(x, 0, gS-3) for x in late_l[ka+1:kb]] + [(x, 0, gD-8) for x in xl[8:]] + \
         [(x, 0, NG-50) for x in late_l[kb+1:]]
    sc = [(f"v_cvt_pk_bf16_f32 v{SD+j}, v{SD+j}, v{SD+16+j}", gS+12, gD-3) for j in range(16)]
    sched(st, mf, 9.5, mand, [sv, sc, sl, [(x, it0[7], NG-1) for x in late2]])
    st(pf("B", "conv"))
    def reads(k):
        u, q = k >> 2, k & 3
        o = w2slot(u) + q*2048; l = []
        if k == 36: l += [NEED(("put", 15)), "s_barrier"]
        if k == 64: l += [NEED(("put", 23)), "s_barrier"]
        b = WF + 8*(k & 3)
        for T_ in range(2):
            for s in range(2):
                oo = o + 1024*s
                l.append(LG(f"ds_read_b64_tr_b16 {vr(b+4*T_+2*s,2)}, v{V_RW+2*(oo>>16)+T_} offset:{oo & 0xffff}", ("w", k)))
        return l
    LEAD = 2
    ysto = [[NEED(("y", x)), VM(f"buffer_store_dwordx4 {vr(24+4*x,4)}, v{V_L16}, {WS}, s{S_T0} offen offset:{1024*x} sc1", "ys")] for x in range(4)]
    yrd = [[LG(f"ds_read_b64_tr_b16 {vr(24+4*x,2)}, v{V_YR} offset:{128*x}"), LG(f"ds_read_b64_tr_b16 {vr(26+4*x,2)}, v{V_YR} offset:{2048+128*x}", ("y", x))] for x in range(4)]
    put1 = [x for u in range(NDMA, 16) for x in w2put(u)]
    ya = [f"s_lshl_b32 s{S_T0}, s{S_IDX}, 14", f"s_lshl_b32 s{S_T1}, s{S_W}, 12", f"s_add_u32 s{S_T0}, s{S_T0}, s{S_T1}", f"s_add_u32 s{S_T0}, s{S_T0}, {YA_OFF}"]
    yw = [[f"v_cvt_pk_bf16_f32 v{8+2*cb}, v{ACC+4*cb}, v{ACC+4*cb+2}", f"v_cvt_pk_bf16_f32 v{9+2*cb}, v{ACC+4*cb+1}, v{ACC+4*cb+3}",
           LG(f"ds_write2st64_b32 v{V_YW}, v{8+2*cb}, v{9+2*cb} offset0:{cb} offset1:{8+cb}")] for cb in range(8)]
    ybar = [NEED(*[("w2", u) for u in range(NDMA)]), DRAIN("lg"), "s_barrier"]
    first = [reads(k) for k in range(LEAD)]
    if cfg.early:
        nb = cfg.burst; n1 = nb + (L - nb)//2
        st(chk, hq[:nb], ya, weave(yw, hq[nb:n1]), ybar, first, weave(yrd + put1[:cfg.nput], hq[n1:]))
    else:
        st(ya, yw[:4], [] if cfg.ysfirst else hpoll(0), yw[4:], ybar, yrd)
        if cfg.ysfirst: st(ysto, hpoll(0)); ysto = []
        st(put1[:cfg.nput], first, chk, hq)
    put1 = put1[cfg.nput:]
    st(pf("B", "g2start"))
    ypub = [f"s_mul_i32 s{S_T0}, s{S_W}, 10", f"s_lshr_b32 s{S_T1}, s{S_IDX}, 4", f"s_add_u32 s{S_T0}, s{S_T0}, s{S_T1}", f"s_lshl_b32 s{S_T0}, s{S_T0}, 6",
            f"s_and_b32 s{S_T1}, s{S_IDX}, 15", f"s_add_u32 s{S_T0}, s{S_T0}, s{S_T1}", f"s_lshl_b32 s{S_T0}, s{S_T0}, 2",
            f"s_add_u32 s{S_T0}, s{S_T0}, {FL_Y}", [NEED("ys"), flag_set(V_TAG, V_PU, S_T0)]]
    ypoll = polls.issue("yp", V_JUNK, V_PY, 0)
    ein = [polls.check("yp", V_JUNK, V_TAG, V_PY, 0, "0xffff", pf, "y") + pf("B", "yseen"), f"s_mov_b32 s{S_T1}, {G_OFF}",
           *[VM(f"buffer_load_dword v{40+j if j < 4 else V_GT}, v{V_T}, {WS}, s{S_T1} offen offset:{128*j} sc1", "g") for j in range(5)],
           f"s_lshl_b32 s{S_T1}, s{S_D10}, 18", f"s_add_u32 s{S_T1}, s{S_T1}, {YA_OFF}"]
    for i in range(8):
        ein += [[VM(f"buffer_load_dwordx2 {vr(YA+2*i,2)}, v{V_YA}, {WS}, s{S_T1} offen sc1", "ya"), f"s_add_u32 s{S_T1}, s{S_T1}, 16384"]]
    pre = [NEED("g"), "v_add_f32 v40, v40, v41", "v_add_f32 v42, v42, v43", f"v_add_f32 v40, v40, v{V_GT}", "v_add_f32 v40, v40, v42",
           f"v_mul_f32 v40, {hx(f2u(-1.4426950408889634))}, v40", "v_exp_f32 v40, v40\ns_nop 0", "v_add_f32 v40, 1.0, v40", f"v_rcp_f32 v{V_GT}, v40\ns_nop 0",
           f"v_sub_f32 v{V_OG}, 1.0, v{V_GT}", NEED("ya")]
    for i in range(16):
        pre += [f"v_lshlrev_b32 v{GA+2*i}, 16, v{YA+i}", f"v_and_b32 v{GA+2*i+1}, 0xffff0000, v{YA+i}",
                f"v_mul_f32 v{GA+2*i}, v{GA+2*i}, v{V_GT}", f"v_mul_f32 v{GA+2*i+1}, v{GA+2*i+1}, v{V_GT}"]
    pre += srd(SRD_OUT, P_OUT, 2048*1280) + [f"v_xor_b32 v{2+i}, {16*i}, v{V_OW}" for i in range(1, 4)]
    PL = cfg.pl
    mf = []; mand = {}; post = {}
    for k in range(96):
        b = WF + 8*(k & 3)
        m_ = [f"v_mfma_f32_32x32x16_bf16 {vr(ACC2+16*T_,16)}, {vr(b+4*T_,4)}, {hreg(k)}, {vr(ACC2+16*T_,16)}" for T_ in range(2)]
        mf += [[NEED(("w", k), ("h", k)), m_[0]], m_[1]]
        if k + LEAD < 96: mand[2*k] = reads(k+LEAD)
        post[2*k] = pf("B", f"k{k}")
    sh = []; sp = []
    def hitem(k, step):
        g = 2*step + 1; l = hload(k)
        return [(x, g-1, g) for x in l[:-1]] + [(l[-1], g, g)]
    if L:
        for k in range(L, 24): sh += hitem(k, k - L)
    for sg in (1, 2, 3):
        k0 = 24*sg - cfg.leads[sg-1]
        if k0 - PL >= 0: sp.append((hpoll(sg), 2*(k0-PL), 2*(k0-PL)+1))
        else: st(hpoll(sg))
        sh.append((hcheck(sg), 2*k0, 2*k0))
        for j in range(24): sh += hitem(24*sg + j, k0 + j)
    Y0 = cfg.ys; assert Y0 > 48 - cfg.leads[1]
    sy = paced(ysto, 2*cfg.yst, 2*cfg.yst+8, 0) + [(x, 2*cfg.yp-16, 2*cfg.yp) for x in ypub[:-1]] + [(ypub[-1], 2*cfg.yp, 2*cfg.yp+2)] + [(ypoll, 2*(Y0-PL), 2*(Y0-PL)+2)] + paced(ein, 2*Y0, 2*(Y0+cfg.yn), 2) + paced(pre, 2*(Y0+cfg.yn)+cfg.ylat, 188, 2)
    sw = [(x, g & ~1, g & ~1) for x, g, _ in paced(put1, 10, 60, 0) + paced([x for u in range(16, 24) for x in w2put(u)], 70, 120, 0)]
    if 'noput' in cfg.exp: sw = [(lambda s_: s_.tok.update({("put", 15): ("lg", 0), ("put", 23): ("lg", 0)}), 0, 0)]
    if 'nost' in cfg.exp:
        sy = sy[4:]; st.tok['ys'] = ('vm', 0)
    if 'noy' in cfg.exp:
        sy = [x for x in sy if 's_mov_b32 s5' in str(x[0]) or 'v_xor' in str(x[0]) or x[0] in ypub or (isinstance(x[0], list) and 'L_back' in str(x[0])) or x[0] is ypoll]
    if 'noh' in cfg.exp:
        sh = [x for x in sh if isinstance(x[0], list)]
        for k in range(L or 24, 96): st.tok[("h", k)] = ("vm", 0)
    if 'nopoll' in cfg.exp:
        sh = [x for x in sh if not isinstance(x[0], list)]; sp = []
        polls.tail = polls.tail[:-30]
    sched(st, mf, 24, mand, [sh, sp, sy, sw], post)
    st(pf("B", "g2"))
    st(f"s_mov_b32 s{S_T1}, {8*1280}", f"s_mov_b32 s{S_T2}, {16*1280}", f"s_mov_b32 s{S_T3}, {24*1280}", "s_nop 7")
    for i in range(4):
        for e in range(0, 8, 2): st(f"v_pk_fma_f32 {vr(GA+8*i+e,2)}, {vr(ACC2+8*i+e,2)}, {vr(V_GT,2)}, {vr(GA+8*i+e,2)} op_sel:[0,1,0]")
        for e in range(4): st(f"v_cvt_pk_bf16_f32 v{WF+4*i+e}, v{GA+8*i+2*e}, v{GA+8*i+2*e+1}")
        st(LG(f"ds_write_b128 v{2+i if i else V_OW}, {vr(WF+4*i,4)}"))
    for i in range(4): st(LG(f"ds_read_b128 {vr(WF+16+4*i,4)}, v{V_OR} offset:{1024*i}", ("o", i)))
    for i in range(4):
        st(NEED(("o", i)), VM(f"buffer_store_dwordx4 {vr(WF+16+4*i,4)}, v{V_OUT}, s[{SRD_OUT}:{SRD_OUT+3}], {f's{S_T0+i}' if i else 0} offen"))

A_MISC = 131072
def role_a(a, cfg, pf, polls):
    S_RBK, S_C6, S_XO, S_WO, S_HO, S_LX, S_TB, S_ES, S_FL = 60, 61, 62, 63, 56, 64, 65, 58, 43
    S_CX, S_CW, S_KR = 4, 14, 69
    VX, VW, VRX, VRW = 4, 8, 12, 20
    V_EP, V_ST, V_TAG, V_Z, V_BR, V_GL = 22, 23, 28, 29, 30, 31
    WF, PK, GF, ACC = 32, 48, 48, 128
    GACC = ACC + 96
    def xreg(kk, tau):
        n = 2*kk + tau
        return ar(4*n, 4) if n < 64 else vr(64 + 4*(n-64), 4)
    S0 = cfg.s0
    LEAD = cfg.alead
    pairs = []; periods = []
    for c in range(10):
        periods.append((len(pairs), c, c if S0 == 2 else c >> 1, (0, 1) if S0 == 2 else (c & 1,)))
        if S0 == 1: pairs += [(c >> 1, c & 1, q, 4*c+q, 0) for q in range(4)]
        elif c < 9: pairs += [(c, u, q, 4*c+q, u) for q in range(4) for u in range(2)]
        else: pairs += [(c, u, q, 4*c+q, u) for u in range(2) for q in range(4)]
    for b in range(5*S0, 20):
        periods.append((len(pairs), None, b, (0, 1)))
        pairs += [(b, u, q, 8*(b % 5)+4*u+q, b//5) for u in range(2) for q in range(4)]
    NP = len(periods)
    bar_pos = [max(p[0] - LEAD, 0) for p in periods] + [160]
    def free_after(last): return next(e for e in range(NP+1) if bar_pos[e] >= last)
    last_use = {b: max(i for i, p in enumerate(pairs) if p[0] == b) for b in range(20)}
    slot_free = {65536 + 16384*j: 0 for j in range(4)}
    for j in range(4): slot_free[16384*j] = free_after(periods[(8, 9, 6, 7)[j] + 1][0] - 1)
    wsl = {}; wearliest = {}
    for b in range(20):
        sl = min(slot_free, key=lambda x: (slot_free[x], -x >> 16))
        wsl[b] = sl; wearliest[b] = slot_free[sl]; slot_free[sl] = free_after(last_use[b])
    st = Stream(a)
    st(f"""
    s_and_b32 s{S_RBK}, s{S_XCD}, 6
    s_lshl_b32 s{S_RBK}, s{S_RBK}, 1
    s_and_b32 s{S_KR}, s{S_SLOT}, 3
    s_add_u32 s{S_RBK}, s{S_RBK}, s{S_KR}
    s_mul_i32 s{S_KR}, s{S_KR}, {5 if cfg.krot else 0}
    s_add_u32 s{S_KR}, s{S_KR}, 1
    s_lshr_b32 s{S_KR}, s{S_KR}, 1
    s_and_b32 s{S_C6}, s{S_XCD}, 1
    s_mul_i32 s{S_C6}, s{S_C6}, 3
    s_lshr_b32 s{S_T0}, s{S_SLOT}, 2
    s_add_u32 s{S_C6}, s{S_C6}, s{S_T0}
    s_lshl_b32 s{S_T0}, s{S_C6}, 2
    s_lshr_b32 s{S_T0}, {0x962840 if cfg.crot else 0}, s{S_T0}
    s_and_b32 s{S_T0}, s{S_T0}, 15
    s_add_u32 s{S_KR}, s{S_KR}, s{S_T0}
    s_cmp_ge_u32 s{S_KR}, 10
    s_cselect_b32 s{S_T0}, 10, 0
    s_sub_u32 s{S_KR}, s{S_KR}, s{S_T0}
    s_lshl_b32 s{S_TB}, s{S_RBK}, 2
    s_add_u32 s{S_TB}, s{S_TB}, s{S_W}
    s_mul_i32 s{S_XO}, s{S_TB}, {32*1280}
    s_mul_i32 s{S_WO}, s{S_W}, {16*3072}
    s_lshl_b32 s{S_T0}, s{S_C6}, 9
    s_add_u32 s{S_WO}, s{S_WO}, s{S_T0}
    s_lshl_b32 s{S_LX}, s{S_W}, 12
    v_lshrrev_b32 v2, 3, v1
    v_and_b32 v3, 7, v1
    v_lshrrev_b32 v24, 1, v2
    v_xor_b32 v25, v3, v24
    v_lshlrev_b32 v25, 4, v25
    v_mov_b32 v26, 1280
    v_mad_u32_u24 v{VX}, v2, v26, v25
    v_xor_b32 v{VX+1}, 64, v{VX}
    v_add_u32 v{VX+1}, {8*1280-1024}, v{VX+1}
    v_add_u32 v{VX+2}, {16*1280-2048}, v{VX}
    v_add_u32 v{VX+3}, {16*1280-2048}, v{VX+1}
    v_and_b32 v24, 1, v24
    v_lshlrev_b32 v24, 2, v24
    v_xor_b32 v25, v3, v24
    v_lshlrev_b32 v25, 4, v25
    v_mov_b32 v26, 3072
    v_mad_u32_u24 v25, v2, v26, v25
    v_add_u32 v{VW}, 4096, v25
    v_add_u32 v{VW+1}, {4096+8*3072-1024}, v25
    v_add_u32 v{VW+2}, {4096+128*(S0-1)-2048}, v25
    v_add_u32 v{VW+3}, {4096+128*(S0-1)+8*3072-3072}, v25
    v_lshl_add_u32 v27, v1, 3, s{S_T0}
    s_lshl_b32 s{S_T2}, s{S_KR}, 3
    s_mov_b32 s{SRD_U+2}, {2048*1280}
    s_mov_b32 s{SRD_U+3}, 0x20000
    s_mov_b32 s{SRD_W+2}, {640*3072+4096}
    s_mov_b32 s{SRD_W+3}, 0x20000
    s_waitcnt lgkmcnt(0)
    """)
    st(pf("A", "karg"))
    st(srd(SRD_U, P_U, 0)[:2], f"s_sub_u32 s{SRD_W}, s{P_W1}, 4096\ns_subb_u32 s{SRD_W+1}, s{P_W1+1}, 0")
    def ctab(j):
        l = [f"s_lshl_b32 s{S_T0}, s{S_KR}, 7", f"s_add_u32 s{S_CX+j}, s{S_T0}, s{S_XO}",
             f"s_mul_i32 s{S_T0}, s{S_KR}, {64*3072}", f"s_add_u32 s{S_CW+j}, s{S_T0}, s{S_WO}"]
        if j < 9: l += [f"s_add_u32 s{S_KR}, s{S_KR}, 1", f"s_cmp_eq_u32 s{S_KR}, 10\ns_cselect_b32 s{S_KR}, 0, s{S_KR}"]
        return l
    def dma(P):
        _, c, b, us = periods[P]
        l = []
        if c is not None:
            v = [VM(f"buffer_load_dwordx4 v{VX+i}, s[{SRD_U}:{SRD_U+3}], s{S_CX+c} offen offset:{1024*i} lds") for i in range(4)]
            l += [f"s_add_u32 m0, s{S_LX}, {(c & 3)*16384}", [M0GAP, v[0]]] + v[1:]
        v = [VM(f"buffer_load_dwordx4 v{VW+j}, s[{SRD_W}:{SRD_W+3}], s{S_CW+(c if c is not None else 2*(b % 5)+(j >> 1))} offen offset:{1024*j} lds", ("w", P))
             for j in range(4) if j >> 1 in us]
        if c is None and b % 5 == 0: l += [f"v_add_u32 v{VW+j}, {0x100 if (j < 2 and S0 == 2 and b == 10) else 0x80}, v{VW+j}" for j in range(4)]
        return l + [f"s_add_u32 m0, s{S_LX}, {wsl[b]}", [M0GAP, v[0]]] + v[1:]
    st(VM(f"global_load_dwordx2 v[{V_TAG}:{V_TAG+1}], v27, s[{P_B1}:{P_B1+1}]", "b1"))
    st(ctab(0), dma(0))
    a("@SPLIT:")
    st(pf("A", "body"))
    st(srd(SRD_WS, P_WS, WS_SIZE), f"""
    s_and_b32 s{S_T1}, s{S_W}, 1
    s_lshl_b32 s{S_T0}, s{S_C6}, 1
    s_add_u32 s{S_T0}, s{S_T0}, s{S_T1}
    s_lshr_b32 s{S_FL}, s{S_TB}, 1
    s_lshl_b32 s{S_FL}, s{S_FL}, 8
    s_add_u32 s{S_FL}, s{S_FL}, s{S_T0}
    s_lshl_b32 s{S_FL}, s{S_FL}, 2
    s_add_u32 s{S_FL}, s{S_FL}, {FL_H}
    s_lshl_b32 s{S_T0}, s{S_T0}, 11
    s_mul_i32 s{S_HO}, s{S_TB}, {96*1024}
    s_add_u32 s{S_HO}, s{S_HO}, s{S_T0}
    s_xor_b32 s{S_HO+1}, s{S_TB}, 1
    s_mul_i32 s{S_HO+1}, s{S_HO+1}, {96*1024}
    s_add_u32 s{S_HO+1}, s{S_HO+1}, s{S_T0}
    v_lshlrev_b32 v{V_ST}, 4, v1
    v_mov_b32 v{V_EP}, {EP_OFF}
    v_and_b32 v24, 15, v1
    v_add_u32 v24, s{S_T2}, v24
    v_subrev_u32 v25, 80, v24
    v_min_u32 v24, v24, v25
    v_lshlrev_b32 v{V_GL}, 4, v24
    v_bfe_u32 v2, v1, 2, 2
    v_lshrrev_b32 v3, 5, v1
    v_lshl_add_u32 v24, v3, 3, v2
    v_lshlrev_b32 v24, 7, v24
    v_lshrrev_b32 v2, 1, v2
    v_xor_b32 v2, s{S_T1}, v2
    v_lshl_add_u32 v24, v2, 6, v24
    v_bfe_u32 v2, v1, 4, 1
    v_lshl_add_u32 v24, v2, 5, v24
    v_and_b32 v2, 3, v1
    v_lshl_add_u32 v{VRW}, v2, 3, v24
    v_add_u32 v{VRW+1}, 0x10000, v{VRW}
    v_and_b32 v2, 31, v1
    v_bfe_u32 v24, v1, 1, 3
    v_xor_b32 v24, v24, v3
    v_lshlrev_b32 v24, 4, v24
    v_lshl_add_u32 v24, v2, 7, v24
    v_add_u32 v{VRX}, s{S_LX}, v24
    s_lshr_b32 s{S_T2}, s{S_LX}, 1
    s_add_u32 s{S_T2}, s{S_T2}, {A_MISC}
    v_add_u32 v{WF}, s{S_T2}, v{V_ST}
    v_lshl_add_u32 v3, v3, 4, s{S_T2}
    s_lshl_b32 s{S_T1}, s{S_T1}, 7
    v_add_u32 v{V_BR}, s{S_T1}, v3
    """)
    for j in range(1, 8): st(f"v_xor_b32 v{VRX+j}, {32*(j & 3) + 4096*(j >> 2)}, v{VRX}")
    for j in range(1, 10): st(ctab(j))
    st(pf("A", "setup"))
    st(f"s_add_u32 m0, s{S_T2}, 1024\ns_nop 0", VM(f"global_load_lds_dwordx4 v{V_GL}, s[{P_GATE}:{P_GATE+1}]", "gw"),
       VM(f"global_load_dword v0, v{V_EP}, s[{P_WS}:{P_WS+1}] sc1", "tag"))
    st(dma(1)[:cfg.head1])
    st(NEED("b1"), f"v_lshlrev_b32 v24, 16, v{V_TAG}", f"v_and_b32 v25, 0xffff0000, v{V_TAG}", f"v_lshlrev_b32 v26, 16, v{V_TAG+1}", f"v_and_b32 v27, 0xffff0000, v{V_TAG+1}",
       LG(f"ds_write_b128 v{WF}, v[24:27]"), one_lane(V_Z))
    bias = [LG(f"ds_read_b128 {vr(ACC+4*i,4)}, v{V_BR} offset:{256*(i >> 3)+32*(i & 3)}") for i in range(32)]
    st(bias[:8*S0], dma(1)[cfg.head1:])
    for P in range(2, cfg.pre_chunks): st(dma(P))
    st(pf("A", "issued"))
    gate_pairs = [i for i, p in enumerate(pairs[:40*S0]) if p[4] == S0-1][cfg.gate_at:cfg.gate_at+8]
    first_of = {p[0]: P for P, p in enumerate(periods)}
    def reads(i):
        b, u, q, kk, sg = pairs[i]
        l = []
        if i in first_of: l += [[NEED(("w", first_of[i])), "s_barrier"]]
        if sg == 0: l += [LG(f"ds_read_b128 {xreg(kk,tau)}, v{VRX+4*tau+q} offset:{((kk >> 2) & 3)*16384}") for tau in range(2)]
        if i in gate_pairs:
            j = gate_pairs.index(i)
            l += ([NEED("gw")] if j == 0 else []) + [LG(f"ds_read_b128 {vr(GF+4*(j & 3),4)}, v3 offset:{1024+32*j}")]
        o = wsl[b] + 4096*q + 2048*u
        return l + [LG(f"ds_read_b64_tr_b16 {vr(WF+4*(i & 3)+2*s,2)}, v{VRW+(o >> 16)} offset:{(o & 0xffff)+512*s}", ("r", i)) for s in range(2)]
    def epi(sg):
        l = [f"s_add_u32 s{S_ES+tau}, s{S_HO+tau}, {H_OFF + sg*24*1024}" for tau in range(2)]
        for k in range(4):
            r = ACC + 32*sg + 8*k; p = PK + 4*k
            l += [f"v_mul_f32_e64 v{r+e}, v{r+e}, |v{r+e}|" for e in range(8)]
            l += [f"v_cvt_pk_bf16_f32 v{p+e}, v{r+2*e}, v{r+2*e+1}" for e in range(4)]
            l += [f"v_pk_max_i16 v{p+e}, v{p+e}, 0" for e in range(4)]
            l += [VM(f"buffer_store_dwordx4 {vr(p,4)}, v{V_ST}, {WS}, s{S_ES+(k >> 1)} offen offset:{1024*(k & 1)} sc1", ("h", sg))]
        return l
    V_HT, V_HJ, V_HP = 26, 27, 0
    S_MF, S_MH = 28, 29
    def htouch(sg, v): return [f"s_mov_b32 s{S_T0}, {H_OFF + sg*24*1024}", VM(f"buffer_load_dword v{V_HJ}, v{v}, {WS}, s{S_T0} offen sc1")]
    def pub(sg): return [NEED(("h", sg)), flag_set(V_TAG, V_Z, S_FL, 256*sg)] + (htouch(sg, V_HT) if cfg.ht else []) + pf("A", f"pub{sg}")
    def mpoll(sg): V_HP = (24, 0)[sg & 1]; return [f"v_mov_b32 v{V_HP}, 0", VM(f"buffer_atomic_or v{V_HP}, v{V_Z}, {WS}, s{S_MF} offen offset:{256*sg} sc0 sc1", ("mp", sg))]
    def mtouch(sg): V_HP = (24, 0)[sg & 1]; return [NEED(("mp", sg)), f"v_cmp_eq_u32 vcc, v{V_TAG}, v{V_HP}\ns_bitcmp1_b32 vcc_lo, 0\ns_cselect_b32 s{S_T0}, s{S_MH}, {hx(OOB & 0x3fffffff)}",
                            f"v_add_u32 v{V_HP}, s{S_T0}, v{V_HT}"] + htouch(sg, V_HP)
    htsetup = f"""v_and_b32 v24, 15, v1
    v_mov_b32 v25, s{S_HO}
    v_mov_b32 v26, s{S_HO+1}
    s_mov_b32 vcc_lo, 0xffff0000
    s_mov_b32 vcc_hi, 0xffff0000
    v_cndmask_b32 v25, v25, v26, vcc
    v_lshl_add_u32 v{V_HT}, v24, 7, v25
    s_cmp_ge_u32 s{S_C6}, 3
    s_cselect_b32 s{S_MH}, -3, 3
    s_lshl_b32 s{S_MF}, s{S_MH}, 3
    s_add_u32 s{S_MF}, s{S_MF}, s{S_FL}
    s_lshl_b32 s{S_MH}, s{S_MH}, 12"""
    gate = [f"s_lshl_b32 s{S_T1}, s{S_TB}, 10", f"s_add_u32 s{S_T1}, s{S_T1}, {G_OFF}", f"s_lshl_b32 s{S_T2}, s{S_C6}, 7",
            f"v_lshl_add_u32 v25, v2, 2, s{S_T2}", VM(f"buffer_store_dword v{V_GL}, v25, {WS}, s{S_T1} offen sc1")]
    mf = []; mand = {}; post = {}; g0 = []
    qend = [max(i for i, p in enumerate(pairs) if p[4] == sg) for sg in range(4)]
    for i, (b, u, q, kk, sg) in enumerate(pairs):
        m_ = [f"v_mfma_f32_32x32x16_bf16 {vr(ACC+32*sg+16*tau,16)}, {vr(WF+4*(i & 3),4)}, {xreg(kk,tau)}, {vr(ACC+32*sg+16*tau,16)}" for tau in range(2)]
        if i in gate_pairs:
            j = gate_pairs.index(i)
            m_.append(f"v_mfma_f32_32x32x16_bf16 {vr(GACC,16)}, {vr(GF+4*(j & 3),4)}, {xreg(j,0)}, {vr(GACC,16) if j else 0}")
        m_[0] = [NEED(("r", i)), m_[0]]
        g0.append(len(mf))
        if i + LEAD < 160: mand[len(mf)] = reads(i+LEAD)
        if i in first_of: post[len(mf)] = pf("A", f"u{first_of[i]}")
        if i in qend: post[len(mf)+1] = pf("A", f"q{qend.index(i)}")
        mf += m_
    g0.append(len(mf))
    sd = []; nxt = max(cfg.pre_chunks, 2)
    for e in range(NP):
        gb = g0[bar_pos[e]]; ge = g0[bar_pos[e+1]] - 1
        l = []; n = 0
        while nxt < NP and wearliest[periods[nxt][2]] <= e and nxt <= e + (2 if nxt < 10 else cfg.wlead) and (nxt <= e + 2 or n < (2 if S0 == 2 or e >= 10 else 1)):
            if nxt >= 10 and e < 8: break
            d_ = dma(nxt); gd = max(g0[bar_pos[nxt - cfg.wmin + 1]] - 1, ge)
            l += [(x, gd - 2*(len(d_) - 1 - j)) for j, x in enumerate(d_)]; nxt += 1; n += 1
        assert nxt > e + 1 or nxt == NP
        sd += [(x, gb, min(gb + int(j*cfg.dma_gap), ge) if e < cfg.paced else max(gd, gb)) for j, (x, gd) in enumerate(l)]
    assert nxt == NP
    gg = g0[gate_pairs[-1]+3]; gl = g0[40*S0-6]
    se = [(x, g0[4], gl) for x in bias[8*S0:24]] + [(f"v_mov_b32 v{V_GL}, v{GACC}\ns_nop 0", gg, gl)] + [(x, gg, gl) for x in bias[24:]] + \
         [([NEED("tag"), f"v_add_u32 v{V_TAG}, {hx(TAG_STEP)}, v0"], gg, gl)]
    if cfg.ht: st(htsetup)
    spub = []
    ga = 0
    for sg in range(3):
        ga0 = g0[qend[sg]+2]; ga = max(ga, ga0)
        l = epi(sg)
        NE, PD = cfg.ne[sg], cfg.pd[sg]
        se += [(x, ga0, ga + 1 + 2*j//NE) for j, x in enumerate(l)]
        se[-1] += ((0, pub(sg), 2*PD) + (((0, mpoll(sg), 2*cfg.mp[0], (0, mtouch(sg), 2*cfg.mp[1])),) if cfg.ht > 1 else ()),)
        ga += 2*(len(l)//NE)
        if sg == 1: se += [(x, ga0, ga + 8) for x in gate]
    for i in range(LEAD): st(reads(i))
    sched(st, mf, lambda g: cfg.cap if g < g0[qend[0]] else cfg.cap2, mand, [spub, se, sd] if cfg.epi_first else [spub, sd, se], post)
    st("s_nop 8", epi(3), pub(3))
    if cfg.ht > 1:
        a("L_mir:", "s_add_u32 s100, s100, 1", f"s_cmp_gt_u32 s100, {cfg.spin_limit}", "s_cbranch_scc1 L_exit", f"v_mov_b32 v{V_HP}, 0",
          f"buffer_atomic_or v{V_HP}, v{V_Z}, {WS}, s{S_MF} offen offset:768 sc0 sc1", "s_waitcnt vmcnt(0)",
          f"v_cmp_eq_u32 vcc, v{V_TAG}, v{V_HP}", "s_bitcmp1_b32 vcc_lo, 0", "s_cbranch_scc0 L_mir",
          f"v_add_u32 v{V_HP}, s{S_MH}, v{V_HT}", f"buffer_load_dword v{V_HJ}, v{V_HP}, {WS}, s{S_T0} offen sc1")
    a(f"s_or_b32 s{S_T0}, s2, s{S_W}", f"s_cmp_lg_u32 s{S_T0}, 0", "s_cbranch_scc1 L_a_done",
      "v_and_b32 v3, 15, v1", "v_lshrrev_b32 v4, 4, v1", "v_lshlrev_b32 v2, 8, v4", "v_lshl_add_u32 v2, v3, 2, v2", f"v_add_u32 v2, {FL_Y}, v2",
      "v_lshlrev_b32 v3, 11, v3", "v_lshl_add_u32 v3, v4, 3, v3", f"v_add_u32 v3, {FL_H}, v3",
      "L_ep:", "s_sleep 8", "s_add_u32 s100, s100, 1", f"s_cmp_gt_u32 s100, {cfg.spin_limit}", "s_cbranch_scc1 L_exit",
      *[f"v_mov_b32 v{32+i}, 0" for i in range(5)],
      polls.op(32, 2, 0), polls.op(33, 2, 1024), polls.op(34, 2, 1536), polls.op(35, 3, 0), polls.op(36, 3, 16),
      "s_waitcnt vmcnt(0)", "v_mov_b32 v4, 0")
    for i in range(5): a(f"v_xor_b32 v{32+i}, v{32+i}, v{V_TAG}", f"v_or_b32 v4, v4, v{32+i}")
    a("v_cmp_ne_u32 vcc, 0, v4", "s_cbranch_vccnz L_ep",
      f"global_store_dword v{V_EP}, v{V_TAG}, s[{P_WS}:{P_WS+1}] sc1", "L_a_done:")

def kdesc(name):
    return f""".section .rodata,"a"
.p2align 6
.amdhsa_kernel {name}
  .amdhsa_next_free_vgpr 512
  .amdhsa_next_free_sgpr 102
  .amdhsa_accum_offset 256
  .amdhsa_group_segment_fixed_size 0
  .amdhsa_kernarg_size 144
  .amdhsa_user_sgpr_count 2
  .amdhsa_user_sgpr_kernarg_segment_ptr 1
  .amdhsa_system_sgpr_workgroup_id_x 1
.end_amdhsa_kernel
.text
"""
def khead(name):
    return f""".globl {name}
.p2align 8
.type {name},@function
{name}:
"""

def align8(a):
    import subprocess, re, os, tempfile
    d = tempfile.mkdtemp()
    open(d + "/a.s", "w").write('.amdgcn_target "amdgcn-amd-amdhsa--gfx950"\n.text\n' + NAME + "_kernel:\n" + a.text())
    subprocess.check_call(["clang", "-x", "assembler", "-target", "amdgcn-amd-amdhsa", "-mcpu=gfx950", "-c", d + "/a.s", "-o", d + "/a.o"])
    dis = subprocess.check_output(["llvm-objdump", "-d", "--mcpu=gfx950", d + "/a.o"], text=True)
    sizes = [4*len(m.group(1).split()) for m in re.finditer(r"// [0-9A-F]+: ([0-9A-F ]+?)(?: <.*)?$", dis, re.M)]
    idx = [i for i, l in enumerate(a.l) if not l.endswith(":")]
    assert len(idx) == len(sizes), (len(idx), len(sizes))
    WIDE = ("v_mul_f32", "v_add_f32", "v_sub_f32", "v_add_u32", "v_sub_u32", "v_subrev_u32", "v_mov_b32", "v_lshlrev_b32", "v_lshrrev_b32", "v_xor_b32",
            "v_and_b32", "v_or_b32", "v_exp_f32", "v_sin_f32", "v_cos_f32", "v_fract_f32", "v_rcp_f32", "v_min_u32", "v_max_u32", "v_max_i32", "v_mul_u32_u24")
    out = dict(); off = 0; n = len(idx); cand = None
    for j in range(n):
        line = a.l[idx[j]]; op = line.split()[0]
        if sizes[j] == 8 and off % 8 == 4:
            if cand is not None:
                l2 = a.l[idx[cand]]; o2 = l2.split()[0]
                a.l[idx[cand]] = l2.replace(o2, o2 + "_e64", 1); off += 4
            else:
                run = 0; mf = False
                while j + run < n and sizes[j+run] == 8:
                    mf |= "mfma" in a.l[idx[j+run]]; run += 1
                if run >= 6 and not mf: out[idx[j]] = "    s_nop 0"; off += 4
        if sizes[j] == 8: cand = None
        elif op in WIDE and off % 8 == 0: cand = j
        elif op in WIDE and cand is None: cand = j
        off += sizes[j]
    l = []
    for i, x in enumerate(a.l):
        if i in out: l.append(out[i])
        l.append(x)
    a.l = l

def build_fused(cfg):
    pf = Prof(cfg); a = Asm(); s0 = Stream(a)
    a(f"""
    s_cmp_ge_u32 s2, 256
    s_cbranch_scc1 L_exit
    s_load_dwordx16 s[4:19], s[0:1], 0
    s_load_dwordx16 s[20:35], s[0:1], 64
    s_load_dwordx4 s[36:39], s[0:1], 128
    v_lshrrev_b32 v2, 6, v0
    v_and_b32 v1, 63, v0
    s_and_b32 s{S_XCD}, s2, 7
    v_readfirstlane_b32 s{S_W}, v2
    s_lshr_b32 s{S_SLOT}, s2, 3
    s_mov_b32 s100, 0
    """)
    if cfg.codepf:
        a(f"""
        s_getpc_b64 s[66:67]
        s_lshl_b32 s68, s{S_SLOT}, 2
        s_add_u32 s68, s68, s{S_W}
        s_mul_i32 s68, s68, 384
        v_min_u32 v2, 2, v1
        v_lshl_add_u32 v2, v2, 7, s68
        v_min_u32 v2, L_code_end-{NAME}_kernel-128, v2
        global_load_dword a255, v2, s[66:67]
        """)
    a(f"s_cmp_lt_u32 s{S_SLOT}, 12", "s_cbranch_scc1 L_roleA")
    pb = Polls(cfg)
    parts = {}
    for role, fn in (("B", role_b), ("A", role_a)):
        b = Asm(); sb = Stream(b)
        sb(pf(role, "start_real", real=True), pf(role, "start"))
        fn(b, cfg, pf, pb)
        if cfg.prof: b("s_waitcnt vmcnt(0)")
        sb(pf(role, "end"), pf(role, "end_real", real=True))
        pf.flush(b, role)
        if role == "B": b("L_exit:")
        b("s_endpgm")
        b(*pb.tail); pb.tail = []
        k = b.l.index("@SPLIT:")
        parts[role] = (b.l[:k], b.l[k+1:])
    if cfg.layout:
        a.l += parts["B"][0]; a("s_branch L_bodyB", "L_roleA:"); a.l += parts["A"][0]; a("s_branch L_bodyA", "L_bodyB:")
        a.l += parts["B"][1]; a("L_bodyA:"); a.l += parts["A"][1]
    else:
        a.l += parts["B"][0] + parts["B"][1]; a("L_roleA:"); a.l += parts["A"][0] + parts["A"][1]
    a("L_code_end:", "s_endpgm")
    if cfg.align: align8(a)
    txt = "; @launch grid=(256,1,1) block=(256,1,1) lds=163840\n"
    txt += '.amdgcn_target "amdgcn-amd-amdhsa--gfx950"\n.text\n'
    txt += khead(NAME + "_kernel") + a.text() + kdesc(NAME + "_kernel")
    return txt, pf

if __name__ == "__main__":
    cfg = Cfg()
    for kv in sys.argv[2:]:
        k, v = kv.split("="); setattr(cfg, k, eval(v))
    open(sys.argv[1], "w").write(build_fused(cfg)[0])
```

```python
import sys, struct

NAME = "gated_mix__ssm_conv_s4__dense_activation_squared_relu__prompt"

def f2u(x): return struct.unpack("<I", struct.pack("<f", x))[0]
def hx(x): return "0x%08x" % (x & 0xffffffff)

class Asm:
    def __init__(self):
        self.l = []
    def __call__(self, *lines):
        for s in lines:
            for t in s.split("\n"):
                t = t.strip()
                if t:
                    self.l.append(t if t.endswith(":") else "    " + t)
    def text(self): return "\n".join(self.l) + "\n"

def vr(a, n=1, p="v"): return f"{p}{a}" if n == 1 else f"{p}[{a}:{a+n-1}]"
def ar(a, n=1): return vr(a, n, "a")
def sr(a, n=1): return vr(a, n, "s")

def weave(main, fill, start=0, end=None):
    end = len(main) if end is None else end
    out = []; n = end - start; k = 0
    for i, m in enumerate(main):
        out.append(m)
        if start <= i < end:
            tgt = (len(fill)*(i-start+1) + n - 1)//n
            while k < tgt:
                out.append(fill[k]); k += 1
    assert k == len(fill)
    return out
def insert(main, pos_items):
    out = []
    for i, m in enumerate(main):
        out += pos_items.get(i, [])
        out.append(m)
    assert all(k < len(main) for k in pos_items)
    return out

class Stream:
    def __init__(self, a):
        self.a = a; self.n = {"vm": 0, "lg": 0}; self.done = {"vm": 0, "lg": 0}; self.tok = {}
    def __call__(self, *l): self.run(l)
    def op(self, kind, ins, tag=None):
        self.a(ins); self.n[kind] += 1
        if tag is not None: self.tok[tag] = (kind, self.n[kind])
    def need(self, *tags):
        w = {}
        for t in tags:
            k, i = self.tok[t]
            if i > self.done[k]: w[k] = max(w.get(k, 0), i)
        parts = []
        for k, i in w.items():
            left = min(self.n[k] - i, 63 if k == "vm" else 15)
            self.done[k] = self.n[k] - left
            parts.append(f"{'vmcnt' if k == 'vm' else 'lgkmcnt'}({left})")
        if parts: self.a("s_waitcnt " + " ".join(parts))
    def drain(self, kind):
        if self.done[kind] < self.n[kind]:
            self.a(f"s_waitcnt {'vmcnt' if kind == 'vm' else 'lgkmcnt'}(0)"); self.done[kind] = self.n[kind]
    def run(self, items):
        for it in items:
            if callable(it): it(self)
            elif isinstance(it, (list, tuple)): self.run(it)
            else:
                for t in it.split("\n"):
                    t = t.strip()
                    assert not t.startswith(("ds_", "buffer_", "global_")), t
                self.a(it)
def _c(f, c): f.cost = c; return f
def VM(ins, tag=None): return _c(lambda s: s.op("vm", ins, tag), 16 if "store_dwordx4" in ins else 14 if ins.endswith("lds") else 10)
def LG(ins, tag=None): return _c(lambda s: s.op("lg", ins, tag), 16 if "write_b128" in ins else 8 if "write" in ins else 4.5)
def NEED(*t): return _c(lambda s: s.need(*t), 4)
def DRAIN(k): return _c(lambda s: s.drain(k), 4)
def M0GAP(s):
    if "m0," in s.a.l[-1]: s.a("s_nop 0")
def cost(it):
    if callable(it): return getattr(it, "cost", 0)
    if isinstance(it, (list, tuple)): return sum(cost(x) for x in it)
    c = 0
    for t in it.split("\n"):
        t = t.strip()
        if not t or t.endswith(":"): continue
        op = t.split()[0]
        if op == "s_barrier": c += 8
        elif op.startswith("s_"): c += 4
        elif op.startswith(("v_exp", "v_rcp", "v_sin", "v_cos")): c += 8
        elif op in ("v_mul_f32", "v_add_u32", "v_mov_b32", "v_lshlrev_b32", "v_lshrrev_b32", "v_xor_b32", "v_and_b32", "v_sub_u32", "v_add_f32", "v_sub_f32") and "0x" not in t: c += 4
        else: c += 5
    return c
def sched(st, mf, cap, mand, streams, post=None):
    streams = [list(x) for x in streams]
    for g in range(len(mf)):
        st(mf[g])
        used = cost(mand.get(g, []))
        if g + 1 < len(mf) and isinstance(mf[g+1], list): used += cost(mf[g+1][:-1])
        st(mand.get(g, []))
        while True:
            pick = None
            for q in streams:
                if q and q[0][1] <= g and min(x[2] for x in q) <= g: pick = q; break
            if pick is None:
                for q in streams:
                    if q and q[0][1] <= g and (used == 0 or used + cost(q[0][0]) <= (cap(g) if callable(cap) else cap)): pick = q; break
            if pick is None: break
            x = pick.pop(0); it = x[0]; used += cost(it); st(it)
            if len(x) > 3:
                gp = min(g + x[3][2], len(mf) - 2); streams[x[3][0]].append((x[3][1], gp, gp + 1) + tuple(x[3][3:])); streams[x[3][0]].sort(key=lambda y: y[1])
        if post and g in post: st(post[g])
    assert not any(streams), [len(q) for q in streams]
def paced(items, g0, g1, slack):
    n = len(items)
    return [(it, g0 + j*(g1-g0)//n, g0 + j*(g1-g0)//n + slack) for j, it in enumerate(items)]

H_OFF    = 0
YA_OFF   = 6 << 20
UT_OFF   = 16 << 20
G_OFF    = 11 << 20
FL_OFF   = (12 << 20) + 65536
FL_H     = FL_OFF
FL_Y     = FL_H + 32768
FL_U     = FL_Y + 16384
OOB      = 0x7ffff000
EP_OFF   = FL_OFF - 4096
TAG_STEP = 0x9e3779b1
PROF_OFF = 13 << 20
DBG_OFF  = 14 << 20
WS_SIZE  = 268435456

P_U, P_ARE, P_AIM, P_BRE, P_BIM, P_CRE, P_CIM, P_LDT = 4, 6, 8, 10, 12, 14, 16, 18
P_DSK, P_BX, P_W1, P_B1, P_W2, P_B2, P_GATE, P_OUT = 20, 22, 24, 26, 28, 30, 32, 34
P_DBG, P_WS = 36, 38
S_W, S_XCD, S_SLOT, S_IDX = 40, 41, 42, 43
SRD_U, SRD_W, SRD_WS, SRD_OUT = 44, 48, 52, 56
S_T0, S_T1, S_T2, S_T3 = 66, 67, 68, 69
S_PROF = 70
WS = f"s[{SRD_WS}:{SRD_WS+3}]"

class Cfg:
    prof = False
    fused = True
    allreal = False
    xtouch = False
    krot = True
    hrot = True
    h0_it = 8
    codepf = True
    fine = False
    show = 'setup0 tile utpub upre useen ubar h0pre h0seen k0 h3seen g2'
    spin_limit = 200000
    sleep = 2
    tr_pos = 9; pub_pos = (1, 11); up_pos = (2, 9); ul_pos = 16; tile_at = 3; w0touch = False
    ntx = ''
    nt = ''
    wb = 4
    wk = (); w_last = 8; rs = 4; rd = 6; eg = 0; w_exp = 0; stream = 11; burst = 11; leads = (11, 11, 11); yst = 0; ysfirst = False; ylat = 18; ht = 0; mp = (6, 10); ownfirst = False; early = True; nput = 0
    ct = (0, (1, 12))
    gswap = True; wrot = True; deep = True
    exp = ''
    showa = 'u0 u1 u2 u3 u5 q0 pub0 q1 q2 q3 pub3'
    gate_all = True
    w1t = (2, 17)
    wt_pos = ()
    w_early = 0
    hs = (8, 34, 60); pl = 10; ys = 44; yn = 9; yp = 20
    ne = (16, 4, 4); pd = (11, 10, 10); wmin = 2; paced = 9; cap = 20; cap2 = 27; pre_chunks = 2; dma_gap = 1.7; crot = True; s0 = 2; head1 = 5; wlead = 4; gate_at = 0; alead = 3; epi_first = True; align = True; layout = True; page = True

def srd(d, p, size):
    return [f"s_mov_b32 s{d}, s{p}", f"s_mov_b32 s{d+1}, s{p+1}", f"s_mov_b32 s{d+2}, {hx(size)}", f"s_mov_b32 s{d+3}, 0x20000"]

class Prof:
    def __init__(self, cfg): self.cfg = cfg; self.names = {}
    def __call__(self, role, name, real=False):
        if not self.cfg.prof or not (name in (self.cfg.showa if role == "A" else self.cfg.show).split() or name in ("start", "end", "start_real", "end_real")): return []
        def f(s):
            l = self.names.setdefault(role, [])
            i = len(l); assert i < 15; l.append(name)
            s.a(f"{'s_memrealtime' if (real or self.cfg.allreal) else 's_memtime'} s[{S_PROF+2*i}:{S_PROF+2*i+1}]")
        return [f]
    def flush(self, a, role):
        if not self.cfg.prof: return
        n = len(self.names[role])
        a("s_waitcnt lgkmcnt(0)",
          f"s_lshl_b32 s60, s2, 2", f"s_add_u32 s60, s60, s{S_W}", "s_lshl_b32 s60, s60, 6",
          f"s_add_u32 s60, s60, {PROF_OFF}", "v_mov_b32 v2, s60")
        for i in range(n):
            a(f"v_mov_b32 v3, s{S_PROF+2*i}", f"global_store_dword v2, v3, s[{P_WS}:{P_WS+1}] offset:{4*i}")
        a("s_waitcnt vmcnt(0)")

class Polls:
    def __init__(self, cfg): self.tail = []; self.n = 0; self.cfg = cfg
    def issue(self, tag, vreg, vaddr, off): return [f"v_mov_b32 v{vreg}, 0", VM(self.op(vreg, vaddr, off), tag)]
    def op(self, vreg, vaddr, off): return f"buffer_atomic_or v{vreg}, v{vaddr}, {WS}, 0 offen offset:{off} sc0 sc1"
    def check(self, tag, vreg, vtag, vaddr, off, mask, pf=None, nm=None):
        i = self.n; self.n += 1
        test = f"v_cmp_ne_u32 vcc, v{vtag}, v{vreg}\ns_and_b32 vcc_lo, vcc_lo, {mask}\ns_cbranch_scc1 L_spin{i}"
        self.tail += [f"L_spin{i}:", f"s_sleep {self.cfg.sleep}", "s_add_u32 s100, s100, 1", f"s_cmp_gt_u32 s100, {self.cfg.spin_limit}", "s_cbranch_scc1 L_exit",
                      f"v_mov_b32 v{vreg}, 0", self.op(vreg, vaddr, off), "s_waitcnt vmcnt(0)", test, f"s_branch L_back{i}"]
        return (pf("B", nm+"pre") if pf else []) + [NEED(tag)] + (pf("B", nm+"got") if pf else []) + [test + f"\nL_back{i}:"]

def one_lane(v): return [f"v_min_u32 v{v}, 1, v1", f"v_sub_u32 v{v}, 0, v{v}", f"v_and_b32 v{v}, {hx(OOB)}, v{v}"]
def flag_set(vtag, v1l, soff, off=0): return VM(f"buffer_atomic_swap v{vtag}, v{v1l}, {WS}, s{soff} offen offset:{off} sc1")

RSTRIDE = 14656
TROW    = 272
KB_OFF  = 2240
TT_OFF  = 4384
NDMA    = 14
U_LDS   = 4*RSTRIDE
W2_LDS  = U_LDS + 18432
def w2slot(u):
    if u < 10: return W2_LDS + 8192*u
    if u < 14: return RSTRIDE*(u-10) + 4864
    if u < 16: return U_LDS + 8192*(u-14)
    return W2_LDS + 8192*(u-16)

HI_VALS = [0,1,2,3,4,5,6,7, 256,258,260,262, 512,516,768,772, 1024,1280,1536,1792,2048]
def hi_row(v): return 32 + HI_VALS.index(v)
ROWMAP_REG = [
    [0,1,2,3,4,5,6,7, 512,516,1024,1536, 2048,2048,2048,2048],
    [256,256,258,260,260,260,262,262, 768,772,1280,1792, 1792,1792,1792,1792]]
def rowmap(m):
    i, half, j = m >> 3, (m >> 2) & 1, m & 3
    return hi_row(ROWMAP_REG[half][4*i+j]) - 32

def cmul(d, x, z, t, conj=False, scalar=False):
    if scalar:
        n1, n2 = ("", "-") if conj else ("-", "")
        return [f"v_mul_f32 v{t}, v{x}, v{z}", f"v_mul_f32 v{t+1}, v{x}, v{z+1}",
                f"v_fma_f32 v{d}, {n1}v{x+1}, v{z+1}, v{t}", f"v_fma_f32 v{d+1}, v{x+1}, v{z}, {n2}v{t+1}"]
    neg = "neg_hi:[1,0,0]" if conj else "neg_lo:[1,0,0]"
    return [f"v_pk_mul_f32 {vr(t,2)}, {vr(x,2)}, {vr(z,2)} op_sel_hi:[1,0]",
            f"v_pk_fma_f32 {vr(d,2)}, {vr(x,2)}, {vr(z,2)}, {vr(t,2)} op_sel:[1,1,0] op_sel_hi:[0,1,1] {neg}"]

def role_b(a, cfg, pf, polls):
    st = Stream(a)
    S_CH, S_RB, S_M1, S_M2 = 60, 61, 62, 64
    S_RBK, S_D10, S_TB, S_LW, S_WO, S_HO, S_H2, S_UQ = 56, 57, 3, 26, 27, 32, 33, 59
    S_CHO, S_CWO = 4, 10
    S_DM = 16
    VP = 10; V_LDT, V_DSK, V_DT, V_DTL, V_DTP = 28, 29, 30, 31, 32
    VRAW = 34
    Z1, Z8, Z256, X, T, SV, CV = 40, 42, 44, 46, 48, 50, 58
    D = 64
    Q = 80
    V_AA, V_BA, V_F, V_G = 112, 113, 114, 118
    V_TD, V_TR, V_TS, V_PT = 122, 108, 128, 127
    S_US, S_UF, S_UL = (18, 19, 22, 23), 0, 1
    V_L16, V_Z, V_PU, V_PH, V_PY, V_POLL, V_TAG = 131, 132, 133, 134, 135, 136, 137
    V_YW, V_YR, V_W2, V_RW, V_T, V_YA, V_OUT, V_KW, V_KP = 138, 139, 140, 142, 148, 149, 150, 151, 152
    V_WT, V_WW, V_JUNK, V_GT, V_OG, V_OW, V_OR = 153, 122, 155, 156, 157, 158, 159
    ACC2, ACC = 160, 224
    WF, YA, GA, B2R = 224, 44, 8, 44
    FA, FB = 128, 160
    F0, G0, F1, G1 = 128, 160, 192, 224
    def rawreg(u, i): return ar(8*(u-NDMA) + 4*i, 4)
    GS, TF = 80, 112
    SD, BX, V_TT, V_TW, V_TA, V_TM, V_G9 = 64, 96, 104, 105, 106, 107, 117
    st(f"""
    s_mul_i32 s{S_IDX}, s{S_XCD}, 20
    s_add_u32 s{S_IDX}, s{S_IDX}, s{S_SLOT}
    s_sub_u32 s{S_IDX}, s{S_IDX}, 12
    s_lshl_b32 s{S_CH}, s{S_IDX}, 2
    s_add_u32 s{S_CH}, s{S_CH}, s{S_W}
    s_mul_i32 s{S_T0}, s{S_CH}, 384
    v_lshl_add_u32 v2, v1, 2, s{S_T0}
    v_lshl_add_u32 v4, v1, 1, s{S_T0}
    s_lshl_b32 s{S_T0}, s{S_CH}, 1
    v_mov_b32 v3, s{S_T0}
    v_mov_b32 v{V_LDT}, 0
    s_and_b32 s{S_RBK}, s{S_XCD}, 6
    s_lshl_b32 s{S_RBK}, s{S_RBK}, 1
    s_and_b32 s{S_T0}, s{S_SLOT}, 3
    s_add_u32 s{S_RBK}, s{S_RBK}, s{S_T0}
    s_lshl_b32 s{S_TB}, s{S_RBK}, 2
    s_add_u32 s{S_TB}, s{S_TB}, s{S_W}
    s_and_b32 s{S_D10}, s{S_XCD}, 1
    s_mul_i32 s{S_D10}, s{S_D10}, 5
    s_lshr_b32 s{S_T0}, s{S_SLOT}, 2
    s_add_u32 s{S_D10}, s{S_D10}, s{S_T0}
    s_sub_u32 s{S_D10}, s{S_D10}, 3
    s_lshl_b32 s{S_UQ}, s{S_W}, 12
    s_add_u32 s{S_UQ}, s{S_UQ}, {U_LDS}
    s_mov_b32 m0, s{S_UQ}
    s_mul_i32 s{S_T2}, s{S_TB}, {32*1280}
    s_lshl_b32 s{S_T1}, s{S_D10}, 7
    s_add_u32 s{S_T3}, s{S_T2}, s{S_T1}
    v_lshrrev_b32 v5, 3, v1
    v_and_b32 v6, 7, v1
    v_bfe_u32 v7, v1, 4, 1
    v_xor_b32 v7, v7, v6
    v_lshlrev_b32 v7, 4, v7
    v_mov_b32 v8, 1280
    v_mad_u32_u24 v{V_TD}, v5, v8, v7
    v_mov_b32 v9, {EP_OFF}
    s_mov_b32 s{SRD_U+2}, {2048*1280}
    s_mov_b32 s{SRD_U+3}, 0x20000
    """)
    for i in range(1, 4): st(f"v_xor_b32 v{V_TD+i}, {32*i}, v{V_TD}", f"v_add_u32 v{V_TD+i}, {(8*1280-1024)*i}, v{V_TD+i}")
    for i in list(range(VP+12, VP+18)) + [V_DSK]: st(f"v_mov_b32 v{i}, 0")
    st("s_waitcnt lgkmcnt(0)")
    st(pf("B", "karg"))
    PP = (P_ARE, P_AIM, P_BRE, P_BIM, P_CRE, P_CIM)
    tile = srd(SRD_U, P_U, 0)[:2] + [VM(f"buffer_load_dwordx4 v{V_TD+i}, s[{SRD_U}:{SRD_U+3}], s{S_T3} offen offset:{1024*i} lds", "tile") for i in range(4)]
    if cfg.tile_at == 0: st(tile)
    st(VM(f"global_load_short_d16_hi v{V_LDT}, v3, s[{P_LDT}:{P_LDT+1}]", "ldt"))
    for k, p in enumerate(PP): st(VM(f"global_load_dword v{VRAW+k}, v2, s[{p}:{p+1}] {cfg.nt}", "p01"))
    if cfg.tile_at == 1: st(tile)
    st(VM(f"global_load_dword v{V_TAG}, v9, s[{P_WS}:{P_WS+1}] sc1", "tag"),
       [VM(f"global_load_short_d16_hi v{VP+12+k}, v4, s[{p}:{p+1}] offset:256 {cfg.nt}", "p2") for k, p in enumerate(PP)],
       VM(f"global_load_short_d16_hi v{V_DSK}, v3, s[{P_DSK}:{P_DSK+1}]", "dsk"))
    a("@SPLIT:")
    st(pf("B", "body"))
    if cfg.tile_at > 1: st(tile[:2]); tile = [f"s_mov_b32 m0, s{S_UQ}\ns_nop 0"] + tile[2:] + [f"s_mov_b32 m0, s{S_RB}"]
    st("v_and_b32 v5, 31, v1")
    V_W1T = 33
    if cfg.xtouch: st(f"""
    s_cmp_ge_u32 s{S_D10}, 5
    s_cselect_b32 s{S_T0}, 1280, 0
    s_sub_u32 s{S_T0}, s{S_T3}, s{S_T0}
    s_add_u32 s{S_T0}, s{S_T0}, 640
    v_mul_u32_u24 v6, 1280, v5
    """, VM(f"buffer_load_dword v{V_JUNK}, v6, s[{SRD_U}:{SRD_U+3}], s{S_T0} offen"))
    if cfg.w1t or cfg.w0touch: st(f"""
    s_lshl_b32 s{S_T0}, s{S_SLOT}, 2
    s_add_u32 s{S_T0}, s{S_T0}, s{S_W}
    s_sub_u32 s{S_T0}, s{S_T0}, 48
    s_mul_i32 s{S_T0}, s{S_T0}, {8*3072}
    s_and_b32 s{S_T2}, s{S_XCD}, 1
    s_mul_i32 s{S_T2}, s{S_T2}, 1536
    s_add_u32 s{S_T0}, s{S_T0}, s{S_T2}
    v_and_b32 v4, 7, v1
    v_mul_u32_u24 v4, 3072, v4
    v_bfe_u32 v6, v1, 3, 2
    v_min_u32 v6, 2, v6
    v_lshl_add_u32 v4, v6, 9, v4
    v_add_u32 v{V_W1T}, s{S_T0}, v4
    """)
    if cfg.w0touch: st(f"v_lshrrev_b32 v6, {7-cfg.s0}, v1", f"v_lshl_add_u32 v6, v6, 7, v{V_W1T}", VM(f"global_load_dword v{V_JUNK}, v6, s[{P_W1}:{P_W1+1}]"))
    st(f"s_mul_i32 s{S_RB}, s{S_W}, {RSTRIDE}")
    st(srd(SRD_WS, P_WS, WS_SIZE), srd(SRD_W, P_W2, 1536*1280))
    st(f"s_mov_b32 m0, s{S_RB}", "v_mov_b32 v9, 0x3f80",
       f"s_mov_b32 s{S_M1}, 0", f"s_mov_b32 s{S_M1+1}, -1",
       LG("ds_write_addtid_b32 v9"),
       f"s_mov_b32 s{S_M2}, 0xaaaaaaaa", f"s_mov_b32 s{S_M2+1}, 0xaaaaaaaa",
       "v_mov_b32 v6, 0", "v_mov_b32 v7, 0", "v_lshlrev_b32 v9, 3, v0", f"v_add_u32 v9, {U_LDS+16384}, v9",
       LG("ds_write_b64 v9, v[6:7]"))
    st("v_lshrrev_b32 v3, 5, v1", f"v_lshl_add_u32 v6, v3, 4, s{S_RB}",
       f"v_mov_b32 v8, {TROW}", f"v_mad_u32_u24 v{V_BA}, v5, v8, v6", "v_mov_b32 v7, 32")
    for k in range(5):
        mask = sum(((rowmap(m) >> k) & 1) << m for m in range(32))
        st(f"s_mov_b32 s{S_T0}, {hx(mask)}", f"v_bfe_u32 v9, s{S_T0}, v5, 1", f"v_lshl_add_u32 v7, v9, {k}, v7")
    st(f"v_mad_u32_u24 v{V_AA}, v7, v8, v6")
    st(f"""
    s_mul_i32 s{S_WO}, s{S_W}, {16*1280}
    s_add_u32 s{S_WO}, s{S_WO}, s{S_T1}
    s_lshl_b32 s{S_LW}, s{S_W}, 11
    s_mul_i32 s{S_HO}, s{S_TB}, {96*1024}
    v_lshrrev_b32 v2, 3, v1
    v_and_b32 v4, 2, v2
    v_and_b32 v5, 7, v1
    v_xor_b32 v4, v4, v5
    v_lshlrev_b32 v4, 4, v4
    v_mov_b32 v8, 1280
    v_mad_u32_u24 v{V_W2}, v2, v8, v4
    v_add_u32 v{V_W2+1}, {8*1280-1024}, v{V_W2}
    v_lshlrev_b32 v{V_L16}, 4, v1
    v_mov_b32 v{V_Z}, 0
    v_lshl_add_u32 v154, v3, 6, s{S_T1}
    """)
    if cfg.wt_pos: st(f"""
    s_and_b32 s{S_T0}, s{S_TB}, 15
    s_mul_i32 s{S_T0}, s{S_T0}, 48
    v_min_u32 v4, 47, v1
    v_add_u32 v4, s{S_T0}, v4
    v_and_b32 v5, 0x380, v4
    v_add_u32 v4, v4, v5
    v_mad_u32_u24 v{V_WT}, v4, v8, s{S_T1}
    """)
    V_CT = 129
    if cfg.ct and cfg.ct[0] != 0: st(f"""
    s_sub_u32 s{S_T0}, s{S_SLOT}, 12
    s_lshl_b32 s{S_T0}, s{S_T0}, 2
    s_add_u32 s{S_T0}, s{S_T0}, s{S_W}
    s_lshr_b32 s{S_T2}, s{S_XCD}, 1
    s_mul_i32 s{S_T2}, s{S_T2}, 80
    s_add_u32 s{S_T0}, s{S_T0}, s{S_T2}
    s_mul_i32 s{S_T0}, s{S_T0}, {2*3072}
    s_and_b32 s{S_T2}, s{S_XCD}, 1
    s_mul_i32 s{S_T2}, s{S_T2}, 1536
    s_add_u32 s{S_T0}, s{S_T0}, s{S_T2}
    v_and_b32 v4, 3, v1
    v_max_u32 v4, {cfg.s0}, v4
    v_bfe_u32 v5, v1, 2, 2
    v_min_u32 v5, 2, v5
    v_lshl_add_u32 v4, v5, 2, v4
    v_bfe_u32 v5, v1, 4, 1
    v_mad_u32_u24 v4, v5, 24, v4
    v_lshl_add_u32 v{V_CT}, v4, 7, s{S_T0}
    """)
    if cfg.ct and cfg.ct[1] != 0: st(f"""
    s_mul_i32 s{S_T0}, s{S_TB}, {24*1280}
    s_add_u32 s{S_T0}, s{S_T0}, s{S_T1}
    v_min_u32 v4, 23, v1
    v_mad_u32_u24 v{V_CT+1}, v4, v8, s{S_T0}
    """)
    ctouch = [[VM(f"global_load_dword v{V_JUNK}, v{V_CT}, s[{P_W1}:{P_W1+1}]")], [VM(f"buffer_load_dword v{V_JUNK}, v{V_CT+1}, s[{SRD_W}:{SRD_W+3}], 0 offen")]]
    def tables():
        l = []
        if cfg.hrot:
            l += [f"s_sub_u32 s{S_T0}, s{S_SLOT}, 12", f"s_lshr_b32 s{S_T0}, s{S_T0}, 2"]
            if cfg.wrot: l += f"""s_and_b32 s{S_T1}, s{S_RBK}, 3
            s_mul_i32 s{S_T1}, s{S_T1}, 3
            s_add_u32 s{S_T1}, s{S_T1}, 1
            s_lshr_b32 s{S_T1}, s{S_T1}, 1
            s_add_u32 s{S_T0}, s{S_T0}, s{S_T1}
            s_lshr_b32 s{S_T1}, s{S_RBK}, 2
            s_add_u32 s{S_T0}, s{S_T0}, s{S_T1}
            s_mul_i32 s{S_T1}, s{S_T0}, 43
            s_lshr_b32 s{S_T1}, s{S_T1}, 8
            s_mul_i32 s{S_T1}, s{S_T1}, 6
            s_sub_u32 s{S_T0}, s{S_T0}, s{S_T1}""".split("\n")
        else: l += [f"s_mov_b32 s{S_T0}, 0"]
        for p in range(6):
            l += [f"s_lshl_b32 s{S_T1}, s{S_T0}, 12", f"s_add_u32 s{S_CHO+p}, s{S_T1}, s{S_HO}",
                  f"s_mul_i32 s{S_T1}, s{S_T0}, {256*1280}", f"s_add_u32 s{S_CWO+p}, s{S_T1}, s{S_WO}"]
            if p < 5: l += [f"s_add_u32 s{S_T0}, s{S_T0}, 1", f"s_cmp_eq_u32 s{S_T0}, 6\ns_cselect_b32 s{S_T0}, 0, s{S_T0}"]
        if cfg.ownfirst: l[len(l)-34:len(l)-34] = [f"s_and_b32 s{S_T0}, s{S_XCD}, 1", f"s_mul_i32 s{S_T0}, s{S_T0}, 3"]
        return l
    if cfg.tile_at == 2: st(tile)
    st(f"""
    v_bfe_u32 v2, v1, 2, 2
    v_and_b32 v4, 3, v1
    v_lshrrev_b32 v5, 4, v1
    v_lshl_add_u32 v6, v4, 3, 3
    v_sub_u32 v6, v6, v2
    v_bfe_u32 v7, v6, 1, 1
    v_lshl_add_u32 v7, v4, 1, v7
    v_xor_b32 v7, v7, v3
    v_lshlrev_b32 v7, 4, v7
    v_lshl_add_u32 v7, v6, 7, v7
    v_and_b32 v9, 1, v5
    v_lshl_add_u32 v7, v9, 3, v7
    v_add_u32 v{V_TR}, s{S_UQ}, v7
    v_xor_b32 v{V_TR+1}, 32, v{V_TR}
    v_xor_b32 v{V_TR+2}, 64, v{V_TR}
    v_xor_b32 v{V_TR+3}, 0x60, v{V_TR}
    s_andn2_b32 s{S_T0}, 3, s{S_TB}
    v_xor_b32 v6, s{S_T0}, v4
    v_lshlrev_b32 v6, 4, v6
    v_sub_u32 v7, 3, v2
    v_lshl_add_u32 v6, v7, 6, v6
    v_lshl_add_u32 v{V_TS}, v5, 14, v6
    s_lshl_b32 s{S_T0}, s{S_D10}, 18
    s_lshl_b32 s{S_T1}, s{S_TB}, 8
    s_sub_u32 s{S_T0}, s{S_T0}, s{S_T1}
    s_add_u32 s{S_US[0]}, s{S_T0}, {UT_OFF + 63*256}
    s_add_u32 s{S_US[1]}, s{S_T0}, {UT_OFF + 63*256 + 65536}
    s_add_u32 s{S_US[2]}, s{S_T0}, {UT_OFF + 63*256 + 2*65536}
    s_add_u32 s{S_US[3]}, s{S_T0}, {UT_OFF + 63*256 + 3*65536}
    s_lshl_b32 s{S_T0}, s{S_D10}, 2
    s_lshr_b32 s{S_T1}, s{S_TB}, 4
    s_add_u32 s{S_T0}, s{S_T0}, s{S_T1}
    s_lshl_b32 s{S_T0}, s{S_T0}, 6
    s_and_b32 s{S_T1}, s{S_TB}, 15
    s_add_u32 s{S_T0}, s{S_T0}, s{S_T1}
    s_lshl_b32 s{S_T0}, s{S_T0}, 2
    s_add_u32 s{S_UF}, s{S_T0}, {FL_U}
    s_lshl_b32 s{S_UL}, s{S_CH}, 12
    s_add_u32 s{S_UL}, s{S_UL}, {UT_OFF}
    s_lshr_b32 s{S_T0}, s{S_IDX}, 4
    s_lshl_b32 s{S_T0}, s{S_T0}, 2
    s_sub_u32 s{S_T0}, s{S_T0}, s{S_W}
    s_lshl_b32 s{S_T0}, s{S_T0}, 8
    s_add_u32 s{S_T0}, s{S_T0}, {FL_U + 768}
    v_lshl_add_u32 v7, v1, 2, s{S_T0}
    v_lshl_add_u32 v{V_PT}, v5, 28, v7
    """, one_lane(V_PU))
    if cfg.wk: st(tables())
    st_main = st; cadr = []
    class _L:
        def __call__(self, *l):
            for x in l: cadr.extend(t.strip() for t in x.split("\n") if t.strip())
    st = _L()
    st("v_lshrrev_b32 v5, 4, v1", "v_and_b32 v6, 15, v1", "v_lshrrev_b32 v3, 5, v1")
    st(f"v_lshl_add_u32 v9, v5, 4, s{S_RB}",
       "v_add_u32 v7, 1, v6", "v_and_b32 v7, 30, v7", "v_lshl_add_u32 v7, v7, 1, v9",
       f"v_add_u32 v8, {KB_OFF}, v7", f"v_cndmask_b32 v{V_F}, v8, v7, s[{S_M2}:{S_M2+1}]")
    for i in range(1, 3): st(f"v_add_u32 v{V_F+i}, {1024*i}, v{V_F}")
    st(f"""
    v_lshrrev_b32 v7, 1, v1
    s_add_u32 s{S_T0}, s{S_RB}, {TT_OFF+64}
    v_lshl_add_u32 v{V_TW}, v7, 2, s{S_T0}
    v_min_u32 v7, 1, v5
    v_mul_u32_u24 v7, {KB_OFF}, v7
    v_lshl_add_u32 v7, v3, 6, v7
    v_lshl_add_u32 v7, v6, 2, v7
    s_add_u32 s{S_T0}, s{S_RB}, 2080
    v_add_u32 v{V_TA}, s{S_T0}, v7
    s_mov_b32 s{S_T0}, 0x30003
    v_bfe_i32 v7, s{S_T0}, v1, 1
    v_cndmask_b32 v{V_TM}, v7, 0, s[{S_M1}:{S_M1+1}]
    s_mov_b32 s{S_T0}, 0xffff
    v_writelane_b32 v{V_TM}, s{S_T0}, 2
    """)
    st("v_lshlrev_b32 v7, 1, v6", "v_sub_u32 v7, v5, v7")
    for r in range(4):
        st(f"v_add_u32 v8, {30+4*r+U_LDS//64}, v7", f"v_add_u32 v9, {30+4*r}, v7", "v_bfe_u32 v9, v9, 2, 2", f"v_xor_b32 v9, s{S_W}, v9",
           "v_lshlrev_b32 v9, 4, v9", f"v_lshl_add_u32 v{V_G+r}, v8, 6, v9")
    st(f"""
    v_add_u32 v{V_KW}, s{S_RB}, v{V_L16}
    v_sub_u32 v7, 7, v1
    v_max_i32 v7, 0, v7
    v_lshl_add_u32 v{V_KP}, v7, 2, s{S_RB}
    """)
    st = st_main
    if not cfg.wk: st(cadr); cadr = tables()
    box = ""
    for j, (msk, sh) in enumerate(((0x7f, 20), (0x1ff, 19))):
        box += f"""
        v_sub_u32 v4, {sh}, v6
        v_mov_b32 v7, {msk}
        v_lshlrev_b32 v4, v4, v7
        v_lshrrev_b32 v4, v2, v4
        """
        for d in range(4): box += f"""
        v_bfe_u32 v7, v4, {2*d}, 2
        v_mul_u32_u24 v7, 0x8001, v7
        v_and_b32 v7, 0x10001, v7
        v_mul_u32_u24 v{BX+4*j+d}, 0x3f80, v7
        """
    late = f"""
    v_and_b32 v6, 15, v1
    v_lshrrev_b32 v5, 4, v1
    v_lshlrev_b32 v7, 1, v6
    v_sub_u32 v7, v5, v7
    v_add_u32 v4, {31+U_LDS//64}, v7
    v_add_u32 v7, 31, v7
    v_bfe_u32 v7, v7, 2, 2
    v_xor_b32 v7, s{S_W}, v7
    v_lshlrev_b32 v7, 4, v7
    v_lshl_add_u32 v{V_G9}, v4, 6, v7
    v_lshlrev_b32 v7, 2, v5
    v_sub_u32 v7, v6, v7
    s_add_u32 s{S_T0}, s{S_RB}, {TT_OFF+52}
    v_lshl_add_u32 v{V_TT}, v7, 2, s{S_T0}
    @addr
    v_lshlrev_b32 v2, 3, v5
    {box}
    @box
    s_lshr_b32 s{S_T0}, s{S_TB}, 1
    s_lshl_b32 s{S_T0}, s{S_T0}, 10
    s_add_u32 s{S_T0}, s{S_T0}, {FL_H}
    v_lshl_add_u32 v7, v1, 2, s{S_T0}
    v_subrev_u32 v6, 12, v1
    v_ashrrev_i32 v6, 31, v6
    v_mov_b32 v5, {hx(OOB)}
    v_bfi_b32 v{V_PH}, v6, v7, v5
    s_lshr_b32 s{S_T0}, s{S_RBK}, 2
    s_mul_i32 s{S_T0}, s{S_T0}, 10
    s_add_u32 s{S_T0}, s{S_T0}, s{S_D10}
    s_lshl_b32 s{S_T0}, s{S_T0}, 8
    s_add_u32 s{S_T0}, s{S_T0}, {FL_Y}
    v_lshl_add_u32 v7, v1, 2, s{S_T0}
    v_subrev_u32 v6, 16, v1
    v_ashrrev_i32 v6, 31, v6
    v_bfi_b32 v{V_PY}, v6, v7, v5
    v_and_b32 v5, 31, v1
    v_lshrrev_b32 v3, 5, v1
    s_lshl_b32 s{S_T1}, s{S_D10}, 7
    s_lshl_b32 s{S_T0}, s{S_TB}, 5
    v_add_u32 v7, s{S_T0}, v5
    s_lshl_b32 s{S_T2}, s{S_TB}, 10
    v_lshl_add_u32 v{V_T}, v5, 2, s{S_T2}
    v_lshlrev_b32 v6, 17, v3
    v_lshl_add_u32 v{V_YA}, v7, 3, v6
    v_and_b32 v6, 7, v1
    v_lshrrev_b32 v7, 3, v1
    s_mul_i32 s{S_T0}, s{S_T0}, 1280
    s_add_u32 s{S_T0}, s{S_T0}, s{S_T1}
    v_mul_u32_u24 v4, 1280, v7
    v_lshl_add_u32 v4, v6, 4, v4
    v_add_u32 v{V_OUT}, s{S_T0}, v4
    s_lshl_b32 s{S_T0}, s{S_W}, 12
    s_add_u32 s{S_T0}, s{S_T0}, {W2_LDS + 8*8192}
    v_xor_b32 v4, v6, v7
    v_lshl_add_u32 v4, v4, 4, s{S_T0}
    v_lshl_add_u32 v{V_OR}, v7, 7, v4
    v_lshlrev_b32 v4, 2, v3
    v_xor_b32 v4, v4, v6
    v_lshl_add_u32 v4, v4, 4, s{S_T0}
    v_lshl_add_u32 v{V_OW}, v5, 7, v4
    v_bfe_u32 v2, v1, 2, 2
    v_lshl_add_u32 v4, v3, 2, v2
    v_lshlrev_b32 v4, 7, v4
    v_lshrrev_b32 v5, 1, v2
    v_lshl_add_u32 v4, v5, 5, v4
    v_and_b32 v5, 1, v1
    v_lshl_add_u32 v4, v5, 6, v4
    v_bfe_u32 v5, v1, 4, 1
    v_lshl_add_u32 v4, v5, 4, v4
    v_bfe_u32 v5, v1, 1, 1
    v_lshl_add_u32 v{V_RW}, v5, 3, v4
    v_xor_b32 v{V_RW+1}, 32, v{V_RW}
    v_add_u32 v{V_RW+2}, 0x10000, v{V_RW}
    v_add_u32 v{V_RW+3}, 0x10000, v{V_RW+1}
    v_add_u32 v{V_RW+4}, 0x20000, v{V_RW}
    v_add_u32 v{V_RW+5}, 0x20000, v{V_RW+1}
    v_add_u32 v{V_WW}, s{S_LW}, v{V_L16}
    v_add_u32 v{V_WW+1}, 0x10000, v{V_WW}
    v_add_u32 v{V_WW+2}, 0x20000, v{V_WW}
    v_and_b32 v6, 15, v1
    v_lshrrev_b32 v5, 4, v1
    v_and_b32 v4, 3, v1
    v_lshlrev_b32 v7, 2, v5
    v_lshl_add_u32 v7, v6, 4, v7
    v_add_u32 v{V_YW}, s{S_RB}, v7
    v_mul_u32_u24 v7, {RSTRIDE}, v2
    v_lshl_add_u32 v7, v4, 3, v7
    v_lshl_add_u32 v7, v5, 5, v7
    s_lshl_b32 s{S_T0}, s{S_W}, 9
    v_add_u32 v{V_YR}, s{S_T0}, v7
    """
    late_l = []
    for t in late.split("\n"):
        t = t.strip()
        if t: late_l.append(t)
    b2l = [VM(f"global_load_dwordx4 {vr(B2R+4*i,4)}, v154, s[{P_B2}:{P_B2+1}] offset:{16*i}", "b2") for i in range(4)]
    late2 = [NEED("b2")] + [x for i in range(16) for x in (f"v_lshlrev_b32 v{ACC2+2*i}, 16, v{B2R+i}", f"v_and_b32 v{ACC2+2*i+1}, 0xffff0000, v{B2R+i}")]
    for j, gp in enumerate(cfg.ct):
        if gp is None: st(ctouch[j])
    if cfg.tile_at == 3: st(tile)
    st(pf("B", "idle"))
    LH = f2u(1.4426950408889634); LHf = struct.unpack("<f", struct.pack("<I", LH))[0]
    st(f"s_mov_b32 s{S_T0}, {hx(LH)}", f"s_mov_b32 s{S_T1}, {hx(f2u(1.4426950408889634-LHf))}", f"s_mov_b32 s{S_T2}, {hx(f2u(0.6931471805599453))}",
      NEED("ldt"),
      f"v_mul_f32 v5, s{S_T0}, v{V_LDT}",
      f"v_fma_f32 v6, v{V_LDT}, s{S_T0}, -v5",
      f"v_exp_f32 v7, v5",
      f"v_fma_f32 v6, v{V_LDT}, s{S_T1}, v6",
      f"v_mul_f32 v6, s{S_T2}, v6",
      f"v_fma_f32 v7, v7, v6, v7",
      f"v_cvt_pk_bf16_f32 v{V_DT}, 0, v7",
      f"v_mul_f32 v{V_DTL}, s{S_T0}, v{V_DT}",
      f"v_mul_f32 v{V_DTP}, 0.15915494, v{V_DT}")
    def setup(g):
        p = VP + 6*g
        l = [NEED("p01" if g < 2 else "p2")]
        if g == 0: l += [f"v_lshlrev_b32 v{p+k}, 16, v{VRAW+k}" for k in range(6)]
        if g == 1: l += [f"v_and_b32 v{p+k}, 0xffff0000, v{VRAW+k}" for k in range(6)]
        l += [f"v_mul_f32 v{p}, v{p}, v{V_DTL}",
             f"v_mul_f32 v{p+1}, v{p+1}, v{V_DTP}",
             f"v_mul_f32 v{p+2}, v{p+2}, v{V_DT}",
             f"v_mul_f32 v{p+3}, v{p+3}, v{V_DT}",
             f"v_exp_f32 v2, v{p}",
             f"v_fract_f32 v3, v{p+1}",
             f"v_mul_f32 v4, 0x41000000, v{p}",
             f"v_mul_f32 v5, 0x41000000, v{p+1}",
             f"v_cos_f32 v{Z1}, v3",
             f"v_sin_f32 v{Z1+1}, v3",
             f"v_exp_f32 v4, v4",
             f"v_fract_f32 v5, v5",
             f"v_mul_f32 v6, 0x43800000, v{p}",
             f"v_mul_f32 v7, 0x43800000, v{p+1}",
             f"v_cos_f32 v{Z8}, v5",
             f"v_sin_f32 v{Z8+1}, v5",
             f"v_exp_f32 v6, v6",
             f"v_fract_f32 v7, v7",
             f"v_mul_f32 v{Z1}, v2, v{Z1}",
             f"v_mul_f32 v{Z1+1}, v2, v{Z1+1}",
             f"v_cos_f32 v{Z256}, v7",
             f"v_sin_f32 v{Z256+1}, v7",
             f"v_mul_f32 v{Z8}, v4, v{Z8}",
             f"v_mul_f32 v{Z8+1}, v4, v{Z8+1}",
             f"v_mul_f32 v{SV}, v{p+4}, v{p+2}",
             f"v_mul_f32 v{SV+1}, v{p+4}, v{p+3}",
             f"v_mul_f32 v{Z256}, v6, v{Z256}",
             f"v_mul_f32 v{Z256+1}, v6, v{Z256+1}",
             f"v_fma_f32 v{SV}, -v{p+5}, v{p+3}, v{SV}",
             f"v_fma_f32 v{SV+1}, -v{p+5}, v{p+2}, -v{SV+1}"]
        return l
    def chains(nscalar):
        vals = []
        def put(pre, x, row): vals.append((pre, x, row))
        def sc(): return len(vals) <= nscalar
        put([], SV, hi_row(0))
        prev = SV
        for j in range(1, 8):
            d = SV + j if j % 2 == 0 else X
            put(cmul(d, prev, Z1, T, True, sc()), d, hi_row(j)); prev = d
        for j in (0, 2, 4, 6): put(cmul(SV+j, SV+j, Z256, T, True, sc()), SV+j, hi_row(256+j))
        for b in (512, 768):
            for j in (0, 4): put(cmul(SV+j, SV+j, Z256, T, True), SV+j, hi_row(b+j))
        for b in (1024, 1280, 1536, 1792, 2048): put(cmul(SV, SV, Z256, T, True), SV, hi_row(b))
        put([], Z8, 1)
        prev = Z8
        for b in range(2, 32): put(cmul(X, prev, Z8, T), X, b); prev = X
        l = []; i = 0; nrd = 0
        while i < len(vals):
            n = 1 if (nscalar and i <= nscalar) else min(cfg.wb, len(vals) - i)
            g = []
            for j in range(n):
                pre, x, row = vals[i+j]; g += pre + [f"v_cvt_pk_bf16_f32 v{CV+(i+j)%6}, v{x}, v{x+1}"]
            for j in range(n): g.append(LG(f"ds_write_addtid_b32 v{CV+(i+j)%6} offset:{vals[i+j][2]*TROW}"))
            i += n
            if i >= 24:
                for k in range(nrd, min(nrd+2, 8)): g.append(LG(f"ds_read_b128 {ar(FA+4*k,4)}, v{V_AA} offset:{32*k}"))
                nrd = min(nrd+2, 8)
            l.append(g)
        assert nrd == 8
        return l
    def mm(g, k):
        c = "0" if (g == 0 and k == 0) else vr(D, 16)
        return [NEED(("fb", k)), f"v_mfma_f32_32x32x16_bf16 {vr(D,16)}, {ar(FA+4*k,4)}, {ar(FB+4*k,4)}, {c}"]
    fbreads = [LG(f"ds_read_b128 {ar(FB+4*k,4)}, v{V_BA} offset:{32*k}", ("fb", k)) for k in range(8)]
    def w2load(u):
        sg, p = divmod(u, 6)
        so = f"s_add_u32 s{S_DM}, s{S_CWO+p}, {sg*64*1280}"
        if u < NDMA:
            v = [VM(f"buffer_load_dwordx4 v{V_W2+i}, s[{SRD_W}:{SRD_W+3}], s{S_DM} offen offset:{1024*i} lds", ("w2", u)) for i in range(2)]
            return [[f"s_add_u32 m0, s{S_LW}, {w2slot(u)}", so, v[0]], v[1]]
        v = [VM(f"buffer_load_dwordx4 {rawreg(u,i)}, v{V_W2+i}, s[{SRD_W}:{SRD_W+3}], s{S_DM} offen offset:{1024*i}", ("w2", u)) for i in range(2)]
        return [[so, v[0]], v[1]]
    def w2put(u):
        l = []
        for i in range(2):
            o = w2slot(u) + 1024*i
            l.append([NEED(("w2", u)), LG(f"ds_write_b128 v{V_WW+(o>>16)}, {rawreg(u,i)} offset:{o & 0xffff}", ("put", u))])
        return l
    def w2touch(j): return [f"s_mov_b32 s{S_T3}, {128*1280*j}", VM(f"buffer_load_dword v{V_JUNK}, v{V_WT}, s[{SRD_W}:{SRD_W+3}], s{S_T3} offen")]
    ins = [{}, {}, {}]
    def at(g, pos, items): ins[g].setdefault(pos, []).extend(items)
    tr = pf("B", "tpre") + [NEED("tile")] + pf("B", "tile")
    for x in range(4):
        tr += [LG(f"ds_read_b64_tr_b16 {vr(Q+4*x,2)}, v{V_TR+x} offset:512"), LG(f"ds_read_b64_tr_b16 {vr(Q+4*x+2,2)}, v{V_TR+x}", ("tr", x))]
    at(0, cfg.tr_pos, tr)
    at(0, cfg.tr_pos+1, [x for j in range(4) for x in (NEED(("tr", j)), VM(f"buffer_store_dwordx4 {vr(Q+4*j,4)}, v{V_TS}, {WS}, s{S_US[j]} offen sc1", "ut"))])
    at(*cfg.pub_pos, pf("B", "ppre") + [NEED("ut"), f"v_add_u32 v{V_TAG}, {hx(TAG_STEP)}, v{V_TAG}", flag_set(V_TAG, V_PU, S_UF)] + pf("B", "utpub"))
    at(*cfg.up_pos, polls.issue("up", V_POLL, V_PT, 0))
    at(2, cfg.ul_pos, polls.check("up", V_POLL, V_TAG, V_PT, 0, "0xffff", pf, "u") + [f"s_mov_b32 m0, s{S_UQ}\ns_nop 0"] +
       [VM(f"buffer_load_dwordx4 v{V_L16}, {WS}, s{S_UL} offen offset:{1024*i} sc1 lds", "U") for i in range(4)] +
       [f"s_mov_b32 m0, s{S_RB}\ns_nop 0"] + pf("B", "useen"))
    for j, gp in enumerate(cfg.ct):
        if gp: at(*gp, ctouch[j])
    for j, (g, pos) in enumerate(cfg.wt_pos): at(g, pos, w2touch(j))
    if cfg.w1t: at(*cfg.w1t, [VM(f"global_load_dword v{V_JUNK}, v{V_W1T}, s[{P_W1}:{P_W1+1}] offset:{128*q}") for q in range(cfg.s0, 4)])
    order = [u for p in range(6) for u in (18+p, p, 6+p, 12+p)]
    for gp in cfg.wk:
        u = next(x for x in order if x >= NDMA); order.remove(u); at(*gp, w2load(u))
    early_u = [u for u in order if u < 10 or u >= NDMA][:cfg.w_early + cfg.w_exp]
    order = early_u + [u for u in order if u not in early_u]
    vq = [x for u in order for x in w2load(u)]
    st(setup(0))
    st(pf("B", "setup0"))
    st(insert(chains(0), ins[0]))
    for g in (1, 2):
        st(fbreads, setup(g))
        c = chains(8)
        for k in range(8): c[k+1] = mm(g-1, k) + c[k+1]
        st(pf("B", f"kgen{g-1}"))
        st(insert(c, ins[g]))
    st(fbreads, NEED("dsk"), "v_cmp_eq_u32 vcc, 0, v1", cadr[:8], f"v_cndmask_b32 v{V_DSK}, 0, v{V_DSK}, vcc")
    ne = 2*cfg.w_early
    st(weave([mm(2, k) for k in range(8)], cadr[8:-8] + vq[:ne])); vq = vq[ne:]
    st(cadr[-8:], "s_nop 1")
    st(pf("B", "kgen2"))
    N = 10; TT = 14
    dpp = "row_mask:0xf bank_mask:0xf"
    st(f"v_add_f32 v{D}, v{D}, v{V_DSK}")
    for i, nx in enumerate((8, 10, 11, 12)): st(f"v_mov_b32_dpp v{N+i}, v{D+nx} wave_rol:1 {dpp}")
    for i, cu in enumerate((0, 8, 10, 11)): st(f"v_mov_b32_dpp v{N+i}, v{D+cu} wave_shl:1 {dpp}")
    st(f"v_cvt_pk_bf16_f32 v16, 0, v{D}",
       f"v_cvt_pk_bf16_f32 v17, v{D+10}, v{D+10}",
       f"v_cvt_pk_bf16_f32 v18, v{D+10}, v{N+2}",
       f"v_cvt_pk_bf16_f32 v19, v{D+11}, v{N+3}",
       f"v_readfirstlane_b32 s{S_T0}, v17",
       f"v_cndmask_b32 v{D+7}, v{D+7}, v{N}, s[{S_M1}:{S_M1+1}]",
       "v_cndmask_b32 v16, 0, v16, vcc",
       f"v_mov_b32_dpp v18, v18 quad_perm:[1,1,3,3] {dpp}", f"v_mov_b32_dpp v19, v19 quad_perm:[1,1,3,3] {dpp}",
       f"v_and_b32 v17, s{S_T0}, v{V_TM}",
       LG(f"ds_write_b32 v{V_KP}, v16 offset:{KB_OFF}"), LG(f"ds_write_b32 v{V_KP}, v{V_Z}"),
       LG(f"ds_write_b32 v{V_TA}, v17"), LG(f"ds_write2_b32 v{V_TW}, v18, v19 offset1:32"))
    seqs = [[D+i for i in range(8)] + [N],
            [D+8]*3 + [D+9]*3 + [N+1]*3]
    def floads(F, ms, r=0):
        l = []
        for m in ms:
            o = 128*(m & 1) + 16*r
            l.append(LG(f"ds_read2_b32 {ar(F+4*m,2)}, v{V_F+(m>>1)} offset0:{o} offset1:{o+1}"))
            l.append(LG(f"ds_read2_b32 {ar(F+4*m+2,2)}, v{V_F+(m>>1)} offset0:{o+2} offset1:{o+3}", ("F", r, m)))
        return l
    def gload(G, n, r): return LG(f"ds_read_b128 {ar(G+4*n,4)}, v{V_G+(r&3)} offset:{2048*(7-n) + 1024*(r>>2)}", ("G", r, n))
    for p, sq in enumerate(seqs):
        for cpy in range(2):
            q = Q + 8*p + 4*cpy
            for i in range(4): st(f"v_cvt_pk_bf16_f32 v{q+i}, v{sq[2*i+cpy]}, v{sq[2*i+1+cpy]}")
            st(LG(f"ds_write_b128 v{V_KW}, {vr(q,4)} offset:{32 + 1024*p + KB_OFF*cpy}"))
            if 2*p + cpy < cfg.w_exp: st(vq[:2]); vq = vq[2:]
    st(floads(F0, range(5)))
    st(pf("B", "expand"))
    st(NEED("U"), "s_barrier")
    st(pf("B", "ubar"))
    st([gload(G0, n, 0) for n in range(7, -1, -1)])
    def hreg(k): return ar(128 + 4*(k % 32), 4)
    def hload(k):
        sg, rem = divmod(k, 24); p, q = divmod(rem, 4)
        l = [f"s_add_u32 s{S_H2}, s{S_CHO+p}, {H_OFF + sg*24*1024*(0 if 'hq0' in cfg.exp else 1)}"] if q == 0 else []
        return l + [VM(f"buffer_load_dwordx4 {hreg(k)}, v{V_L16}, {WS}, s{S_H2} offen offset:{1024*q} sc1", ("h", k))]
    def hpoll(sg): return polls.issue(("hp", sg), V_POLL, V_PH, 256*sg)
    def hcheck(sg): return polls.check(("hp", sg), V_POLL, V_TAG, V_PH, 256*sg, "0xfff", pf, f"h{sg}") + pf("B", f"h{sg}seen")
    M16 = "v_mfma_f32_16x16x32_bf16"
    def mfmas(F, G, first):
        return [f"{M16} {vr(ACC+4*(m+n),4)}, {ar(F+4*m,4)}, {ar(G+4*n,4)}, {'0' if (first and m == 0) else vr(ACC+4*(m+n),4)}"
                for m in range(5 if first else 4) for n in range(7-m, -1, -1)]
    mf = []; mand = {}; it0 = []
    RS, RD = cfg.rs, cfg.rd
    for r in range(8):
        F, G, Fn, Gn = (F0, G0, F1, G1) if r % 2 == 0 else (F1, G1, F0, G0)
        m_ = mfmas(F, G, r == 0)
        if r == 0:
            for n in (7, 5, 3, 1): m_[7-n] = [NEED(("G", 0, n-1)), m_[7-n]]
        else:
            m_[0] = [NEED(("G", r, 0)), m_[0]]; m_[8] = [NEED(("F", r, 3)), m_[8]]
        if r == RS - 1:
            x = [f"{M16} {vr(SD+4*j,4)}, {ar(GS+4*j,4)}, {vr(BX+4*(j >> 2),4)}, 0" for j in range(8)]
            m_ += [[NEED("gs"), x[0]]] + x[1:]
        if r == RD - 1:
            x = [f"{M16} {vr(ACC+4*(n+dl),4)}, {vr(SD+4*n,4)}, {ar(TF+4*(dl-4),4)}, {vr(ACC+4*(n+dl),4)}" for dl in range(4, 8) for n in range(8-dl)]
            m_ += [[NEED("tf"), x[0]]] + x[1:]
        it0.append(len(mf))
        if r < 7:
            ld = floads(Fn, [0], r+1) + [gload(Gn, n, r+1) for n in range(7, -1, -1)] + floads(Fn, [1, 2, 3], r+1)
            for j, it in enumerate(ld): mand[len(mf) + j*len(m_)//16] = [it]
        mf += m_
    NG = len(mf); it0.append(NG)
    free = [g for g in range(NG) if g not in mand]
    def onfree(items, g0, g1):
        fr = [g for g in free if g0 <= g < g1]; out = []
        for j, it in enumerate(items):
            g = fr[j*len(fr)//len(items)]
            if isinstance(it, list):
                out += [(x, max(g-3, g0), g) for x in it[:-1]]; it = it[-1]
            out.append((it, g, g))
        return out
    sv = onfree(b2l + vq, 0, it0[7] + cfg.w_last)
    L = cfg.stream
    GE = NG - cfg.eg
    if cfg.early:
        k = next((j for j, x in enumerate(sv) if x[2] >= GE - 40 and (j == 0 or callable(sv[j-1][0]))), len(sv))
        sv.insert(k, (hpoll(0), GE - 44, GE - 40))
    hq = [hload(k) for k in range(L)]
    chk = hcheck(0)
    if cfg.eg:
        assert cfg.eg <= 26 and cfg.burst <= 16 and sv[-1][2] < GE
        sv += [(chk, GE, GE)] + onfree(hq[:cfg.burst], GE + 1, NG)
    gS = it0[RS] - 8; gD = it0[RD] - 10
    ka, kb = late_l.index("@addr"), late_l.index("@box")
    xl = [LG(f"ds_read_b128 {ar(GS+4*j,4)}, v{V_G9 if j >> 2 else V_G} offset:{2048*(7-(j & 3))}", "gs") for j in range(8)] + \
         [LG(f"ds_read2_b32 {ar(TF+2*j,2)}, v{V_TT} offset0:{16*(j >> 1)+3-2*(j & 1)} offset1:{16*(j >> 1)+2-2*(j & 1)}", "tf") for j in range(8)]
    sl = [(x, 0, gS-12) for x in late_l[:ka] + xl[:8]] + [(x, 0, gS-3) for x in late_l[ka+1:kb]] + [(x, 0, gD-8) for x in xl[8:]] + \
         [(x, 0, NG-50) for x in late_l[kb+1:]]
    sc = [(f"v_cvt_pk_bf16_f32 v{SD+j}, v{SD+j}, v{SD+16+j}", gS+12, gD-3) for j in range(16)]
    sched(st, mf, 9.5, mand, [sv, sc, sl, [(x, it0[7], NG-1) for x in late2]])
    st(pf("B", "conv"))
    def reads(k):
        u, q = k >> 2, k & 3
        o = w2slot(u) + q*2048; l = []
        if k == 36: l += [NEED(("put", 15)), "s_barrier"]
        if k == 64: l += [NEED(("put", 23)), "s_barrier"]
        b = WF + 8*(k & 3)
        for T_ in range(2):
            for s in range(2):
                oo = o + 1024*s
                l.append(LG(f"ds_read_b64_tr_b16 {vr(b+4*T_+2*s,2)}, v{V_RW+2*(oo>>16)+T_} offset:{oo & 0xffff}", ("w", k)))
        return l
    LEAD = 2
    ysto = [[NEED(("y", x)), VM(f"buffer_store_dwordx4 {vr(24+4*x,4)}, v{V_L16}, {WS}, s{S_T0} offen offset:{1024*x} sc1", "ys")] for x in range(4)]
    yrd = [[LG(f"ds_read_b64_tr_b16 {vr(24+4*x,2)}, v{V_YR} offset:{128*x}"), LG(f"ds_read_b64_tr_b16 {vr(26+4*x,2)}, v{V_YR} offset:{2048+128*x}", ("y", x))] for x in range(4)]
    put1 = [x for u in range(NDMA, 16) for x in w2put(u)]
    ya = [f"s_lshl_b32 s{S_T0}, s{S_IDX}, 14", f"s_lshl_b32 s{S_T1}, s{S_W}, 12", f"s_add_u32 s{S_T0}, s{S_T0}, s{S_T1}", f"s_add_u32 s{S_T0}, s{S_T0}, {YA_OFF}"]
    yw = [[f"v_cvt_pk_bf16_f32 v{8+2*cb}, v{ACC+4*cb}, v{ACC+4*cb+2}", f"v_cvt_pk_bf16_f32 v{9+2*cb}, v{ACC+4*cb+1}, v{ACC+4*cb+3}",
           LG(f"ds_write2st64_b32 v{V_YW}, v{8+2*cb}, v{9+2*cb} offset0:{cb} offset1:{8+cb}")] for cb in range(8)]
    ybar = [NEED(*[("w2", u) for u in range(NDMA)]), DRAIN("lg"), "s_barrier"]
    first = [reads(k) for k in range(LEAD)]
    if cfg.early:
        nb = cfg.burst; n1 = nb + (L - nb)//2
        st([] if cfg.eg else [chk, hq[:nb]], ya, weave(yw, hq[nb:n1]), ybar, first, weave(yrd + put1[:cfg.nput], hq[n1:]))
    else:
        st(ya, yw[:4], [] if cfg.ysfirst else hpoll(0), yw[4:], ybar, yrd)
        if cfg.ysfirst: st(ysto, hpoll(0)); ysto = []
        st(put1[:cfg.nput], first, chk, hq)
    put1 = put1[cfg.nput:]
    st(pf("B", "g2start"))
    ypub = [f"s_mul_i32 s{S_T0}, s{S_W}, 10", f"s_lshr_b32 s{S_T1}, s{S_IDX}, 4", f"s_add_u32 s{S_T0}, s{S_T0}, s{S_T1}", f"s_lshl_b32 s{S_T0}, s{S_T0}, 6",
            f"s_and_b32 s{S_T1}, s{S_IDX}, 15", f"s_add_u32 s{S_T0}, s{S_T0}, s{S_T1}", f"s_lshl_b32 s{S_T0}, s{S_T0}, 2",
            f"s_add_u32 s{S_T0}, s{S_T0}, {FL_Y}", [NEED("ys"), flag_set(V_TAG, V_PU, S_T0)]]
    ypoll = polls.issue("yp", V_JUNK, V_PY, 0)
    ein = [polls.check("yp", V_JUNK, V_TAG, V_PY, 0, "0xffff", pf, "y") + pf("B", "yseen"), f"s_mov_b32 s{S_T1}, {G_OFF}",
           *[VM(f"buffer_load_dword v{40+j if j < 4 else V_GT}, v{V_T}, {WS}, s{S_T1} offen offset:{128*j} sc1", "g") for j in range(5)],
           f"s_lshl_b32 s{S_T1}, s{S_D10}, 18", f"s_add_u32 s{S_T1}, s{S_T1}, {YA_OFF}"]
    for i in range(8):
        ein += [[VM(f"buffer_load_dwordx2 {vr(YA+2*i,2)}, v{V_YA}, {WS}, s{S_T1} offen sc1", "ya"), f"s_add_u32 s{S_T1}, s{S_T1}, 16384"]]
    pre = [NEED("g"), "v_add_f32 v40, v40, v41", "v_add_f32 v42, v42, v43", f"v_add_f32 v40, v40, v{V_GT}", "v_add_f32 v40, v40, v42",
           f"v_mul_f32 v40, {hx(f2u(-1.4426950408889634))}, v40", "v_exp_f32 v40, v40\ns_nop 0", "v_add_f32 v40, 1.0, v40", f"v_rcp_f32 v{V_GT}, v40\ns_nop 0",
           f"v_sub_f32 v{V_OG}, 1.0, v{V_GT}", NEED("ya")]
    for i in range(16):
        pre += [f"v_lshlrev_b32 v{GA+2*i}, 16, v{YA+i}", f"v_and_b32 v{GA+2*i+1}, 0xffff0000, v{YA+i}",
                f"v_mul_f32 v{GA+2*i}, v{GA+2*i}, v{V_GT}", f"v_mul_f32 v{GA+2*i+1}, v{GA+2*i+1}, v{V_GT}"]
    pre += srd(SRD_OUT, P_OUT, 2048*1280) + [f"v_xor_b32 v{2+i}, {16*i}, v{V_OW}" for i in range(1, 4)]
    PL = cfg.pl
    mf = []; mand = {}; post = {}
    for k in range(96):
        b = WF + 8*(k & 3)
        m_ = [f"v_mfma_f32_32x32x16_bf16 {vr(ACC2+16*T_,16)}, {vr(b+4*T_,4)}, {hreg(k)}, {vr(ACC2+16*T_,16)}" for T_ in range(2)]
        mf += [[NEED(("w", k), ("h", k)), m_[0]], m_[1]]
        if k + LEAD < 96: mand[2*k] = reads(k+LEAD)
        post[2*k] = pf("B", f"k{k}")
    sh = []; sp = []
    def hitem(k, step):
        g = 2*step + 1; l = hload(k)
        return [(x, g-1, g) for x in l[:-1]] + [(l[-1], g, g)]
    if L:
        for k in range(L, 24): sh += hitem(k, k - L)
    for sg in (1, 2, 3):
        k0 = 24*sg - cfg.leads[sg-1]
        if k0 - PL >= 0: sp.append((hpoll(sg), 2*(k0-PL), 2*(k0-PL)+1))
        else: st(hpoll(sg))
        sh.append((hcheck(sg), 2*k0, 2*k0))
        for j in range(24): sh += hitem(24*sg + j, k0 + j)
    Y0 = cfg.ys; assert Y0 > 48 - cfg.leads[1]
    sy = paced(ysto, 2*cfg.yst, 2*cfg.yst+8, 0) + [(x, 2*cfg.yp-16, 2*cfg.yp) for x in ypub[:-1]] + [(ypub[-1], 2*cfg.yp, 2*cfg.yp+2)] + [(ypoll, 2*(Y0-PL), 2*(Y0-PL)+2)] + paced(ein, 2*Y0, 2*(Y0+cfg.yn), 2) + paced(pre, 2*(Y0+cfg.yn)+cfg.ylat, 188, 2)
    sw = [(x, g & ~1, g & ~1) for x, g, _ in paced(put1, 10, 60, 0) + paced([x for u in range(16, 24) for x in w2put(u)], 70, 120, 0)]
    if 'noput' in cfg.exp: sw = [(lambda s_: s_.tok.update({("put", 15): ("lg", 0), ("put", 23): ("lg", 0)}), 0, 0)]
    if 'nost' in cfg.exp:
        sy = sy[4:]; st.tok['ys'] = ('vm', 0)
    if 'noy' in cfg.exp:
        sy = [x for x in sy if 's_mov_b32 s5' in str(x[0]) or 'v_xor' in str(x[0]) or x[0] in ypub or (isinstance(x[0], list) and 'L_back' in str(x[0])) or x[0] is ypoll]
    if 'noh' in cfg.exp:
        sh = [x for x in sh if isinstance(x[0], list)]
        for k in range(L or 24, 96): st.tok[("h", k)] = ("vm", 0)
    if 'nopoll' in cfg.exp:
        sh = [x for x in sh if not isinstance(x[0], list)]; sp = []
        polls.tail = polls.tail[:-30]
    sched(st, mf, 24, mand, [sh, sp, sy, sw], post)
    st(pf("B", "g2"))
    st(f"s_mov_b32 s{S_T1}, {8*1280}", f"s_mov_b32 s{S_T2}, {16*1280}", f"s_mov_b32 s{S_T3}, {24*1280}", "s_nop 7")
    for i in range(4):
        for e in range(0, 8, 2): st(f"v_pk_fma_f32 {vr(GA+8*i+e,2)}, {vr(ACC2+8*i+e,2)}, {vr(V_GT,2)}, {vr(GA+8*i+e,2)} op_sel:[0,1,0]")
        for e in range(4): st(f"v_cvt_pk_bf16_f32 v{WF+4*i+e}, v{GA+8*i+2*e}, v{GA+8*i+2*e+1}")
        st(LG(f"ds_write_b128 v{2+i if i else V_OW}, {vr(WF+4*i,4)}"))
    for i in range(4): st(LG(f"ds_read_b128 {vr(WF+16+4*i,4)}, v{V_OR} offset:{1024*i}", ("o", i)))
    for i in range(4):
        st(NEED(("o", i)), VM(f"buffer_store_dwordx4 {vr(WF+16+4*i,4)}, v{V_OUT}, s[{SRD_OUT}:{SRD_OUT+3}], {f's{S_T0+i}' if i else 0} offen sc1"))

A_MISC = 131072
def role_a(a, cfg, pf, polls):
    S_RBK, S_C6, S_XO, S_WO, S_HO, S_LX, S_TB, S_ES, S_FL = 60, 61, 62, 63, 56, 64, 65, 58, 43
    S_CX, S_CW, S_KR = 4, 14, 69
    VX, VW, VRX, VRW = 4, 8, 12, 20
    V_EP, V_ST, V_TAG, V_Z, V_BR, V_GL = 22, 23, 28, 29, 30, 31
    WF, PK, GF, ACC = 32, 48, 48, 128
    GACC = ACC + 96
    def xreg(kk, tau):
        n = 2*kk + tau
        return ar(4*n, 4) if n < 64 else vr(64 + 4*(n-64), 4)
    S0 = cfg.s0
    LEAD = cfg.alead
    pairs = []; periods = []
    for c in range(10):
        periods.append((len(pairs), c, c if S0 == 2 else c >> 1, (0, 1) if S0 == 2 else (c & 1,)))
        if S0 == 1: pairs += [(c >> 1, c & 1, q, 4*c+q, 0) for q in range(4)]
        elif c < 9: pairs += [(c, u, q, 4*c+q, u) for q in range(4) for u in range(2)]
        else: pairs += [(c, u, q, 4*c+q, u) for u in range(2) for q in range(4)]
    for b in range(5*S0, 20):
        periods.append((len(pairs), None, b, (0, 1)))
        pairs += [(b, u, q, 8*(b % 5)+4*u+q, b//5) for u in range(2) for q in range(4)]
    NP = len(periods)
    bar_pos = [max(p[0] - LEAD, 0) for p in periods] + [160]
    def free_after(last): return next(e for e in range(NP+1) if bar_pos[e] >= last)
    last_use = {b: max(i for i, p in enumerate(pairs) if p[0] == b) for b in range(20)}
    slot_free = {65536 + 16384*j: 0 for j in range(4)}
    for j in range(4): slot_free[16384*j] = free_after(periods[(8, 9, 6, 7)[j] + 1][0] - 1)
    wsl = {}; wearliest = {}
    for b in range(20):
        sl = min(slot_free, key=lambda x: (slot_free[x], -x >> 16))
        wsl[b] = sl; wearliest[b] = slot_free[sl]; slot_free[sl] = free_after(last_use[b])
    st = Stream(a)
    st(f"""
    s_and_b32 s{S_RBK}, s{S_XCD}, 6
    s_lshl_b32 s{S_RBK}, s{S_RBK}, 1
    s_and_b32 s{S_KR}, s{S_SLOT}, 3
    s_add_u32 s{S_RBK}, s{S_RBK}, s{S_KR}
    s_mul_i32 s{S_KR}, s{S_KR}, {5 if cfg.krot else 0}
    s_add_u32 s{S_KR}, s{S_KR}, 1
    s_lshr_b32 s{S_KR}, s{S_KR}, 1
    s_and_b32 s{S_C6}, s{S_XCD}, 1
    s_mul_i32 s{S_C6}, s{S_C6}, 3
    s_lshr_b32 s{S_T0}, s{S_SLOT}, 2
    s_add_u32 s{S_C6}, s{S_C6}, s{S_T0}
    s_lshl_b32 s{S_T0}, s{S_C6}, 2
    s_lshr_b32 s{S_T0}, {0x962840 if cfg.crot else 0}, s{S_T0}
    s_and_b32 s{S_T0}, s{S_T0}, 15
    s_add_u32 s{S_KR}, s{S_KR}, s{S_T0}
    s_cmp_ge_u32 s{S_KR}, 10
    s_cselect_b32 s{S_T0}, 10, 0
    s_sub_u32 s{S_KR}, s{S_KR}, s{S_T0}
    s_lshl_b32 s{S_TB}, s{S_RBK}, 2
    s_add_u32 s{S_TB}, s{S_TB}, s{S_W}
    s_mul_i32 s{S_XO}, s{S_TB}, {32*1280}
    s_mul_i32 s{S_WO}, s{S_W}, {16*3072}
    s_lshl_b32 s{S_T0}, s{S_C6}, 9
    s_add_u32 s{S_WO}, s{S_WO}, s{S_T0}
    s_lshl_b32 s{S_LX}, s{S_W}, 12
    v_lshrrev_b32 v2, 3, v1
    v_and_b32 v3, 7, v1
    v_lshrrev_b32 v24, 1, v2
    v_xor_b32 v25, v3, v24
    v_lshlrev_b32 v25, 4, v25
    v_mov_b32 v26, 1280
    v_mad_u32_u24 v{VX}, v2, v26, v25
    v_xor_b32 v{VX+1}, 64, v{VX}
    v_add_u32 v{VX+1}, {8*1280-1024}, v{VX+1}
    v_add_u32 v{VX+2}, {16*1280-2048}, v{VX}
    v_add_u32 v{VX+3}, {16*1280-2048}, v{VX+1}
    v_and_b32 v24, 1, v24
    v_lshlrev_b32 v24, 2, v24
    v_xor_b32 v25, v3, v24
    v_lshlrev_b32 v25, 4, v25
    v_mov_b32 v26, 3072
    v_mad_u32_u24 v25, v2, v26, v25
    v_add_u32 v{VW}, 4096, v25
    v_add_u32 v{VW+1}, {4096+8*3072-1024}, v25
    v_add_u32 v{VW+2}, {4096+128*(S0-1)-2048}, v25
    v_add_u32 v{VW+3}, {4096+128*(S0-1)+8*3072-3072}, v25
    v_lshl_add_u32 v27, v1, 3, s{S_T0}
    s_lshl_b32 s{S_T2}, s{S_KR}, 3
    s_mov_b32 s{SRD_U+2}, {2048*1280}
    s_mov_b32 s{SRD_U+3}, 0x20000
    s_mov_b32 s{SRD_W+2}, {640*3072+4096}
    s_mov_b32 s{SRD_W+3}, 0x20000
    s_waitcnt lgkmcnt(0)
    """)
    st(pf("A", "karg"))
    st(srd(SRD_U, P_U, 0)[:2], f"s_sub_u32 s{SRD_W}, s{P_W1}, 4096\ns_subb_u32 s{SRD_W+1}, s{P_W1+1}, 0")
    def ctab(j):
        l = [f"s_lshl_b32 s{S_T0}, s{S_KR}, 7", f"s_add_u32 s{S_CX+j}, s{S_T0}, s{S_XO}",
             f"s_mul_i32 s{S_T0}, s{S_KR}, {64*3072}", f"s_add_u32 s{S_CW+j}, s{S_T0}, s{S_WO}"]
        if j < 9: l += [f"s_add_u32 s{S_KR}, s{S_KR}, 1", f"s_cmp_eq_u32 s{S_KR}, 10\ns_cselect_b32 s{S_KR}, 0, s{S_KR}"]
        return l
    def dma(P):
        _, c, b, us = periods[P]
        l = []
        if c is not None:
            v = [VM(f"buffer_load_dwordx4 v{VX+i}, s[{SRD_U}:{SRD_U+3}], s{S_CX+c} offen offset:{1024*i} lds") for i in range(4)]
            l += [f"s_add_u32 m0, s{S_LX}, {(c & 3)*16384}", [M0GAP, v[0]]] + v[1:]
        v = [VM(f"buffer_load_dwordx4 v{VW+j}, s[{SRD_W}:{SRD_W+3}], s{S_CW+(c if c is not None else 2*(b % 5)+(j >> 1))} offen offset:{1024*j} lds", ("w", P))
             for j in range(4) if j >> 1 in us]
        if c is None and b % 5 == 0: l += [f"v_add_u32 v{VW+j}, {0x100 if (j < 2 and S0 == 2 and b == 10) else 0x80}, v{VW+j}" for j in range(4)]
        return l + [f"s_add_u32 m0, s{S_LX}, {wsl[b]}", [M0GAP, v[0]]] + v[1:]
    st(VM(f"global_load_dwordx2 v[{V_TAG}:{V_TAG+1}], v27, s[{P_B1}:{P_B1+1}]", "b1"))
    st(ctab(0), dma(0))
    a("@SPLIT:")
    st(pf("A", "body"))
    st(srd(SRD_WS, P_WS, WS_SIZE), f"""
    s_and_b32 s{S_T1}, s{S_W}, 1
    s_lshl_b32 s{S_T0}, s{S_C6}, 1
    s_add_u32 s{S_T0}, s{S_T0}, s{S_T1}
    s_lshr_b32 s{S_FL}, s{S_TB}, 1
    s_lshl_b32 s{S_FL}, s{S_FL}, 8
    s_add_u32 s{S_FL}, s{S_FL}, s{S_T0}
    s_lshl_b32 s{S_FL}, s{S_FL}, 2
    s_add_u32 s{S_FL}, s{S_FL}, {FL_H}
    s_lshl_b32 s{S_T0}, s{S_T0}, 11
    s_mul_i32 s{S_HO}, s{S_TB}, {96*1024}
    s_add_u32 s{S_HO}, s{S_HO}, s{S_T0}
    s_xor_b32 s{S_HO+1}, s{S_TB}, 1
    s_mul_i32 s{S_HO+1}, s{S_HO+1}, {96*1024}
    s_add_u32 s{S_HO+1}, s{S_HO+1}, s{S_T0}
    v_lshlrev_b32 v{V_ST}, 4, v1
    v_mov_b32 v{V_EP}, {EP_OFF}
    v_and_b32 v24, 15, v1
    v_add_u32 v24, s{S_T2}, v24
    v_subrev_u32 v25, 80, v24
    v_min_u32 v24, v24, v25
    v_lshlrev_b32 v{V_GL}, 4, v24
    v_bfe_u32 v2, v1, 2, 2
    v_lshrrev_b32 v3, 5, v1
    v_lshl_add_u32 v24, v3, 3, v2
    v_lshlrev_b32 v24, 7, v24
    v_lshrrev_b32 v2, 1, v2
    v_xor_b32 v2, s{S_T1}, v2
    v_lshl_add_u32 v24, v2, 6, v24
    v_bfe_u32 v2, v1, 4, 1
    v_lshl_add_u32 v24, v2, 5, v24
    v_and_b32 v2, 3, v1
    v_lshl_add_u32 v{VRW}, v2, 3, v24
    v_add_u32 v{VRW+1}, 0x10000, v{VRW}
    v_and_b32 v2, 31, v1
    v_bfe_u32 v24, v1, 1, 3
    v_xor_b32 v24, v24, v3
    v_lshlrev_b32 v24, 4, v24
    v_lshl_add_u32 v24, v2, 7, v24
    v_add_u32 v{VRX}, s{S_LX}, v24
    s_lshr_b32 s{S_T2}, s{S_LX}, 1
    s_add_u32 s{S_T2}, s{S_T2}, {A_MISC}
    v_add_u32 v{WF}, s{S_T2}, v{V_ST}
    v_lshl_add_u32 v3, v3, 4, s{S_T2}
    s_lshl_b32 s{S_T1}, s{S_T1}, 7
    v_add_u32 v{V_BR}, s{S_T1}, v3
    """)
    for j in range(1, 8): st(f"v_xor_b32 v{VRX+j}, {32*(j & 3) + 4096*(j >> 2)}, v{VRX}")
    for j in range(1, 10): st(ctab(j))
    st(pf("A", "setup"))
    st(f"s_add_u32 m0, s{S_T2}, 1024\ns_nop 0", VM(f"global_load_lds_dwordx4 v{V_GL}, s[{P_GATE}:{P_GATE+1}]", "gw"),
       VM(f"global_load_dword v0, v{V_EP}, s[{P_WS}:{P_WS+1}] sc1", "tag"))
    st(dma(1)[:cfg.head1])
    st(NEED("b1"), f"v_lshlrev_b32 v24, 16, v{V_TAG}", f"v_and_b32 v25, 0xffff0000, v{V_TAG}", f"v_lshlrev_b32 v26, 16, v{V_TAG+1}", f"v_and_b32 v27, 0xffff0000, v{V_TAG+1}",
       LG(f"ds_write_b128 v{WF}, v[24:27]"), one_lane(V_Z))
    bias = [LG(f"ds_read_b128 {vr(ACC+4*i,4)}, v{V_BR} offset:{256*(i >> 3)+32*(i & 3)}") for i in range(32)]
    st(bias[:8*S0], dma(1)[cfg.head1:])
    for P in range(2, cfg.pre_chunks): st(dma(P))
    st(pf("A", "issued"))
    gate_pairs = [i for i, p in enumerate(pairs[:40*S0]) if p[4] == S0-1][cfg.gate_at:cfg.gate_at+8]
    first_of = {p[0]: P for P, p in enumerate(periods)}
    def reads(i):
        b, u, q, kk, sg = pairs[i]
        l = []
        if i in first_of: l += [[NEED(("w", first_of[i])), "s_barrier"]]
        if sg == 0: l += [LG(f"ds_read_b128 {xreg(kk,tau)}, v{VRX+4*tau+q} offset:{((kk >> 2) & 3)*16384}") for tau in range(2)]
        if i in gate_pairs:
            j = gate_pairs.index(i)
            l += ([NEED("gw")] if j == 0 else []) + [LG(f"ds_read_b128 {vr(GF+4*(j & 3),4)}, v3 offset:{1024+32*j}")]
        o = wsl[b] + 4096*q + 2048*u
        return l + [LG(f"ds_read_b64_tr_b16 {vr(WF+4*(i & 3)+2*s,2)}, v{VRW+(o >> 16)} offset:{(o & 0xffff)+512*s}", ("r", i)) for s in range(2)]
    def epi(sg):
        l = [f"s_add_u32 s{S_ES+tau}, s{S_HO+tau}, {H_OFF + sg*24*1024}" for tau in range(2)]
        for k in range(4):
            r = ACC + 32*sg + 8*k; p = PK + 4*k
            l += [f"v_mul_f32_e64 v{r+e}, v{r+e}, |v{r+e}|" for e in range(8)]
            l += [f"v_cvt_pk_bf16_f32 v{p+e}, v{r+2*e}, v{r+2*e+1}" for e in range(4)]
            l += [f"v_pk_max_i16 v{p+e}, v{p+e}, 0" for e in range(4)]
            l += [VM(f"buffer_store_dwordx4 {vr(p,4)}, v{V_ST}, {WS}, s{S_ES+(k >> 1)} offen offset:{1024*(k & 1)} sc1", ("h", sg))]
        return l
    V_HT, V_HJ, V_HP = 26, 27, 0
    S_MF, S_MH = 28, 29
    def htouch(sg, v): return [f"s_mov_b32 s{S_T0}, {H_OFF + sg*24*1024}", VM(f"buffer_load_dword v{V_HJ}, v{v}, {WS}, s{S_T0} offen sc1")]
    def pub(sg): return [NEED(("h", sg)), flag_set(V_TAG, V_Z, S_FL, 256*sg)] + (htouch(sg, V_HT) if cfg.ht else []) + pf("A", f"pub{sg}")
    def mpoll(sg): V_HP = (24, 0)[sg & 1]; return [f"v_mov_b32 v{V_HP}, 0", VM(f"buffer_atomic_or v{V_HP}, v{V_Z}, {WS}, s{S_MF} offen offset:{256*sg} sc0 sc1", ("mp", sg))]
    def mtouch(sg): V_HP = (24, 0)[sg & 1]; return [NEED(("mp", sg)), f"v_cmp_eq_u32 vcc, v{V_TAG}, v{V_HP}\ns_bitcmp1_b32 vcc_lo, 0\ns_cselect_b32 s{S_T0}, s{S_MH}, {hx(OOB & 0x3fffffff)}",
                            f"v_add_u32 v{V_HP}, s{S_T0}, v{V_HT}"] + htouch(sg, V_HP)
    htsetup = f"""v_and_b32 v24, 15, v1
    v_mov_b32 v25, s{S_HO}
    v_mov_b32 v26, s{S_HO+1}
    s_mov_b32 vcc_lo, 0xffff0000
    s_mov_b32 vcc_hi, 0xffff0000
    v_cndmask_b32 v25, v25, v26, vcc
    v_lshl_add_u32 v{V_HT}, v24, 7, v25
    s_cmp_ge_u32 s{S_C6}, 3
    s_cselect_b32 s{S_MH}, -3, 3
    s_lshl_b32 s{S_MF}, s{S_MH}, 3
    s_add_u32 s{S_MF}, s{S_MF}, s{S_FL}
    s_lshl_b32 s{S_MH}, s{S_MH}, 12"""
    gate = [f"s_lshl_b32 s{S_T1}, s{S_TB}, 10", f"s_add_u32 s{S_T1}, s{S_T1}, {G_OFF}", f"s_lshl_b32 s{S_T2}, s{S_C6}, 7",
            f"v_lshl_add_u32 v25, v2, 2, s{S_T2}", VM(f"buffer_store_dword v{V_GL}, v25, {WS}, s{S_T1} offen sc1")]
    mf = []; mand = {}; post = {}; g0 = []
    qend = [max(i for i, p in enumerate(pairs) if p[4] == sg) for sg in range(4)]
    for i, (b, u, q, kk, sg) in enumerate(pairs):
        m_ = [f"v_mfma_f32_32x32x16_bf16 {vr(ACC+32*sg+16*tau,16)}, {vr(WF+4*(i & 3),4)}, {xreg(kk,tau)}, {vr(ACC+32*sg+16*tau,16)}" for tau in range(2)]
        if i in gate_pairs:
            j = gate_pairs.index(i)
            m_.append(f"v_mfma_f32_32x32x16_bf16 {vr(GACC,16)}, {vr(GF+4*(j & 3),4)}, {xreg(j,0)}, {vr(GACC,16) if j else 0}")
        m_[0] = [NEED(("r", i)), m_[0]]
        g0.append(len(mf))
        if i + LEAD < 160: mand[len(mf)] = reads(i+LEAD)
        if i in first_of: post[len(mf)] = pf("A", f"u{first_of[i]}")
        if i in qend: post[len(mf)+1] = pf("A", f"q{qend.index(i)}")
        mf += m_
    g0.append(len(mf))
    sd = []; nxt = max(cfg.pre_chunks, 2)
    for e in range(NP):
        gb = g0[bar_pos[e]]; ge = g0[bar_pos[e+1]] - 1
        l = []; n = 0
        while nxt < NP and wearliest[periods[nxt][2]] <= e and nxt <= e + (2 if nxt < 10 else cfg.wlead) and (nxt <= e + 2 or n < (2 if S0 == 2 or e >= 10 else 1)):
            if nxt >= 10 and e < 8: break
            d_ = dma(nxt); gd = max(g0[bar_pos[nxt - cfg.wmin + 1]] - 1, ge)
            l += [(x, gd - 2*(len(d_) - 1 - j)) for j, x in enumerate(d_)]; nxt += 1; n += 1
        assert nxt > e + 1 or nxt == NP
        sd += [(x, gb, min(gb + int(j*cfg.dma_gap), ge) if e < cfg.paced else max(gd, gb)) for j, (x, gd) in enumerate(l)]
    assert nxt == NP
    gg = g0[gate_pairs[-1]+3]; gl = g0[40*S0-6]
    se = [(x, g0[4], gl) for x in bias[8*S0:24]] + [(f"v_mov_b32 v{V_GL}, v{GACC}\ns_nop 0", gg, gl)] + [(x, gg, gl) for x in bias[24:]] + \
         [([NEED("tag"), f"v_add_u32 v{V_TAG}, {hx(TAG_STEP)}, v0"], gg, gl)]
    if cfg.ht: st(htsetup)
    spub = []
    ga = 0
    for sg in range(3):
        ga0 = g0[qend[sg]+2]; ga = max(ga, ga0)
        l = epi(sg)
        NE, PD = cfg.ne[sg], cfg.pd[sg]
        se += [(x, ga0, ga + 1 + 2*j//NE) for j, x in enumerate(l)]
        se[-1] += ((0, pub(sg), 2*PD) + (((0, mpoll(sg), 2*cfg.mp[0], (0, mtouch(sg), 2*cfg.mp[1])),) if cfg.ht > 1 else ()),)
        ga += 2*(len(l)//NE)
        if sg == 1: se += [(x, ga0, ga + 8) for x in gate]
    for i in range(LEAD): st(reads(i))
    sched(st, mf, lambda g: cfg.cap if g < g0[qend[0]] else cfg.cap2, mand, [spub, se, sd] if cfg.epi_first else [spub, sd, se], post)
    st("s_nop 8", epi(3), pub(3))
    if cfg.ht > 1:
        a("L_mir:", "s_add_u32 s100, s100, 1", f"s_cmp_gt_u32 s100, {cfg.spin_limit}", "s_cbranch_scc1 L_exit", f"v_mov_b32 v{V_HP}, 0",
          f"buffer_atomic_or v{V_HP}, v{V_Z}, {WS}, s{S_MF} offen offset:768 sc0 sc1", "s_waitcnt vmcnt(0)",
          f"v_cmp_eq_u32 vcc, v{V_TAG}, v{V_HP}", "s_bitcmp1_b32 vcc_lo, 0", "s_cbranch_scc0 L_mir",
          f"v_add_u32 v{V_HP}, s{S_MH}, v{V_HT}", f"buffer_load_dword v{V_HJ}, v{V_HP}, {WS}, s{S_T0} offen sc1")
    a(f"s_or_b32 s{S_T0}, s2, s{S_W}", f"s_cmp_lg_u32 s{S_T0}, 0", "s_cbranch_scc1 L_a_done",
      "v_and_b32 v3, 15, v1", "v_lshrrev_b32 v4, 4, v1", "v_lshlrev_b32 v2, 8, v4", "v_lshl_add_u32 v2, v3, 2, v2", f"v_add_u32 v2, {FL_Y}, v2",
      "v_lshlrev_b32 v3, 11, v3", "v_lshl_add_u32 v3, v4, 3, v3", f"v_add_u32 v3, {FL_H}, v3",
      "L_ep:", "s_sleep 8", "s_add_u32 s100, s100, 1", f"s_cmp_gt_u32 s100, {cfg.spin_limit}", "s_cbranch_scc1 L_exit",
      *[f"v_mov_b32 v{32+i}, 0" for i in range(5)],
      polls.op(32, 2, 0), polls.op(33, 2, 1024), polls.op(34, 2, 1536), polls.op(35, 3, 0), polls.op(36, 3, 16),
      "s_waitcnt vmcnt(0)", "v_mov_b32 v4, 0")
    for i in range(5): a(f"v_xor_b32 v{32+i}, v{32+i}, v{V_TAG}", f"v_or_b32 v4, v4, v{32+i}")
    a("v_cmp_ne_u32 vcc, 0, v4", "s_cbranch_vccnz L_ep",
      f"global_store_dword v{V_EP}, v{V_TAG}, s[{P_WS}:{P_WS+1}] sc1", "L_a_done:")

def kdesc(name):
    return f""".section .rodata,"a"
.p2align 6
.amdhsa_kernel {name}
  .amdhsa_next_free_vgpr 512
  .amdhsa_next_free_sgpr 102
  .amdhsa_accum_offset 256
  .amdhsa_group_segment_fixed_size 0
  .amdhsa_kernarg_size 144
  .amdhsa_user_sgpr_count 2
  .amdhsa_user_sgpr_kernarg_segment_ptr 1
  .amdhsa_system_sgpr_workgroup_id_x 1
.end_amdhsa_kernel
.text
"""
def khead(name):
    return f""".globl {name}
.p2align 8
.type {name},@function
{name}:
"""

def align8(a):
    import subprocess, re, os, tempfile
    d = tempfile.mkdtemp()
    open(d + "/a.s", "w").write('.amdgcn_target "amdgcn-amd-amdhsa--gfx950"\n.text\n' + NAME + "_kernel:\n" + a.text())
    subprocess.check_call(["clang", "-x", "assembler", "-target", "amdgcn-amd-amdhsa", "-mcpu=gfx950", "-c", d + "/a.s", "-o", d + "/a.o"])
    dis = subprocess.check_output(["llvm-objdump", "-d", "--mcpu=gfx950", d + "/a.o"], text=True)
    sizes = [4*len(m.group(1).split()) for m in re.finditer(r"// [0-9A-F]+: ([0-9A-F ]+?)(?: <.*)?$", dis, re.M)]
    idx = [i for i, l in enumerate(a.l) if not l.endswith(":")]
    assert len(idx) == len(sizes), (len(idx), len(sizes))
    WIDE = ("v_mul_f32", "v_add_f32", "v_sub_f32", "v_add_u32", "v_sub_u32", "v_subrev_u32", "v_mov_b32", "v_lshlrev_b32", "v_lshrrev_b32", "v_xor_b32",
            "v_and_b32", "v_or_b32", "v_exp_f32", "v_sin_f32", "v_cos_f32", "v_fract_f32", "v_rcp_f32", "v_min_u32", "v_max_u32", "v_max_i32", "v_mul_u32_u24")
    out = dict(); off = 0; n = len(idx); cand = None
    for j in range(n):
        line = a.l[idx[j]]; op = line.split()[0]
        if sizes[j] == 8 and off % 8 == 4:
            if cand is not None:
                l2 = a.l[idx[cand]]; o2 = l2.split()[0]
                a.l[idx[cand]] = l2.replace(o2, o2 + "_e64", 1); off += 4
            else:
                run = 0; mf = False
                while j + run < n and sizes[j+run] == 8:
                    mf |= "mfma" in a.l[idx[j+run]]; run += 1
                if run >= 6 and not mf: out[idx[j]] = "    s_nop 0"; off += 4
        if sizes[j] == 8: cand = None
        elif op in WIDE and off % 8 == 0: cand = j
        elif op in WIDE and cand is None: cand = j
        off += sizes[j]
    l = []
    for i, x in enumerate(a.l):
        if i in out: l.append(out[i])
        l.append(x)
    a.l = l

def build_fused(cfg):
    pf = Prof(cfg); a = Asm(); s0 = Stream(a)
    a(f"""
    s_cmp_ge_u32 s2, 256
    s_cbranch_scc1 L_exit
    s_load_dwordx16 s[4:19], s[0:1], 0
    s_load_dwordx16 s[20:35], s[0:1], 64
    s_load_dwordx4 s[36:39], s[0:1], 128
    v_lshrrev_b32 v2, 6, v0
    v_and_b32 v1, 63, v0
    s_and_b32 s{S_XCD}, s2, 7
    v_readfirstlane_b32 s{S_W}, v2
    s_lshr_b32 s{S_SLOT}, s2, 3
    s_mov_b32 s100, 0
    """)
    if cfg.codepf:
        a(f"""
        s_getpc_b64 s[66:67]
        s_lshl_b32 s68, s{S_SLOT}, 2
        s_add_u32 s68, s68, s{S_W}
        s_mul_i32 s68, s68, 384
        v_min_u32 v2, 2, v1
        v_lshl_add_u32 v2, v2, 7, s68
        v_min_u32 v2, L_code_end-{NAME}_kernel-128, v2
        global_load_dword a255, v2, s[66:67]
        """)
    a(f"s_cmp_lt_u32 s{S_SLOT}, 12", "s_cbranch_scc1 L_roleA")
    pb = Polls(cfg)
    parts = {}
    for role, fn in (("B", role_b), ("A", role_a)):
        b = Asm(); sb = Stream(b)
        sb(pf(role, "start_real", real=True), pf(role, "start"))
        fn(b, cfg, pf, pb)
        if cfg.prof: b("s_waitcnt vmcnt(0)")
        sb(pf(role, "end"), pf(role, "end_real", real=True))
        pf.flush(b, role)
        if role == "B": b("L_exit:")
        b("s_endpgm")
        b(*pb.tail); pb.tail = []
        k = b.l.index("@SPLIT:")
        parts[role] = (b.l[:k], b.l[k+1:])
    if cfg.layout:
        a.l += parts["B"][0]; a("s_branch L_bodyB", "L_roleA:"); a.l += parts["A"][0]; a("s_branch L_bodyA", "L_bodyB:")
        a.l += parts["B"][1]; a("L_bodyA:"); a.l += parts["A"][1]
    else:
        a.l += parts["B"][0] + parts["B"][1]; a("L_roleA:"); a.l += parts["A"][0] + parts["A"][1]
    a("L_code_end:", "s_endpgm")
    if cfg.align: align8(a)
    txt = "; @launch grid=(256,1,1) block=(256,1,1) lds=163840\n"
    txt += '.amdgcn_target "amdgcn-amd-amdhsa--gfx950"\n.text\n'
    if cfg.page: txt += ".p2align 12\n"
    txt += khead(NAME + "_kernel") + a.text() + kdesc(NAME + "_kernel")
    return txt, pf

if __name__ == "__main__":
    cfg = Cfg()
    for kv in sys.argv[2:]:
        k, v = kv.split("="); setattr(cfg, k, eval(v))
    open(sys.argv[1], "w").write(build_fused(cfg)[0])
```

```python
import re, sys
def regs(tok):
    tok = tok.strip().lstrip("-").strip("|")
    m = re.fullmatch(r"([vas])(\d+)", tok)
    if m: return {(m.group(1), int(m.group(2)))}
    m = re.fullmatch(r"([vas])\[(\d+):(\d+)\]", tok)
    if m: return {(m.group(1), i) for i in range(int(m.group(2)), int(m.group(3))+1)}
    if tok in ("vcc", "vcc_lo", "vcc_hi"): return {("s", "vcc")}
    if tok == "m0": return {("s", "m0")}
    return set()
TRANS = ("v_exp_", "v_log_", "v_rcp_", "v_rsq_", "v_sqrt_", "v_sin_", "v_cos_")
def parse(line):
    line = line.split(";")[0].strip()
    if not line or line.endswith(":") or line.startswith("."): return None
    p = line.split(None, 1); op = p[0]
    ops = [x.strip() for x in re.split(r",(?![^\[]*\])", p[1])] if len(p) > 1 else []
    if ops:
        last = ops[-1].split(); ops[-1] = last[0] if last else ""; mods = " ".join(last[1:])
    else: mods = ""
    R = [regs(o) for o in ops]
    d, u = set(), set()
    if op.startswith("v_mfma"): d = R[0]; u = R[1] | R[2] | R[3]; kind = "mfma"
    elif op.startswith("v_"):
        kind = "valu"; d = R[0]; u = set().union(*R[1:]) if len(R) > 1 else set()
        if op.startswith(("v_fmac", "v_dot2c", "v_writelane")): u |= R[0]
        if op.startswith("v_permlane"): d = R[0] | R[1]; u = d
    elif op.startswith("ds_read"): kind = "lds"; d = R[0]; u = R[1]
    elif op.startswith("ds_"): kind = "lds"; u = set().union(*R)
    elif op.startswith(("buffer_load", "global_load")):
        kind = "vmem"
        if "_lds_" in op: mods += " lds"
        if "lds" in mods.split(): u = set().union(*R)
        else: d = R[0]; u = set().union(*R[1:])
    elif op.startswith(("buffer_", "global_")): kind = "vmem"; u = set().union(*R)
    else:
        kind = "salu"
        if R and not op.startswith(("s_cmp", "s_bitcmp", "s_cbranch", "s_branch", "s_waitcnt", "s_nop")): d = R[0]; u = set().union(*R[1:]) if len(R) > 1 else set()
    states = int(ops[0]) + 1 if op == "s_nop" else 1
    return dict(op=op, kind=kind, d=d, u=u, R=R, mods=mods, states=states, line=line)
def check(text):
    ins = [x for x in (parse(l) for l in text.split("\n")) if x]
    bad = 0
    for i, a in enumerate(ins):
        dist = 0
        for j in range(i+1, min(i+24, len(ins))):
            b = ins[j]; need = 0
            if a["op"] in ("s_endpgm", "s_branch"): break
            if a["kind"] == "mfma":
                p8 = "32x32" in a["op"]
                if b["kind"] == "mfma":
                    if a["d"] & (b["R"][1] | b["R"][2]): need = 12 if p8 else 8
                    elif a["d"] & b["R"][3] and (a["d"] != b["R"][3] or a["op"] != b["op"]): need = 10 if p8 else 6
                elif a["d"] & (b["d"] | b["u"]): need = 12 if p8 else 8
                if b["kind"] == "valu" and a["R"][3] & b["d"]: need = max(need, 7 if p8 else 3)
            if a["kind"] == "valu":
                vd = {r for r in a["d"] if r[0] != "s"}; sd = a["d"] - vd
                if b["kind"] == "mfma" and vd & b["u"]: need = 2
                if a["op"].startswith(TRANS) and vd & b["u"] and not b["op"].startswith(TRANS): need = max(need, 1)
                if "dpp" in b["op"] and vd & b["u"]: need = 2
                if b["op"].startswith(("v_readfirstlane", "v_readlane")) and vd & b["u"]: need = max(need, 1)
                if b["op"].startswith("v_permlane") and vd & b["u"]: need = 2
                if sd & b["u"] and b["kind"] == "valu": need = 2
                if sd & b["u"] and b["kind"] == "vmem": need = 5
            if a["kind"] == "salu" and ("s", "m0") in a["d"] and ("addtid" in b["op"] or (b["kind"] == "vmem" and "lds" in b["mods"].split())): need = 1
            if a["kind"] == "vmem" and "store_dwordx4" in a["op"]:
                data = a["R"][0] if a["op"].startswith("buffer") else a["R"][1]
                if data & b["d"]: need = 2
            if dist < need:
                print(f"HAZARD need {need} have {dist}:\n   {a['line']}\n   {b['line']}"); bad += 1
            dist += b["states"]
            if b["op"] in ("s_endpgm", "s_branch"): break
    return bad
if __name__ == "__main__":
    print("hazards:", check(open(sys.argv[1]).read()))
```

```python
import sys, importlib, mk
g = importlib.import_module(sys.argv[1])
cfg = g.Cfg()
for k, v in eval(f"dict({sys.argv[3] if len(sys.argv) > 3 else ''})").items(): setattr(cfg, k, v)
txt = g.build_fused(cfg)[0]
import hazard
assert hazard.check(txt) == 0
mk.write(sys.argv[2], txt)
```

```python
import sys, struct

NAME = "gated_mix__ssm_conv_s4__dense_activation_squared_relu__prompt"

def f2u(x): return struct.unpack("<I", struct.pack("<f", x))[0]
def hx(x): return "0x%08x" % (x & 0xffffffff)

class Asm:
    def __init__(self):
        self.l = []
    def __call__(self, *lines):
        for s in lines:
            for t in s.split("\n"):
                t = t.strip()
                if t:
                    self.l.append(t if t.endswith(":") else "    " + t)
    def text(self): return "\n".join(self.l) + "\n"

def vr(a, n=1, p="v"): return f"{p}{a}" if n == 1 else f"{p}[{a}:{a+n-1}]"
def ar(a, n=1): return vr(a, n, "a")
def sr(a, n=1): return vr(a, n, "s")

def weave(main, fill, start=0, end=None):
    end = len(main) if end is None else end
    out = []; n = end - start; k = 0
    for i, m in enumerate(main):
        out.append(m)
        if start <= i < end:
            tgt = (len(fill)*(i-start+1) + n - 1)//n
            while k < tgt:
                out.append(fill[k]); k += 1
    assert k == len(fill)
    return out
def insert(main, pos_items):
    out = []
    for i, m in enumerate(main):
        out += pos_items.get(i, [])
        out.append(m)
    assert all(k < len(main) for k in pos_items)
    return out

class Stream:
    def __init__(self, a):
        self.a = a; self.n = {"vm": 0, "lg": 0}; self.done = {"vm": 0, "lg": 0}; self.tok = {}
    def __call__(self, *l): self.run(l)
    def op(self, kind, ins, tag=None):
        self.a(ins); self.n[kind] += 1
        if tag is not None: self.tok[tag] = (kind, self.n[kind])
    def need(self, *tags):
        w = {}
        for t in tags:
            k, i = self.tok[t]
            if i > self.done[k]: w[k] = max(w.get(k, 0), i)
        parts = []
        for k, i in w.items():
            left = min(self.n[k] - i, 63 if k == "vm" else 15)
            self.done[k] = self.n[k] - left
            parts.append(f"{'vmcnt' if k == 'vm' else 'lgkmcnt'}({left})")
        if parts: self.a("s_waitcnt " + " ".join(parts))
    def drain(self, kind):
        if self.done[kind] < self.n[kind]:
            self.a(f"s_waitcnt {'vmcnt' if kind == 'vm' else 'lgkmcnt'}(0)"); self.done[kind] = self.n[kind]
    def run(self, items):
        for it in items:
            if callable(it): it(self)
            elif isinstance(it, (list, tuple)): self.run(it)
            else:
                for t in it.split("\n"):
                    t = t.strip()
                    assert not t.startswith(("ds_", "buffer_", "global_")), t
                self.a(it)
def _c(f, c): f.cost = c; return f
def VM(ins, tag=None): return _c(lambda s: s.op("vm", ins, tag), 16 if "store_dwordx4" in ins else 14 if ins.endswith("lds") else 10)
def LG(ins, tag=None): return _c(lambda s: s.op("lg", ins, tag), 16 if "write_b128" in ins else 8 if "write" in ins else 4.5)
def NEED(*t): return _c(lambda s: s.need(*t), 4)
def DRAIN(k): return _c(lambda s: s.drain(k), 4)
def M0GAP(s):
    if "m0," in s.a.l[-1]: s.a("s_nop 0")
def cost(it):
    if callable(it): return getattr(it, "cost", 0)
    if isinstance(it, (list, tuple)): return sum(cost(x) for x in it)
    c = 0
    for t in it.split("\n"):
        t = t.strip()
        if not t or t.endswith(":"): continue
        op = t.split()[0]
        if op == "s_barrier": c += 8
        elif op.startswith("s_"): c += 4
        elif op.startswith(("v_exp", "v_rcp", "v_sin", "v_cos")): c += 8
        elif op in ("v_mul_f32", "v_add_u32", "v_mov_b32", "v_lshlrev_b32", "v_lshrrev_b32", "v_xor_b32", "v_and_b32", "v_sub_u32", "v_add_f32", "v_sub_f32") and "0x" not in t: c += 4
        else: c += 5
    return c
def sched(st, mf, cap, mand, streams, post=None):
    streams = [list(x) for x in streams]
    for g in range(len(mf)):
        st(mf[g])
        used = cost(mand.get(g, []))
        if g + 1 < len(mf) and isinstance(mf[g+1], list): used += cost(mf[g+1][:-1])
        st(mand.get(g, []))
        while True:
            pick = None
            for q in streams:
                if q and q[0][1] <= g and min(x[2] for x in q) <= g: pick = q; break
            if pick is None:
                for q in streams:
                    if q and q[0][1] <= g and (used == 0 or used + cost(q[0][0]) <= (cap(g) if callable(cap) else cap)): pick = q; break
            if pick is None: break
            x = pick.pop(0); it = x[0]; used += cost(it); st(it)
            if len(x) > 3:
                gp = min(g + x[3][2], len(mf) - 2); streams[x[3][0]].append((x[3][1], gp, gp + 1) + tuple(x[3][3:])); streams[x[3][0]].sort(key=lambda y: y[1])
        if post and g in post: st(post[g])
    assert not any(streams), [len(q) for q in streams]
def paced(items, g0, g1, slack):
    n = len(items)
    return [(it, g0 + j*(g1-g0)//n, g0 + j*(g1-g0)//n + slack) for j, it in enumerate(items)]

H_OFF    = 0
YA_OFF   = 6 << 20
UT_OFF   = 16 << 20
G_OFF    = 11 << 20
FL_OFF   = (12 << 20) + 65536
FL_H     = FL_OFF
FL_Y     = FL_H + 32768
FL_U     = FL_Y + 16384
OOB      = 0x7ffff000
EP_OFF   = FL_OFF - 4096
TAG_STEP = 0x9e3779b1
PROF_OFF = 13 << 20
DBG_OFF  = 14 << 20
WS_SIZE  = 268435456

P_U, P_ARE, P_AIM, P_BRE, P_BIM, P_CRE, P_CIM, P_LDT = 4, 6, 8, 10, 12, 14, 16, 18
P_DSK, P_BX, P_W1, P_B1, P_W2, P_B2, P_GATE, P_OUT = 20, 22, 24, 26, 28, 30, 32, 34
P_DBG, P_WS = 36, 38
S_W, S_XCD, S_SLOT, S_IDX = 40, 41, 42, 43
SRD_U, SRD_W, SRD_WS, SRD_OUT = 44, 48, 52, 56
S_T0, S_T1, S_T2, S_T3 = 66, 67, 68, 69
S_PROF = 70
WS = f"s[{SRD_WS}:{SRD_WS+3}]"

class Cfg:
    prof = False
    fused = True
    allreal = False
    xtouch = False
    krot = True
    hrot = True
    h0_it = 8
    codepf = True
    fine = False
    show = 'setup0 tile utpub upre useen ubar h0pre h0seen k0 h3seen g2'
    spin_limit = 200000
    sleep = 2
    tr_pos = 9; pub_pos = (1, 11); up_pos = (2, 9); ul_pos = 16; tile_at = 3; t0_at = 1; w0touch = False
    ntx = ''
    nt = ''
    wb = 4
    wk = (); w_last = 8; rs = 4; rd = 6; eg = 0; w_exp = 0; stream = 11; burst = 11; leads = (11, 11, 11); yst = 0; ysfirst = False; ylat = 18; ht = 0; mp = (6, 10); ownfirst = False; early = True; nput = 0
    ct = (0, (1, 12))
    gswap = True; wrot = True; deep = True
    exp = ''
    showa = 'u0 u1 u2 u3 u5 q0 pub0 q1 q2 q3 pub3'
    gate_all = True
    w1t = (2, 17)
    wt_pos = ()
    w_early = 0
    hs = (8, 34, 60); pl = 10; ys = 44; yn = 9; yp = 20
    ne = (16, 4, 4); pd = (11, 10, 10); wmin = 2; paced = 9; cap = 20; cap2 = 27; pre_chunks = 2; dma_gap = 1.7; crot = True; s0 = 2; head1 = 5; wlead = 4; gate_at = 0; alead = 3; epi_first = True; align = True; layout = True; page = True

def srd(d, p, size):
    return [f"s_mov_b32 s{d}, s{p}", f"s_mov_b32 s{d+1}, s{p+1}", f"s_mov_b32 s{d+2}, {hx(size)}", f"s_mov_b32 s{d+3}, 0x20000"]

class Prof:
    def __init__(self, cfg): self.cfg = cfg; self.names = {}
    def __call__(self, role, name, real=False):
        if not self.cfg.prof or not (name in (self.cfg.showa if role == "A" else self.cfg.show).split() or name in ("start", "end", "start_real", "end_real")): return []
        def f(s):
            l = self.names.setdefault(role, [])
            i = len(l); assert i < 15; l.append(name)
            s.a(f"{'s_memrealtime' if (real or self.cfg.allreal) else 's_memtime'} s[{S_PROF+2*i}:{S_PROF+2*i+1}]")
        return [f]
    def flush(self, a, role):
        if not self.cfg.prof: return
        n = len(self.names[role])
        a("s_waitcnt lgkmcnt(0)",
          f"s_lshl_b32 s60, s2, 2", f"s_add_u32 s60, s60, s{S_W}", "s_lshl_b32 s60, s60, 6",
          f"s_add_u32 s60, s60, {PROF_OFF}", "v_mov_b32 v2, s60")
        for i in range(n):
            a(f"v_mov_b32 v3, s{S_PROF+2*i}", f"global_store_dword v2, v3, s[{P_WS}:{P_WS+1}] offset:{4*i}")
        a("s_waitcnt vmcnt(0)")

class Polls:
    def __init__(self, cfg): self.tail = []; self.n = 0; self.cfg = cfg
    def issue(self, tag, vreg, vaddr, off): return [f"v_mov_b32 v{vreg}, 0", VM(self.op(vreg, vaddr, off), tag)]
    def op(self, vreg, vaddr, off): return f"buffer_atomic_or v{vreg}, v{vaddr}, {WS}, 0 offen offset:{off} sc0 sc1"
    def check(self, tag, vreg, vtag, vaddr, off, mask, pf=None, nm=None):
        i = self.n; self.n += 1
        test = f"v_cmp_ne_u32 vcc, v{vtag}, v{vreg}\ns_and_b32 vcc_lo, vcc_lo, {mask}\ns_cbranch_scc1 L_spin{i}"
        self.tail += [f"L_spin{i}:", f"s_sleep {self.cfg.sleep}", "s_add_u32 s100, s100, 1", f"s_cmp_gt_u32 s100, {self.cfg.spin_limit}", "s_cbranch_scc1 L_exit",
                      f"v_mov_b32 v{vreg}, 0", self.op(vreg, vaddr, off), "s_waitcnt vmcnt(0)", test, f"s_branch L_back{i}"]
        return (pf("B", nm+"pre") if pf else []) + [NEED(tag)] + (pf("B", nm+"got") if pf else []) + [test + f"\nL_back{i}:"]

def one_lane(v): return [f"v_min_u32 v{v}, 1, v1", f"v_sub_u32 v{v}, 0, v{v}", f"v_and_b32 v{v}, {hx(OOB)}, v{v}"]
def flag_set(vtag, v1l, soff, off=0): return VM(f"buffer_atomic_swap v{vtag}, v{v1l}, {WS}, s{soff} offen offset:{off} sc1")

RSTRIDE = 14656
TROW    = 272
KB_OFF  = 2240
TT_OFF  = 4384
NDMA    = 14
U_LDS   = 4*RSTRIDE
W2_LDS  = U_LDS + 18432
def w2slot(u):
    if u < 10: return W2_LDS + 8192*u
    if u < 14: return RSTRIDE*(u-10) + 4864
    if u < 16: return U_LDS + 8192*(u-14)
    return W2_LDS + 8192*(u-16)

HI_VALS = [0,1,2,3,4,5,6,7, 256,258,260,262, 512,516,768,772, 1024,1280,1536,1792,2048]
def hi_row(v): return 32 + HI_VALS.index(v)
ROWMAP_REG = [
    [0,1,2,3,4,5,6,7, 512,516,1024,1536, 2048,2048,2048,2048],
    [256,256,258,260,260,260,262,262, 768,772,1280,1792, 1792,1792,1792,1792]]
def rowmap(m):
    i, half, j = m >> 3, (m >> 2) & 1, m & 3
    return hi_row(ROWMAP_REG[half][4*i+j]) - 32

def cmul(d, x, z, t, conj=False, scalar=False):
    if scalar:
        n1, n2 = ("", "-") if conj else ("-", "")
        return [f"v_mul_f32 v{t}, v{x}, v{z}", f"v_mul_f32 v{t+1}, v{x}, v{z+1}",
                f"v_fma_f32 v{d}, {n1}v{x+1}, v{z+1}, v{t}", f"v_fma_f32 v{d+1}, v{x+1}, v{z}, {n2}v{t+1}"]
    neg = "neg_hi:[1,0,0]" if conj else "neg_lo:[1,0,0]"
    return [f"v_pk_mul_f32 {vr(t,2)}, {vr(x,2)}, {vr(z,2)} op_sel_hi:[1,0]",
            f"v_pk_fma_f32 {vr(d,2)}, {vr(x,2)}, {vr(z,2)}, {vr(t,2)} op_sel:[1,1,0] op_sel_hi:[0,1,1] {neg}"]

def role_b(a, cfg, pf, polls):
    st = Stream(a)
    S_CH, S_RB, S_M1, S_M2 = 60, 61, 62, 64
    S_RBK, S_D10, S_TB, S_LW, S_WO, S_HO, S_H2, S_UQ = 56, 57, 3, 26, 27, 32, 33, 59
    S_CHO, S_CWO = 4, 10
    S_DM = 16
    VP = 10; V_LDT, V_DSK, V_DT, V_DTL, V_DTP = 28, 29, 30, 31, 32
    VRAW = 34
    Z1, Z8, Z256, X, T, SV, CV = 40, 42, 44, 46, 48, 50, 58
    D = 64
    Q = 80
    V_AA, V_BA, V_F, V_G = 112, 113, 114, 118
    V_TD, V_TR, V_TS, V_PT = 122, 108, 128, 127
    S_US, S_UF, S_UL = (18, 19, 22, 23), 0, 1
    V_L16, V_Z, V_PU, V_PH, V_PY, V_POLL, V_TAG = 131, 132, 133, 134, 135, 136, 137
    V_YW, V_YR, V_W2, V_RW, V_T, V_YA, V_OUT, V_KW, V_KP = 138, 139, 140, 142, 148, 149, 150, 151, 152
    V_WT, V_WW, V_JUNK, V_GT, V_OG, V_OW, V_OR = 153, 122, 155, 156, 157, 158, 159
    ACC2, ACC = 160, 224
    WF, YA, GA, B2R = 224, 44, 8, 44
    FA, FB = 128, 160
    F0, G0, F1, G1 = 128, 160, 192, 224
    def rawreg(u, i): return ar(8*(u-NDMA) + 4*i, 4)
    GS, TF = 80, 112
    SD, BX, V_TT, V_TW, V_TA, V_TM, V_G9 = 64, 96, 104, 105, 106, 107, 117
    st(f"""
    s_mul_i32 s{S_IDX}, s{S_XCD}, 20
    s_add_u32 s{S_IDX}, s{S_IDX}, s{S_SLOT}
    s_sub_u32 s{S_IDX}, s{S_IDX}, 12
    s_lshl_b32 s{S_CH}, s{S_IDX}, 2
    s_add_u32 s{S_CH}, s{S_CH}, s{S_W}
    s_mul_i32 s{S_T0}, s{S_CH}, 384
    v_lshl_add_u32 v2, v1, 2, s{S_T0}
    v_lshl_add_u32 v4, v1, 1, s{S_T0}
    s_lshl_b32 s{S_T0}, s{S_CH}, 1
    v_mov_b32 v3, s{S_T0}
    v_mov_b32 v{V_LDT}, 0
    s_and_b32 s{S_RBK}, s{S_XCD}, 6
    s_lshl_b32 s{S_RBK}, s{S_RBK}, 1
    s_and_b32 s{S_T0}, s{S_SLOT}, 3
    s_add_u32 s{S_RBK}, s{S_RBK}, s{S_T0}
    s_lshl_b32 s{S_TB}, s{S_RBK}, 2
    s_add_u32 s{S_TB}, s{S_TB}, s{S_W}
    s_and_b32 s{S_D10}, s{S_XCD}, 1
    s_mul_i32 s{S_D10}, s{S_D10}, 5
    s_lshr_b32 s{S_T0}, s{S_SLOT}, 2
    s_add_u32 s{S_D10}, s{S_D10}, s{S_T0}
    s_sub_u32 s{S_D10}, s{S_D10}, 3
    s_lshl_b32 s{S_UQ}, s{S_W}, 12
    s_add_u32 s{S_UQ}, s{S_UQ}, {U_LDS}
    s_mov_b32 m0, s{S_UQ}
    s_mul_i32 s{S_T2}, s{S_TB}, {32*1280}
    s_lshl_b32 s{S_T1}, s{S_D10}, 7
    s_add_u32 s{S_T3}, s{S_T2}, s{S_T1}
    v_lshrrev_b32 v5, 3, v1
    v_and_b32 v6, 7, v1
    v_bfe_u32 v7, v1, 4, 1
    v_xor_b32 v7, v7, v6
    v_lshlrev_b32 v7, 4, v7
    v_mov_b32 v8, 1280
    v_mad_u32_u24 v{V_TD}, v5, v8, v7
    v_mov_b32 v9, {EP_OFF}
    s_mov_b32 s{SRD_U+2}, {2048*1280}
    s_mov_b32 s{SRD_U+3}, 0x20000
    """)
    for i in range(1, 4): st(f"v_xor_b32 v{V_TD+i}, {32*i}, v{V_TD}", f"v_add_u32 v{V_TD+i}, {(8*1280-1024)*i}, v{V_TD+i}")
    for i in list(range(VP+12, VP+18)) + [V_DSK]: st(f"v_mov_b32 v{i}, 0")
    st("s_waitcnt lgkmcnt(0)")
    st(pf("B", "karg"))
    PP = (P_ARE, P_AIM, P_BRE, P_BIM, P_CRE, P_CIM)
    tile = srd(SRD_U, P_U, 0)[:2] + [VM(f"buffer_load_dwordx4 v{V_TD+i}, s[{SRD_U}:{SRD_U+3}], s{S_T3} offen offset:{1024*i} lds", "tile") for i in range(4)]
    if cfg.tile_at == 0: st(tile)
    st(VM(f"global_load_short_d16_hi v{V_LDT}, v3, s[{P_LDT}:{P_LDT+1}]", "ldt"))
    for k, p in enumerate(PP): st(VM(f"global_load_dword v{VRAW+k}, v2, s[{p}:{p+1}] {cfg.nt}", "p01"))
    if cfg.tile_at == 1: st(tile)
    st(VM(f"global_load_dword v{V_TAG}, v9, s[{P_WS}:{P_WS+1}] sc1", "tag"),
       [VM(f"global_load_short_d16_hi v{VP+12+k}, v4, s[{p}:{p+1}] offset:256 {cfg.nt}", "p2") for k, p in enumerate(PP)],
       VM(f"global_load_short_d16_hi v{V_DSK}, v3, s[{P_DSK}:{P_DSK+1}]", "dsk"))
    a("@SPLIT:")
    st(pf("B", "body"))
    if cfg.tile_at > 1: st(tile[:2]); tile = [f"s_mov_b32 m0, s{S_UQ}\ns_nop 0"] + tile[2:] + [f"s_mov_b32 m0, s{S_RB}"]
    st("v_and_b32 v5, 31, v1")
    V_W1T = 33
    if cfg.xtouch: st(f"""
    s_cmp_ge_u32 s{S_D10}, 5
    s_cselect_b32 s{S_T0}, 1280, 0
    s_sub_u32 s{S_T0}, s{S_T3}, s{S_T0}
    s_add_u32 s{S_T0}, s{S_T0}, 640
    v_mov_b32 v6, 1280
    v_mad_u32_u24 v60, v5, v6, s{S_T0}
    """)
    t0 = [VM(f"buffer_load_dword v{V_JUNK}, v60, s[{SRD_U}:{SRD_U+3}], 0 offen")] if cfg.xtouch else []
    if cfg.w1t or cfg.w0touch: st(f"""
    s_lshl_b32 s{S_T0}, s{S_SLOT}, 2
    s_add_u32 s{S_T0}, s{S_T0}, s{S_W}
    s_sub_u32 s{S_T0}, s{S_T0}, 48
    s_mul_i32 s{S_T0}, s{S_T0}, {8*3072}
    s_and_b32 s{S_T2}, s{S_XCD}, 1
    s_mul_i32 s{S_T2}, s{S_T2}, 1536
    s_add_u32 s{S_T0}, s{S_T0}, s{S_T2}
    v_and_b32 v4, 7, v1
    v_mul_u32_u24 v4, 3072, v4
    v_bfe_u32 v6, v1, 3, 2
    v_min_u32 v6, 2, v6
    v_lshl_add_u32 v4, v6, 9, v4
    v_add_u32 v{V_W1T}, s{S_T0}, v4
    """)
    if cfg.w0touch: st(f"v_lshrrev_b32 v6, {7-cfg.s0}, v1", f"v_lshl_add_u32 v61, v6, 7, v{V_W1T}"); t0.insert(0, VM(f"global_load_dword v{V_JUNK}, v61, s[{P_W1}:{P_W1+1}]"))
    if cfg.t0_at == 1: st(t0)
    st(f"s_mul_i32 s{S_RB}, s{S_W}, {RSTRIDE}")
    st(srd(SRD_WS, P_WS, WS_SIZE), srd(SRD_W, P_W2, 1536*1280))
    st(f"s_mov_b32 m0, s{S_RB}", "v_mov_b32 v9, 0x3f80",
       f"s_mov_b32 s{S_M1}, 0", f"s_mov_b32 s{S_M1+1}, -1",
       LG("ds_write_addtid_b32 v9"),
       f"s_mov_b32 s{S_M2}, 0xaaaaaaaa", f"s_mov_b32 s{S_M2+1}, 0xaaaaaaaa",
       "v_mov_b32 v6, 0", "v_mov_b32 v7, 0", "v_lshlrev_b32 v9, 3, v0", f"v_add_u32 v9, {U_LDS+16384}, v9",
       LG("ds_write_b64 v9, v[6:7]"))
    st("v_lshrrev_b32 v3, 5, v1", f"v_lshl_add_u32 v6, v3, 4, s{S_RB}",
       f"v_mov_b32 v8, {TROW}", f"v_mad_u32_u24 v{V_BA}, v5, v8, v6", "v_mov_b32 v7, 32")
    for k in range(5):
        mask = sum(((rowmap(m) >> k) & 1) << m for m in range(32))
        st(f"s_mov_b32 s{S_T0}, {hx(mask)}", f"v_bfe_u32 v9, s{S_T0}, v5, 1", f"v_lshl_add_u32 v7, v9, {k}, v7")
    st(f"v_mad_u32_u24 v{V_AA}, v7, v8, v6")
    st(f"""
    s_mul_i32 s{S_WO}, s{S_W}, {16*1280}
    s_add_u32 s{S_WO}, s{S_WO}, s{S_T1}
    s_lshl_b32 s{S_LW}, s{S_W}, 11
    s_mul_i32 s{S_HO}, s{S_TB}, {96*1024}
    v_lshrrev_b32 v2, 3, v1
    v_and_b32 v4, 2, v2
    v_and_b32 v5, 7, v1
    v_xor_b32 v4, v4, v5
    v_lshlrev_b32 v4, 4, v4
    v_mov_b32 v8, 1280
    v_mad_u32_u24 v{V_W2}, v2, v8, v4
    v_add_u32 v{V_W2+1}, {8*1280-1024}, v{V_W2}
    v_lshlrev_b32 v{V_L16}, 4, v1
    v_mov_b32 v{V_Z}, 0
    v_lshl_add_u32 v154, v3, 6, s{S_T1}
    """)
    if cfg.wt_pos: st(f"""
    s_and_b32 s{S_T0}, s{S_TB}, 15
    s_mul_i32 s{S_T0}, s{S_T0}, 48
    v_min_u32 v4, 47, v1
    v_add_u32 v4, s{S_T0}, v4
    v_and_b32 v5, 0x380, v4
    v_add_u32 v4, v4, v5
    v_mad_u32_u24 v{V_WT}, v4, v8, s{S_T1}
    """)
    V_CT = 129
    if cfg.ct and cfg.ct[0] != 0: st(f"""
    s_sub_u32 s{S_T0}, s{S_SLOT}, 12
    s_lshl_b32 s{S_T0}, s{S_T0}, 2
    s_add_u32 s{S_T0}, s{S_T0}, s{S_W}
    s_lshr_b32 s{S_T2}, s{S_XCD}, 1
    s_mul_i32 s{S_T2}, s{S_T2}, 80
    s_add_u32 s{S_T0}, s{S_T0}, s{S_T2}
    s_mul_i32 s{S_T0}, s{S_T0}, {2*3072}
    s_and_b32 s{S_T2}, s{S_XCD}, 1
    s_mul_i32 s{S_T2}, s{S_T2}, 1536
    s_add_u32 s{S_T0}, s{S_T0}, s{S_T2}
    v_and_b32 v4, 3, v1
    v_max_u32 v4, {cfg.s0}, v4
    v_bfe_u32 v5, v1, 2, 2
    v_min_u32 v5, 2, v5
    v_lshl_add_u32 v4, v5, 2, v4
    v_bfe_u32 v5, v1, 4, 1
    v_mad_u32_u24 v4, v5, 24, v4
    v_lshl_add_u32 v{V_CT}, v4, 7, s{S_T0}
    """)
    if cfg.ct and cfg.ct[1] != 0: st(f"""
    s_mul_i32 s{S_T0}, s{S_TB}, {24*1280}
    s_add_u32 s{S_T0}, s{S_T0}, s{S_T1}
    v_min_u32 v4, 23, v1
    v_mad_u32_u24 v{V_CT+1}, v4, v8, s{S_T0}
    """)
    ctouch = [[VM(f"global_load_dword v{V_JUNK}, v{V_CT}, s[{P_W1}:{P_W1+1}]")], [VM(f"buffer_load_dword v{V_JUNK}, v{V_CT+1}, s[{SRD_W}:{SRD_W+3}], 0 offen")]]
    def tables():
        l = []
        if cfg.hrot:
            l += [f"s_sub_u32 s{S_T0}, s{S_SLOT}, 12", f"s_lshr_b32 s{S_T0}, s{S_T0}, 2"]
            if cfg.wrot: l += f"""s_and_b32 s{S_T1}, s{S_RBK}, 3
            s_mul_i32 s{S_T1}, s{S_T1}, 3
            s_add_u32 s{S_T1}, s{S_T1}, 1
            s_lshr_b32 s{S_T1}, s{S_T1}, 1
            s_add_u32 s{S_T0}, s{S_T0}, s{S_T1}
            s_lshr_b32 s{S_T1}, s{S_RBK}, 2
            s_add_u32 s{S_T0}, s{S_T0}, s{S_T1}
            s_mul_i32 s{S_T1}, s{S_T0}, 43
            s_lshr_b32 s{S_T1}, s{S_T1}, 8
            s_mul_i32 s{S_T1}, s{S_T1}, 6
            s_sub_u32 s{S_T0}, s{S_T0}, s{S_T1}""".split("\n")
        else: l += [f"s_mov_b32 s{S_T0}, 0"]
        for p in range(6):
            l += [f"s_lshl_b32 s{S_T1}, s{S_T0}, 12", f"s_add_u32 s{S_CHO+p}, s{S_T1}, s{S_HO}",
                  f"s_mul_i32 s{S_T1}, s{S_T0}, {256*1280}", f"s_add_u32 s{S_CWO+p}, s{S_T1}, s{S_WO}"]
            if p < 5: l += [f"s_add_u32 s{S_T0}, s{S_T0}, 1", f"s_cmp_eq_u32 s{S_T0}, 6\ns_cselect_b32 s{S_T0}, 0, s{S_T0}"]
        if cfg.ownfirst: l[len(l)-34:len(l)-34] = [f"s_and_b32 s{S_T0}, s{S_XCD}, 1", f"s_mul_i32 s{S_T0}, s{S_T0}, 3"]
        return l
    if cfg.t0_at == 2: st(t0)
    if cfg.tile_at == 2: st(tile)
    st(f"""
    v_bfe_u32 v2, v1, 2, 2
    v_and_b32 v4, 3, v1
    v_lshrrev_b32 v5, 4, v1
    v_lshl_add_u32 v6, v4, 3, 3
    v_sub_u32 v6, v6, v2
    v_bfe_u32 v7, v6, 1, 1
    v_lshl_add_u32 v7, v4, 1, v7
    v_xor_b32 v7, v7, v3
    v_lshlrev_b32 v7, 4, v7
    v_lshl_add_u32 v7, v6, 7, v7
    v_and_b32 v9, 1, v5
    v_lshl_add_u32 v7, v9, 3, v7
    v_add_u32 v{V_TR}, s{S_UQ}, v7
    v_xor_b32 v{V_TR+1}, 32, v{V_TR}
    v_xor_b32 v{V_TR+2}, 64, v{V_TR}
    v_xor_b32 v{V_TR+3}, 0x60, v{V_TR}
    s_andn2_b32 s{S_T0}, 3, s{S_TB}
    v_xor_b32 v6, s{S_T0}, v4
    v_lshlrev_b32 v6, 4, v6
    v_sub_u32 v7, 3, v2
    v_lshl_add_u32 v6, v7, 6, v6
    v_lshl_add_u32 v{V_TS}, v5, 14, v6
    s_lshl_b32 s{S_T0}, s{S_D10}, 18
    s_lshl_b32 s{S_T1}, s{S_TB}, 8
    s_sub_u32 s{S_T0}, s{S_T0}, s{S_T1}
    s_add_u32 s{S_US[0]}, s{S_T0}, {UT_OFF + 63*256}
    s_add_u32 s{S_US[1]}, s{S_T0}, {UT_OFF + 63*256 + 65536}
    s_add_u32 s{S_US[2]}, s{S_T0}, {UT_OFF + 63*256 + 2*65536}
    s_add_u32 s{S_US[3]}, s{S_T0}, {UT_OFF + 63*256 + 3*65536}
    s_lshl_b32 s{S_T0}, s{S_D10}, 2
    s_lshr_b32 s{S_T1}, s{S_TB}, 4
    s_add_u32 s{S_T0}, s{S_T0}, s{S_T1}
    s_lshl_b32 s{S_T0}, s{S_T0}, 6
    s_and_b32 s{S_T1}, s{S_TB}, 15
    s_add_u32 s{S_T0}, s{S_T0}, s{S_T1}
    s_lshl_b32 s{S_T0}, s{S_T0}, 2
    s_add_u32 s{S_UF}, s{S_T0}, {FL_U}
    s_lshl_b32 s{S_UL}, s{S_CH}, 12
    s_add_u32 s{S_UL}, s{S_UL}, {UT_OFF}
    s_lshr_b32 s{S_T0}, s{S_IDX}, 4
    s_lshl_b32 s{S_T0}, s{S_T0}, 2
    s_sub_u32 s{S_T0}, s{S_T0}, s{S_W}
    s_lshl_b32 s{S_T0}, s{S_T0}, 8
    s_add_u32 s{S_T0}, s{S_T0}, {FL_U + 768}
    v_lshl_add_u32 v7, v1, 2, s{S_T0}
    v_lshl_add_u32 v{V_PT}, v5, 28, v7
    """, one_lane(V_PU))
    if cfg.wk: st(tables())
    st_main = st; cadr = []
    class _L:
        def __call__(self, *l):
            for x in l: cadr.extend(t.strip() for t in x.split("\n") if t.strip())
    st = _L()
    st("v_lshrrev_b32 v5, 4, v1", "v_and_b32 v6, 15, v1", "v_lshrrev_b32 v3, 5, v1")
    st(f"v_lshl_add_u32 v9, v5, 4, s{S_RB}",
       "v_add_u32 v7, 1, v6", "v_and_b32 v7, 30, v7", "v_lshl_add_u32 v7, v7, 1, v9",
       f"v_add_u32 v8, {KB_OFF}, v7", f"v_cndmask_b32 v{V_F}, v8, v7, s[{S_M2}:{S_M2+1}]")
    for i in range(1, 3): st(f"v_add_u32 v{V_F+i}, {1024*i}, v{V_F}")
    st(f"""
    v_lshrrev_b32 v7, 1, v1
    s_add_u32 s{S_T0}, s{S_RB}, {TT_OFF+64}
    v_lshl_add_u32 v{V_TW}, v7, 2, s{S_T0}
    v_min_u32 v7, 1, v5
    v_mul_u32_u24 v7, {KB_OFF}, v7
    v_lshl_add_u32 v7, v3, 6, v7
    v_lshl_add_u32 v7, v6, 2, v7
    s_add_u32 s{S_T0}, s{S_RB}, 2080
    v_add_u32 v{V_TA}, s{S_T0}, v7
    s_mov_b32 s{S_T0}, 0x30003
    v_bfe_i32 v7, s{S_T0}, v1, 1
    v_cndmask_b32 v{V_TM}, v7, 0, s[{S_M1}:{S_M1+1}]
    s_mov_b32 s{S_T0}, 0xffff
    v_writelane_b32 v{V_TM}, s{S_T0}, 2
    """)
    st("v_lshlrev_b32 v7, 1, v6", "v_sub_u32 v7, v5, v7")
    for r in range(4):
        st(f"v_add_u32 v8, {30+4*r+U_LDS//64}, v7", f"v_add_u32 v9, {30+4*r}, v7", "v_bfe_u32 v9, v9, 2, 2", f"v_xor_b32 v9, s{S_W}, v9",
           "v_lshlrev_b32 v9, 4, v9", f"v_lshl_add_u32 v{V_G+r}, v8, 6, v9")
    st(f"""
    v_add_u32 v{V_KW}, s{S_RB}, v{V_L16}
    v_sub_u32 v7, 7, v1
    v_max_i32 v7, 0, v7
    v_lshl_add_u32 v{V_KP}, v7, 2, s{S_RB}
    """)
    st = st_main
    if not cfg.wk: st(cadr); cadr = tables()
    box = ""
    for j, (msk, sh) in enumerate(((0x7f, 20), (0x1ff, 19))):
        box += f"""
        v_sub_u32 v4, {sh}, v6
        v_mov_b32 v7, {msk}
        v_lshlrev_b32 v4, v4, v7
        v_lshrrev_b32 v4, v2, v4
        """
        for d in range(4): box += f"""
        v_bfe_u32 v7, v4, {2*d}, 2
        v_mul_u32_u24 v7, 0x8001, v7
        v_and_b32 v7, 0x10001, v7
        v_mul_u32_u24 v{BX+4*j+d}, 0x3f80, v7
        """
    late = f"""
    v_and_b32 v6, 15, v1
    v_lshrrev_b32 v5, 4, v1
    v_lshlrev_b32 v7, 1, v6
    v_sub_u32 v7, v5, v7
    v_add_u32 v4, {31+U_LDS//64}, v7
    v_add_u32 v7, 31, v7
    v_bfe_u32 v7, v7, 2, 2
    v_xor_b32 v7, s{S_W}, v7
    v_lshlrev_b32 v7, 4, v7
    v_lshl_add_u32 v{V_G9}, v4, 6, v7
    v_lshlrev_b32 v7, 2, v5
    v_sub_u32 v7, v6, v7
    s_add_u32 s{S_T0}, s{S_RB}, {TT_OFF+52}
    v_lshl_add_u32 v{V_TT}, v7, 2, s{S_T0}
    @addr
    v_lshlrev_b32 v2, 3, v5
    {box}
    @box
    s_lshr_b32 s{S_T0}, s{S_TB}, 1
    s_lshl_b32 s{S_T0}, s{S_T0}, 10
    s_add_u32 s{S_T0}, s{S_T0}, {FL_H}
    v_lshl_add_u32 v7, v1, 2, s{S_T0}
    v_subrev_u32 v6, 12, v1
    v_ashrrev_i32 v6, 31, v6
    v_mov_b32 v5, {hx(OOB)}
    v_bfi_b32 v{V_PH}, v6, v7, v5
    s_lshr_b32 s{S_T0}, s{S_RBK}, 2
    s_mul_i32 s{S_T0}, s{S_T0}, 10
    s_add_u32 s{S_T0}, s{S_T0}, s{S_D10}
    s_lshl_b32 s{S_T0}, s{S_T0}, 8
    s_add_u32 s{S_T0}, s{S_T0}, {FL_Y}
    v_lshl_add_u32 v7, v1, 2, s{S_T0}
    v_subrev_u32 v6, 16, v1
    v_ashrrev_i32 v6, 31, v6
    v_bfi_b32 v{V_PY}, v6, v7, v5
    v_and_b32 v5, 31, v1
    v_lshrrev_b32 v3, 5, v1
    s_lshl_b32 s{S_T1}, s{S_D10}, 7
    s_lshl_b32 s{S_T0}, s{S_TB}, 5
    v_add_u32 v7, s{S_T0}, v5
    s_lshl_b32 s{S_T2}, s{S_TB}, 10
    v_lshl_add_u32 v{V_T}, v5, 2, s{S_T2}
    v_lshlrev_b32 v6, 17, v3
    v_lshl_add_u32 v{V_YA}, v7, 3, v6
    v_and_b32 v6, 7, v1
    v_lshrrev_b32 v7, 3, v1
    s_mul_i32 s{S_T0}, s{S_T0}, 1280
    s_add_u32 s{S_T0}, s{S_T0}, s{S_T1}
    v_mul_u32_u24 v4, 1280, v7
    v_lshl_add_u32 v4, v6, 4, v4
    v_add_u32 v{V_OUT}, s{S_T0}, v4
    s_lshl_b32 s{S_T0}, s{S_W}, 12
    s_add_u32 s{S_T0}, s{S_T0}, {W2_LDS + 8*8192}
    v_xor_b32 v4, v6, v7
    v_lshl_add_u32 v4, v4, 4, s{S_T0}
    v_lshl_add_u32 v{V_OR}, v7, 7, v4
    v_lshlrev_b32 v4, 2, v3
    v_xor_b32 v4, v4, v6
    v_lshl_add_u32 v4, v4, 4, s{S_T0}
    v_lshl_add_u32 v{V_OW}, v5, 7, v4
    v_bfe_u32 v2, v1, 2, 2
    v_lshl_add_u32 v4, v3, 2, v2
    v_lshlrev_b32 v4, 7, v4
    v_lshrrev_b32 v5, 1, v2
    v_lshl_add_u32 v4, v5, 5, v4
    v_and_b32 v5, 1, v1
    v_lshl_add_u32 v4, v5, 6, v4
    v_bfe_u32 v5, v1, 4, 1
    v_lshl_add_u32 v4, v5, 4, v4
    v_bfe_u32 v5, v1, 1, 1
    v_lshl_add_u32 v{V_RW}, v5, 3, v4
    v_xor_b32 v{V_RW+1}, 32, v{V_RW}
    v_add_u32 v{V_RW+2}, 0x10000, v{V_RW}
    v_add_u32 v{V_RW+3}, 0x10000, v{V_RW+1}
    v_add_u32 v{V_RW+4}, 0x20000, v{V_RW}
    v_add_u32 v{V_RW+5}, 0x20000, v{V_RW+1}
    v_add_u32 v{V_WW}, s{S_LW}, v{V_L16}
    v_add_u32 v{V_WW+1}, 0x10000, v{V_WW}
    v_add_u32 v{V_WW+2}, 0x20000, v{V_WW}
    v_and_b32 v6, 15, v1
    v_lshrrev_b32 v5, 4, v1
    v_and_b32 v4, 3, v1
    v_lshlrev_b32 v7, 2, v5
    v_lshl_add_u32 v7, v6, 4, v7
    v_add_u32 v{V_YW}, s{S_RB}, v7
    v_mul_u32_u24 v7, {RSTRIDE}, v2
    v_lshl_add_u32 v7, v4, 3, v7
    v_lshl_add_u32 v7, v5, 5, v7
    s_lshl_b32 s{S_T0}, s{S_W}, 9
    v_add_u32 v{V_YR}, s{S_T0}, v7
    """
    late_l = []
    for t in late.split("\n"):
        t = t.strip()
        if t: late_l.append(t)
    b2l = [VM(f"global_load_dwordx4 {vr(B2R+4*i,4)}, v154, s[{P_B2}:{P_B2+1}] offset:{16*i}", "b2") for i in range(4)]
    late2 = [NEED("b2")] + [x for i in range(16) for x in (f"v_lshlrev_b32 v{ACC2+2*i}, 16, v{B2R+i}", f"v_and_b32 v{ACC2+2*i+1}, 0xffff0000, v{B2R+i}")]
    for j, gp in enumerate(cfg.ct):
        if gp is None: st(ctouch[j])
    if cfg.tile_at == 3: st(tile)
    if cfg.t0_at == 3: st(t0)
    st(pf("B", "idle"))
    LH = f2u(1.4426950408889634); LHf = struct.unpack("<f", struct.pack("<I", LH))[0]
    st(f"s_mov_b32 s{S_T0}, {hx(LH)}", f"s_mov_b32 s{S_T1}, {hx(f2u(1.4426950408889634-LHf))}", f"s_mov_b32 s{S_T2}, {hx(f2u(0.6931471805599453))}",
      NEED("ldt"),
      f"v_mul_f32 v5, s{S_T0}, v{V_LDT}",
      f"v_fma_f32 v6, v{V_LDT}, s{S_T0}, -v5",
      f"v_exp_f32 v7, v5",
      f"v_fma_f32 v6, v{V_LDT}, s{S_T1}, v6",
      f"v_mul_f32 v6, s{S_T2}, v6",
      f"v_fma_f32 v7, v7, v6, v7",
      f"v_cvt_pk_bf16_f32 v{V_DT}, 0, v7",
      f"v_mul_f32 v{V_DTL}, s{S_T0}, v{V_DT}",
      f"v_mul_f32 v{V_DTP}, 0.15915494, v{V_DT}")
    def setup(g):
        p = VP + 6*g
        l = [NEED("p01" if g < 2 else "p2")]
        if g == 0: l += [f"v_lshlrev_b32 v{p+k}, 16, v{VRAW+k}" for k in range(6)]
        if g == 1: l += [f"v_and_b32 v{p+k}, 0xffff0000, v{VRAW+k}" for k in range(6)]
        l += [f"v_mul_f32 v{p}, v{p}, v{V_DTL}",
             f"v_mul_f32 v{p+1}, v{p+1}, v{V_DTP}",
             f"v_mul_f32 v{p+2}, v{p+2}, v{V_DT}",
             f"v_mul_f32 v{p+3}, v{p+3}, v{V_DT}",
             f"v_exp_f32 v2, v{p}",
             f"v_fract_f32 v3, v{p+1}",
             f"v_mul_f32 v4, 0x41000000, v{p}",
             f"v_mul_f32 v5, 0x41000000, v{p+1}",
             f"v_cos_f32 v{Z1}, v3",
             f"v_sin_f32 v{Z1+1}, v3",
             f"v_exp_f32 v4, v4",
             f"v_fract_f32 v5, v5",
             f"v_mul_f32 v6, 0x43800000, v{p}",
             f"v_mul_f32 v7, 0x43800000, v{p+1}",
             f"v_cos_f32 v{Z8}, v5",
             f"v_sin_f32 v{Z8+1}, v5",
             f"v_exp_f32 v6, v6",
             f"v_fract_f32 v7, v7",
             f"v_mul_f32 v{Z1}, v2, v{Z1}",
             f"v_mul_f32 v{Z1+1}, v2, v{Z1+1}",
             f"v_cos_f32 v{Z256}, v7",
             f"v_sin_f32 v{Z256+1}, v7",
             f"v_mul_f32 v{Z8}, v4, v{Z8}",
             f"v_mul_f32 v{Z8+1}, v4, v{Z8+1}",
             f"v_mul_f32 v{SV}, v{p+4}, v{p+2}",
             f"v_mul_f32 v{SV+1}, v{p+4}, v{p+3}",
             f"v_mul_f32 v{Z256}, v6, v{Z256}",
             f"v_mul_f32 v{Z256+1}, v6, v{Z256+1}",
             f"v_fma_f32 v{SV}, -v{p+5}, v{p+3}, v{SV}",
             f"v_fma_f32 v{SV+1}, -v{p+5}, v{p+2}, -v{SV+1}"]
        return l
    def chains(nscalar):
        vals = []
        def put(pre, x, row): vals.append((pre, x, row))
        def sc(): return len(vals) <= nscalar
        put([], SV, hi_row(0))
        prev = SV
        for j in range(1, 8):
            d = SV + j if j % 2 == 0 else X
            put(cmul(d, prev, Z1, T, True, sc()), d, hi_row(j)); prev = d
        for j in (0, 2, 4, 6): put(cmul(SV+j, SV+j, Z256, T, True, sc()), SV+j, hi_row(256+j))
        for b in (512, 768):
            for j in (0, 4): put(cmul(SV+j, SV+j, Z256, T, True), SV+j, hi_row(b+j))
        for b in (1024, 1280, 1536, 1792, 2048): put(cmul(SV, SV, Z256, T, True), SV, hi_row(b))
        put([], Z8, 1)
        prev = Z8
        for b in range(2, 32): put(cmul(X, prev, Z8, T), X, b); prev = X
        l = []; i = 0; nrd = 0
        while i < len(vals):
            n = 1 if (nscalar and i <= nscalar) else min(cfg.wb, len(vals) - i)
            g = []
            for j in range(n):
                pre, x, row = vals[i+j]; g += pre + [f"v_cvt_pk_bf16_f32 v{CV+(i+j)%6}, v{x}, v{x+1}"]
            for j in range(n): g.append(LG(f"ds_write_addtid_b32 v{CV+(i+j)%6} offset:{vals[i+j][2]*TROW}"))
            i += n
            if i >= 24:
                for k in range(nrd, min(nrd+2, 8)): g.append(LG(f"ds_read_b128 {ar(FA+4*k,4)}, v{V_AA} offset:{32*k}"))
                nrd = min(nrd+2, 8)
            l.append(g)
        assert nrd == 8
        return l
    def mm(g, k):
        c = "0" if (g == 0 and k == 0) else vr(D, 16)
        return [NEED(("fb", k)), f"v_mfma_f32_32x32x16_bf16 {vr(D,16)}, {ar(FA+4*k,4)}, {ar(FB+4*k,4)}, {c}"]
    fbreads = [LG(f"ds_read_b128 {ar(FB+4*k,4)}, v{V_BA} offset:{32*k}", ("fb", k)) for k in range(8)]
    def w2load(u):
        sg, p = divmod(u, 6)
        so = f"s_add_u32 s{S_DM}, s{S_CWO+p}, {sg*64*1280}"
        if u < NDMA:
            v = [VM(f"buffer_load_dwordx4 v{V_W2+i}, s[{SRD_W}:{SRD_W+3}], s{S_DM} offen offset:{1024*i} lds", ("w2", u)) for i in range(2)]
            return [[f"s_add_u32 m0, s{S_LW}, {w2slot(u)}", so, v[0]], v[1]]
        v = [VM(f"buffer_load_dwordx4 {rawreg(u,i)}, v{V_W2+i}, s[{SRD_W}:{SRD_W+3}], s{S_DM} offen offset:{1024*i}", ("w2", u)) for i in range(2)]
        return [[so, v[0]], v[1]]
    def w2put(u):
        l = []
        for i in range(2):
            o = w2slot(u) + 1024*i
            l.append([NEED(("w2", u)), LG(f"ds_write_b128 v{V_WW+(o>>16)}, {rawreg(u,i)} offset:{o & 0xffff}", ("put", u))])
        return l
    def w2touch(j): return [f"s_mov_b32 s{S_T3}, {128*1280*j}", VM(f"buffer_load_dword v{V_JUNK}, v{V_WT}, s[{SRD_W}:{SRD_W+3}], s{S_T3} offen")]
    ins = [{}, {}, {}]
    def at(g, pos, items): ins[g].setdefault(pos, []).extend(items)
    tr = pf("B", "tpre") + [NEED("tile")] + pf("B", "tile")
    for x in range(4):
        tr += [LG(f"ds_read_b64_tr_b16 {vr(Q+4*x,2)}, v{V_TR+x} offset:512"), LG(f"ds_read_b64_tr_b16 {vr(Q+4*x+2,2)}, v{V_TR+x}", ("tr", x))]
    at(0, cfg.tr_pos, tr)
    at(0, cfg.tr_pos+1, [x for j in range(4) for x in (NEED(("tr", j)), VM(f"buffer_store_dwordx4 {vr(Q+4*j,4)}, v{V_TS}, {WS}, s{S_US[j]} offen sc1", "ut"))])
    at(*cfg.pub_pos, pf("B", "ppre") + [NEED("ut"), f"v_add_u32 v{V_TAG}, {hx(TAG_STEP)}, v{V_TAG}", flag_set(V_TAG, V_PU, S_UF)] + pf("B", "utpub"))
    at(*cfg.up_pos, polls.issue("up", V_POLL, V_PT, 0))
    at(2, cfg.ul_pos, polls.check("up", V_POLL, V_TAG, V_PT, 0, "0xffff", pf, "u") + [f"s_mov_b32 m0, s{S_UQ}\ns_nop 0"] +
       [VM(f"buffer_load_dwordx4 v{V_L16}, {WS}, s{S_UL} offen offset:{1024*i} sc1 lds", "U") for i in range(4)] +
       [f"s_mov_b32 m0, s{S_RB}\ns_nop 0"] + pf("B", "useen"))
    for j, gp in enumerate(cfg.ct):
        if gp: at(*gp, ctouch[j])
    for j, (g, pos) in enumerate(cfg.wt_pos): at(g, pos, w2touch(j))
    if cfg.w1t: at(*cfg.w1t, [VM(f"global_load_dword v{V_JUNK}, v{V_W1T}, s[{P_W1}:{P_W1+1}] offset:{128*q}") for q in range(cfg.s0, 4)])
    order = [u for p in range(6) for u in (18+p, p, 6+p, 12+p)]
    for gp in cfg.wk:
        u = next(x for x in order if x >= NDMA); order.remove(u); at(*gp, w2load(u))
    early_u = [u for u in order if u < 10 or u >= NDMA][:cfg.w_early + cfg.w_exp]
    order = early_u + [u for u in order if u not in early_u]
    vq = [x for u in order for x in w2load(u)]
    st(setup(0))
    st(pf("B", "setup0"))
    st(insert(chains(0), ins[0]))
    for g in (1, 2):
        st(fbreads, setup(g))
        c = chains(8)
        for k in range(8): c[k+1] = mm(g-1, k) + c[k+1]
        st(pf("B", f"kgen{g-1}"))
        st(insert(c, ins[g]))
    st(fbreads, NEED("dsk"), "v_cmp_eq_u32 vcc, 0, v1", cadr[:8], f"v_cndmask_b32 v{V_DSK}, 0, v{V_DSK}, vcc")
    ne = 2*cfg.w_early
    st(weave([mm(2, k) for k in range(8)], cadr[8:-8] + vq[:ne])); vq = vq[ne:]
    st(cadr[-8:], "s_nop 1")
    st(pf("B", "kgen2"))
    N = 10; TT = 14
    dpp = "row_mask:0xf bank_mask:0xf"
    st(f"v_add_f32 v{D}, v{D}, v{V_DSK}")
    for i, nx in enumerate((8, 10, 11, 12)): st(f"v_mov_b32_dpp v{N+i}, v{D+nx} wave_rol:1 {dpp}")
    for i, cu in enumerate((0, 8, 10, 11)): st(f"v_mov_b32_dpp v{N+i}, v{D+cu} wave_shl:1 {dpp}")
    st(f"v_cvt_pk_bf16_f32 v16, 0, v{D}",
       f"v_cvt_pk_bf16_f32 v17, v{D+10}, v{D+10}",
       f"v_cvt_pk_bf16_f32 v18, v{D+10}, v{N+2}",
       f"v_cvt_pk_bf16_f32 v19, v{D+11}, v{N+3}",
       f"v_readfirstlane_b32 s{S_T0}, v17",
       f"v_cndmask_b32 v{D+7}, v{D+7}, v{N}, s[{S_M1}:{S_M1+1}]",
       "v_cndmask_b32 v16, 0, v16, vcc",
       f"v_mov_b32_dpp v18, v18 quad_perm:[1,1,3,3] {dpp}", f"v_mov_b32_dpp v19, v19 quad_perm:[1,1,3,3] {dpp}",
       f"v_and_b32 v17, s{S_T0}, v{V_TM}",
       LG(f"ds_write_b32 v{V_KP}, v16 offset:{KB_OFF}"), LG(f"ds_write_b32 v{V_KP}, v{V_Z}"),
       LG(f"ds_write_b32 v{V_TA}, v17"), LG(f"ds_write2_b32 v{V_TW}, v18, v19 offset1:32"))
    seqs = [[D+i for i in range(8)] + [N],
            [D+8]*3 + [D+9]*3 + [N+1]*3]
    def floads(F, ms, r=0):
        l = []
        for m in ms:
            o = 128*(m & 1) + 16*r
            l.append(LG(f"ds_read2_b32 {ar(F+4*m,2)}, v{V_F+(m>>1)} offset0:{o} offset1:{o+1}"))
            l.append(LG(f"ds_read2_b32 {ar(F+4*m+2,2)}, v{V_F+(m>>1)} offset0:{o+2} offset1:{o+3}", ("F", r, m)))
        return l
    def gload(G, n, r): return LG(f"ds_read_b128 {ar(G+4*n,4)}, v{V_G+(r&3)} offset:{2048*(7-n) + 1024*(r>>2)}", ("G", r, n))
    for p, sq in enumerate(seqs):
        for cpy in range(2):
            q = Q + 8*p + 4*cpy
            for i in range(4): st(f"v_cvt_pk_bf16_f32 v{q+i}, v{sq[2*i+cpy]}, v{sq[2*i+1+cpy]}")
            st(LG(f"ds_write_b128 v{V_KW}, {vr(q,4)} offset:{32 + 1024*p + KB_OFF*cpy}"))
            if 2*p + cpy < cfg.w_exp: st(vq[:2]); vq = vq[2:]
    st(floads(F0, range(5)))
    st(pf("B", "expand"))
    st(NEED("U"), "s_barrier")
    st(pf("B", "ubar"))
    st([gload(G0, n, 0) for n in range(7, -1, -1)])
    def hreg(k): return ar(128 + 4*(k % 32), 4)
    def hload(k):
        sg, rem = divmod(k, 24); p, q = divmod(rem, 4)
        l = [f"s_add_u32 s{S_H2}, s{S_CHO+p}, {H_OFF + sg*24*1024*(0 if 'hq0' in cfg.exp else 1)}"] if q == 0 else []
        return l + [VM(f"buffer_load_dwordx4 {hreg(k)}, v{V_L16}, {WS}, s{S_H2} offen offset:{1024*q} sc1", ("h", k))]
    def hpoll(sg): return polls.issue(("hp", sg), V_POLL, V_PH, 256*sg)
    def hcheck(sg): return polls.check(("hp", sg), V_POLL, V_TAG, V_PH, 256*sg, "0xfff", pf, f"h{sg}") + pf("B", f"h{sg}seen")
    M16 = "v_mfma_f32_16x16x32_bf16"
    def mfmas(F, G, first):
        return [f"{M16} {vr(ACC+4*(m+n),4)}, {ar(F+4*m,4)}, {ar(G+4*n,4)}, {'0' if (first and m == 0) else vr(ACC+4*(m+n),4)}"
                for m in range(5 if first else 4) for n in range(7-m, -1, -1)]
    mf = []; mand = {}; it0 = []
    RS, RD = cfg.rs, cfg.rd
    for r in range(8):
        F, G, Fn, Gn = (F0, G0, F1, G1) if r % 2 == 0 else (F1, G1, F0, G0)
        m_ = mfmas(F, G, r == 0)
        if r == 0:
            for n in (7, 5, 3, 1): m_[7-n] = [NEED(("G", 0, n-1)), m_[7-n]]
        else:
            m_[0] = [NEED(("G", r, 0)), m_[0]]; m_[8] = [NEED(("F", r, 3)), m_[8]]
        if r == RS - 1:
            x = [f"{M16} {vr(SD+4*j,4)}, {ar(GS+4*j,4)}, {vr(BX+4*(j >> 2),4)}, 0" for j in range(8)]
            m_ += [[NEED("gs"), x[0]]] + x[1:]
        if r == RD - 1:
            x = [f"{M16} {vr(ACC+4*(n+dl),4)}, {vr(SD+4*n,4)}, {ar(TF+4*(dl-4),4)}, {vr(ACC+4*(n+dl),4)}" for dl in range(4, 8) for n in range(8-dl)]
            m_ += [[NEED("tf"), x[0]]] + x[1:]
        it0.append(len(mf))
        if r < 7:
            ld = floads(Fn, [0], r+1) + [gload(Gn, n, r+1) for n in range(7, -1, -1)] + floads(Fn, [1, 2, 3], r+1)
            for j, it in enumerate(ld): mand[len(mf) + j*len(m_)//16] = [it]
        mf += m_
    NG = len(mf); it0.append(NG)
    free = [g for g in range(NG) if g not in mand]
    def onfree(items, g0, g1):
        fr = [g for g in free if g0 <= g < g1]; out = []
        for j, it in enumerate(items):
            g = fr[j*len(fr)//len(items)]
            if isinstance(it, list):
                out += [(x, max(g-3, g0), g) for x in it[:-1]]; it = it[-1]
            out.append((it, g, g))
        return out
    sv = onfree(b2l + vq, 0, it0[7] + cfg.w_last)
    L = cfg.stream
    GE = NG - cfg.eg
    if cfg.early:
        k = next((j for j, x in enumerate(sv) if x[2] >= GE - 40 and (j == 0 or callable(sv[j-1][0]))), len(sv))
        sv.insert(k, (hpoll(0), GE - 44, GE - 40))
    hq = [hload(k) for k in range(L)]
    chk = hcheck(0)
    if cfg.eg:
        assert cfg.eg <= 26 and cfg.burst <= 16 and sv[-1][2] < GE
        sv += [(chk, GE, GE)] + onfree(hq[:cfg.burst], GE + 1, NG)
    gS = it0[RS] - 8; gD = it0[RD] - 10
    ka, kb = late_l.index("@addr"), late_l.index("@box")
    xl = [LG(f"ds_read_b128 {ar(GS+4*j,4)}, v{V_G9 if j >> 2 else V_G} offset:{2048*(7-(j & 3))}", "gs") for j in range(8)] + \
         [LG(f"ds_read2_b32 {ar(TF+2*j,2)}, v{V_TT} offset0:{16*(j >> 1)+3-2*(j & 1)} offset1:{16*(j >> 1)+2-2*(j & 1)}", "tf") for j in range(8)]
    sl = [(x, 0, gS-12) for x in late_l[:ka] + xl[:8]] + [(x, 0, gS-3) for x in late_l[ka+1:kb]] + [(x, 0, gD-8) for x in xl[8:]] + \
         [(x, 0, NG-50) for x in late_l[kb+1:]]
    sc = [(f"v_cvt_pk_bf16_f32 v{SD+j}, v{SD+j}, v{SD+16+j}", gS+12, gD-3) for j in range(16)]
    sched(st, mf, 9.5, mand, [sv, sc, sl, [(x, it0[7], NG-1) for x in late2]])
    st(pf("B", "conv"))
    def reads(k):
        u, q = k >> 2, k & 3
        o = w2slot(u) + q*2048; l = []
        if k == 36: l += [NEED(("put", 15)), "s_barrier"]
        if k == 64: l += [NEED(("put", 23)), "s_barrier"]
        b = WF + 8*(k & 3)
        for T_ in range(2):
            for s in range(2):
                oo = o + 1024*s
                l.append(LG(f"ds_read_b64_tr_b16 {vr(b+4*T_+2*s,2)}, v{V_RW+2*(oo>>16)+T_} offset:{oo & 0xffff}", ("w", k)))
        return l
    LEAD = 2
    ysto = [[NEED(("y", x)), VM(f"buffer_store_dwordx4 {vr(24+4*x,4)}, v{V_L16}, {WS}, s{S_T0} offen offset:{1024*x} sc1", "ys")] for x in range(4)]
    yrd = [[LG(f"ds_read_b64_tr_b16 {vr(24+4*x,2)}, v{V_YR} offset:{128*x}"), LG(f"ds_read_b64_tr_b16 {vr(26+4*x,2)}, v{V_YR} offset:{2048+128*x}", ("y", x))] for x in range(4)]
    put1 = [x for u in range(NDMA, 16) for x in w2put(u)]
    ya = [f"s_lshl_b32 s{S_T0}, s{S_IDX}, 14", f"s_lshl_b32 s{S_T1}, s{S_W}, 12", f"s_add_u32 s{S_T0}, s{S_T0}, s{S_T1}", f"s_add_u32 s{S_T0}, s{S_T0}, {YA_OFF}"]
    yw = [[f"v_cvt_pk_bf16_f32 v{8+2*cb}, v{ACC+4*cb}, v{ACC+4*cb+2}", f"v_cvt_pk_bf16_f32 v{9+2*cb}, v{ACC+4*cb+1}, v{ACC+4*cb+3}",
           LG(f"ds_write2st64_b32 v{V_YW}, v{8+2*cb}, v{9+2*cb} offset0:{cb} offset1:{8+cb}")] for cb in range(8)]
    ybar = [NEED(*[("w2", u) for u in range(NDMA)]), DRAIN("lg"), "s_barrier"]
    first = [reads(k) for k in range(LEAD)]
    if cfg.early:
        nb = cfg.burst; n1 = nb + (L - nb)//2
        st([] if cfg.eg else [chk, hq[:nb]], ya, weave(yw, hq[nb:n1]), ybar, first, weave(yrd + put1[:cfg.nput], hq[n1:]))
    else:
        st(ya, yw[:4], [] if cfg.ysfirst else hpoll(0), yw[4:], ybar, yrd)
        if cfg.ysfirst: st(ysto, hpoll(0)); ysto = []
        st(put1[:cfg.nput], first, chk, hq)
    put1 = put1[cfg.nput:]
    st(pf("B", "g2start"))
    ypub = [f"s_mul_i32 s{S_T0}, s{S_W}, 10", f"s_lshr_b32 s{S_T1}, s{S_IDX}, 4", f"s_add_u32 s{S_T0}, s{S_T0}, s{S_T1}", f"s_lshl_b32 s{S_T0}, s{S_T0}, 6",
            f"s_and_b32 s{S_T1}, s{S_IDX}, 15", f"s_add_u32 s{S_T0}, s{S_T0}, s{S_T1}", f"s_lshl_b32 s{S_T0}, s{S_T0}, 2",
            f"s_add_u32 s{S_T0}, s{S_T0}, {FL_Y}", [NEED("ys"), flag_set(V_TAG, V_PU, S_T0)]]
    ypoll = polls.issue("yp", V_JUNK, V_PY, 0)
    ein = [polls.check("yp", V_JUNK, V_TAG, V_PY, 0, "0xffff", pf, "y") + pf("B", "yseen"), f"s_mov_b32 s{S_T1}, {G_OFF}",
           *[VM(f"buffer_load_dword v{40+j if j < 4 else V_GT}, v{V_T}, {WS}, s{S_T1} offen offset:{128*j} sc1", "g") for j in range(5)],
           f"s_lshl_b32 s{S_T1}, s{S_D10}, 18", f"s_add_u32 s{S_T1}, s{S_T1}, {YA_OFF}"]
    for i in range(8):
        ein += [[VM(f"buffer_load_dwordx2 {vr(YA+2*i,2)}, v{V_YA}, {WS}, s{S_T1} offen sc1", "ya"), f"s_add_u32 s{S_T1}, s{S_T1}, 16384"]]
    pre = [NEED("g"), "v_add_f32 v40, v40, v41", "v_add_f32 v42, v42, v43", f"v_add_f32 v40, v40, v{V_GT}", "v_add_f32 v40, v40, v42",
           f"v_mul_f32 v40, {hx(f2u(-1.4426950408889634))}, v40", "v_exp_f32 v40, v40\ns_nop 0", "v_add_f32 v40, 1.0, v40", f"v_rcp_f32 v{V_GT}, v40\ns_nop 0",
           f"v_sub_f32 v{V_OG}, 1.0, v{V_GT}", NEED("ya")]
    for i in range(16):
        pre += [f"v_lshlrev_b32 v{GA+2*i}, 16, v{YA+i}", f"v_and_b32 v{GA+2*i+1}, 0xffff0000, v{YA+i}",
                f"v_mul_f32 v{GA+2*i}, v{GA+2*i}, v{V_GT}", f"v_mul_f32 v{GA+2*i+1}, v{GA+2*i+1}, v{V_GT}"]
    pre += srd(SRD_OUT, P_OUT, 2048*1280) + [f"v_xor_b32 v{2+i}, {16*i}, v{V_OW}" for i in range(1, 4)]
    PL = cfg.pl
    mf = []; mand = {}; post = {}
    for k in range(96):
        b = WF + 8*(k & 3)
        m_ = [f"v_mfma_f32_32x32x16_bf16 {vr(ACC2+16*T_,16)}, {vr(b+4*T_,4)}, {hreg(k)}, {vr(ACC2+16*T_,16)}" for T_ in range(2)]
        mf += [[NEED(("w", k), ("h", k)), m_[0]], m_[1]]
        if k + LEAD < 96: mand[2*k] = reads(k+LEAD)
        post[2*k] = pf("B", f"k{k}")
    sh = []; sp = []
    def hitem(k, step):
        g = 2*step + 1; l = hload(k)
        return [(x, g-1, g) for x in l[:-1]] + [(l[-1], g, g)]
    if L:
        for k in range(L, 24): sh += hitem(k, k - L)
    for sg in (1, 2, 3):
        k0 = 24*sg - cfg.leads[sg-1]
        if k0 - PL >= 0: sp.append((hpoll(sg), 2*(k0-PL), 2*(k0-PL)+1))
        else: st(hpoll(sg))
        sh.append((hcheck(sg), 2*k0, 2*k0))
        for j in range(24): sh += hitem(24*sg + j, k0 + j)
    Y0 = cfg.ys; assert Y0 > 48 - cfg.leads[1]
    sy = paced(ysto, 2*cfg.yst, 2*cfg.yst+8, 0) + [(x, 2*cfg.yp-16, 2*cfg.yp) for x in ypub[:-1]] + [(ypub[-1], 2*cfg.yp, 2*cfg.yp+2)] + [(ypoll, 2*(Y0-PL), 2*(Y0-PL)+2)] + paced(ein, 2*Y0, 2*(Y0+cfg.yn), 2) + paced(pre, 2*(Y0+cfg.yn)+cfg.ylat, 188, 2)
    sw = [(x, g & ~1, g & ~1) for x, g, _ in paced(put1, 10, 60, 0) + paced([x for u in range(16, 24) for x in w2put(u)], 70, 120, 0)]
    if 'noput' in cfg.exp: sw = [(lambda s_: s_.tok.update({("put", 15): ("lg", 0), ("put", 23): ("lg", 0)}), 0, 0)]
    if 'nost' in cfg.exp:
        sy = sy[4:]; st.tok['ys'] = ('vm', 0)
    if 'noy' in cfg.exp:
        sy = [x for x in sy if 's_mov_b32 s5' in str(x[0]) or 'v_xor' in str(x[0]) or x[0] in ypub or (isinstance(x[0], list) and 'L_back' in str(x[0])) or x[0] is ypoll]
    if 'noh' in cfg.exp:
        sh = [x for x in sh if isinstance(x[0], list)]
        for k in range(L or 24, 96): st.tok[("h", k)] = ("vm", 0)
    if 'nopoll' in cfg.exp:
        sh = [x for x in sh if not isinstance(x[0], list)]; sp = []
        polls.tail = polls.tail[:-30]
    sched(st, mf, 24, mand, [sh, sp, sy, sw], post)
    st(pf("B", "g2"))
    st(f"s_mov_b32 s{S_T1}, {8*1280}", f"s_mov_b32 s{S_T2}, {16*1280}", f"s_mov_b32 s{S_T3}, {24*1280}", "s_nop 7")
    for i in range(4):
        for e in range(0, 8, 2): st(f"v_pk_fma_f32 {vr(GA+8*i+e,2)}, {vr(ACC2+8*i+e,2)}, {vr(V_GT,2)}, {vr(GA+8*i+e,2)} op_sel:[0,1,0]")
        for e in range(4): st(f"v_cvt_pk_bf16_f32 v{WF+4*i+e}, v{GA+8*i+2*e}, v{GA+8*i+2*e+1}")
        st(LG(f"ds_write_b128 v{2+i if i else V_OW}, {vr(WF+4*i,4)}"))
    for i in range(4): st(LG(f"ds_read_b128 {vr(WF+16+4*i,4)}, v{V_OR} offset:{1024*i}", ("o", i)))
    for i in range(4):
        st(NEED(("o", i)), VM(f"buffer_store_dwordx4 {vr(WF+16+4*i,4)}, v{V_OUT}, s[{SRD_OUT}:{SRD_OUT+3}], {f's{S_T0+i}' if i else 0} offen sc1"))

A_MISC = 131072
def role_a(a, cfg, pf, polls):
    S_RBK, S_C6, S_XO, S_WO, S_HO, S_LX, S_TB, S_ES, S_FL = 60, 61, 62, 63, 56, 64, 65, 58, 43
    S_CX, S_CW, S_KR = 4, 14, 69
    VX, VW, VRX, VRW = 4, 8, 12, 20
    V_EP, V_ST, V_TAG, V_Z, V_BR, V_GL = 22, 23, 28, 29, 30, 31
    WF, PK, GF, ACC = 32, 48, 48, 128
    GACC = ACC + 96
    def xreg(kk, tau):
        n = 2*kk + tau
        return ar(4*n, 4) if n < 64 else vr(64 + 4*(n-64), 4)
    S0 = cfg.s0
    LEAD = cfg.alead
    pairs = []; periods = []
    for c in range(10):
        periods.append((len(pairs), c, c if S0 == 2 else c >> 1, (0, 1) if S0 == 2 else (c & 1,)))
        if S0 == 1: pairs += [(c >> 1, c & 1, q, 4*c+q, 0) for q in range(4)]
        elif c < 9: pairs += [(c, u, q, 4*c+q, u) for q in range(4) for u in range(2)]
        else: pairs += [(c, u, q, 4*c+q, u) for u in range(2) for q in range(4)]
    for b in range(5*S0, 20):
        periods.append((len(pairs), None, b, (0, 1)))
        pairs += [(b, u, q, 8*(b % 5)+4*u+q, b//5) for u in range(2) for q in range(4)]
    NP = len(periods)
    bar_pos = [max(p[0] - LEAD, 0) for p in periods] + [160]
    def free_after(last): return next(e for e in range(NP+1) if bar_pos[e] >= last)
    last_use = {b: max(i for i, p in enumerate(pairs) if p[0] == b) for b in range(20)}
    slot_free = {65536 + 16384*j: 0 for j in range(4)}
    for j in range(4): slot_free[16384*j] = free_after(periods[(8, 9, 6, 7)[j] + 1][0] - 1)
    wsl = {}; wearliest = {}
    for b in range(20):
        sl = min(slot_free, key=lambda x: (slot_free[x], -x >> 16))
        wsl[b] = sl; wearliest[b] = slot_free[sl]; slot_free[sl] = free_after(last_use[b])
    st = Stream(a)
    st(f"""
    s_and_b32 s{S_RBK}, s{S_XCD}, 6
    s_lshl_b32 s{S_RBK}, s{S_RBK}, 1
    s_and_b32 s{S_KR}, s{S_SLOT}, 3
    s_add_u32 s{S_RBK}, s{S_RBK}, s{S_KR}
    s_mul_i32 s{S_KR}, s{S_KR}, {5 if cfg.krot else 0}
    s_add_u32 s{S_KR}, s{S_KR}, 1
    s_lshr_b32 s{S_KR}, s{S_KR}, 1
    s_and_b32 s{S_C6}, s{S_XCD}, 1
    s_mul_i32 s{S_C6}, s{S_C6}, 3
    s_lshr_b32 s{S_T0}, s{S_SLOT}, 2
    s_add_u32 s{S_C6}, s{S_C6}, s{S_T0}
    s_lshl_b32 s{S_T0}, s{S_C6}, 2
    s_lshr_b32 s{S_T0}, {0x962840 if cfg.crot else 0}, s{S_T0}
    s_and_b32 s{S_T0}, s{S_T0}, 15
    s_add_u32 s{S_KR}, s{S_KR}, s{S_T0}
    s_cmp_ge_u32 s{S_KR}, 10
    s_cselect_b32 s{S_T0}, 10, 0
    s_sub_u32 s{S_KR}, s{S_KR}, s{S_T0}
    s_lshl_b32 s{S_TB}, s{S_RBK}, 2
    s_add_u32 s{S_TB}, s{S_TB}, s{S_W}
    s_mul_i32 s{S_XO}, s{S_TB}, {32*1280}
    s_mul_i32 s{S_WO}, s{S_W}, {16*3072}
    s_lshl_b32 s{S_T0}, s{S_C6}, 9
    s_add_u32 s{S_WO}, s{S_WO}, s{S_T0}
    s_lshl_b32 s{S_LX}, s{S_W}, 12
    v_lshrrev_b32 v2, 3, v1
    v_and_b32 v3, 7, v1
    v_lshrrev_b32 v24, 1, v2
    v_xor_b32 v25, v3, v24
    v_lshlrev_b32 v25, 4, v25
    v_mov_b32 v26, 1280
    v_mad_u32_u24 v{VX}, v2, v26, v25
    v_xor_b32 v{VX+1}, 64, v{VX}
    v_add_u32 v{VX+1}, {8*1280-1024}, v{VX+1}
    v_add_u32 v{VX+2}, {16*1280-2048}, v{VX}
    v_add_u32 v{VX+3}, {16*1280-2048}, v{VX+1}
    v_and_b32 v24, 1, v24
    v_lshlrev_b32 v24, 2, v24
    v_xor_b32 v25, v3, v24
    v_lshlrev_b32 v25, 4, v25
    v_mov_b32 v26, 3072
    v_mad_u32_u24 v25, v2, v26, v25
    v_add_u32 v{VW}, 4096, v25
    v_add_u32 v{VW+1}, {4096+8*3072-1024}, v25
    v_add_u32 v{VW+2}, {4096+128*(S0-1)-2048}, v25
    v_add_u32 v{VW+3}, {4096+128*(S0-1)+8*3072-3072}, v25
    v_lshl_add_u32 v27, v1, 3, s{S_T0}
    s_lshl_b32 s{S_T2}, s{S_KR}, 3
    s_mov_b32 s{SRD_U+2}, {2048*1280}
    s_mov_b32 s{SRD_U+3}, 0x20000
    s_mov_b32 s{SRD_W+2}, {640*3072+4096}
    s_mov_b32 s{SRD_W+3}, 0x20000
    s_waitcnt lgkmcnt(0)
    """)
    st(pf("A", "karg"))
    st(srd(SRD_U, P_U, 0)[:2], f"s_sub_u32 s{SRD_W}, s{P_W1}, 4096\ns_subb_u32 s{SRD_W+1}, s{P_W1+1}, 0")
    def ctab(j):
        l = [f"s_lshl_b32 s{S_T0}, s{S_KR}, 7", f"s_add_u32 s{S_CX+j}, s{S_T0}, s{S_XO}",
             f"s_mul_i32 s{S_T0}, s{S_KR}, {64*3072}", f"s_add_u32 s{S_CW+j}, s{S_T0}, s{S_WO}"]
        if j < 9: l += [f"s_add_u32 s{S_KR}, s{S_KR}, 1", f"s_cmp_eq_u32 s{S_KR}, 10\ns_cselect_b32 s{S_KR}, 0, s{S_KR}"]
        return l
    def dma(P):
        _, c, b, us = periods[P]
        l = []
        if c is not None:
            v = [VM(f"buffer_load_dwordx4 v{VX+i}, s[{SRD_U}:{SRD_U+3}], s{S_CX+c} offen offset:{1024*i} lds") for i in range(4)]
            l += [f"s_add_u32 m0, s{S_LX}, {(c & 3)*16384}", [M0GAP, v[0]]] + v[1:]
        v = [VM(f"buffer_load_dwordx4 v{VW+j}, s[{SRD_W}:{SRD_W+3}], s{S_CW+(c if c is not None else 2*(b % 5)+(j >> 1))} offen offset:{1024*j} lds", ("w", P))
             for j in range(4) if j >> 1 in us]
        if c is None and b % 5 == 0: l += [f"v_add_u32 v{VW+j}, {0x100 if (j < 2 and S0 == 2 and b == 10) else 0x80}, v{VW+j}" for j in range(4)]
        return l + [f"s_add_u32 m0, s{S_LX}, {wsl[b]}", [M0GAP, v[0]]] + v[1:]
    st(VM(f"global_load_dwordx2 v[{V_TAG}:{V_TAG+1}], v27, s[{P_B1}:{P_B1+1}]", "b1"))
    st(ctab(0), dma(0))
    a("@SPLIT:")
    st(pf("A", "body"))
    st(srd(SRD_WS, P_WS, WS_SIZE), f"""
    s_and_b32 s{S_T1}, s{S_W}, 1
    s_lshl_b32 s{S_T0}, s{S_C6}, 1
    s_add_u32 s{S_T0}, s{S_T0}, s{S_T1}
    s_lshr_b32 s{S_FL}, s{S_TB}, 1
    s_lshl_b32 s{S_FL}, s{S_FL}, 8
    s_add_u32 s{S_FL}, s{S_FL}, s{S_T0}
    s_lshl_b32 s{S_FL}, s{S_FL}, 2
    s_add_u32 s{S_FL}, s{S_FL}, {FL_H}
    s_lshl_b32 s{S_T0}, s{S_T0}, 11
    s_mul_i32 s{S_HO}, s{S_TB}, {96*1024}
    s_add_u32 s{S_HO}, s{S_HO}, s{S_T0}
    s_xor_b32 s{S_HO+1}, s{S_TB}, 1
    s_mul_i32 s{S_HO+1}, s{S_HO+1}, {96*1024}
    s_add_u32 s{S_HO+1}, s{S_HO+1}, s{S_T0}
    v_lshlrev_b32 v{V_ST}, 4, v1
    v_mov_b32 v{V_EP}, {EP_OFF}
    v_and_b32 v24, 15, v1
    v_add_u32 v24, s{S_T2}, v24
    v_subrev_u32 v25, 80, v24
    v_min_u32 v24, v24, v25
    v_lshlrev_b32 v{V_GL}, 4, v24
    v_bfe_u32 v2, v1, 2, 2
    v_lshrrev_b32 v3, 5, v1
    v_lshl_add_u32 v24, v3, 3, v2
    v_lshlrev_b32 v24, 7, v24
    v_lshrrev_b32 v2, 1, v2
    v_xor_b32 v2, s{S_T1}, v2
    v_lshl_add_u32 v24, v2, 6, v24
    v_bfe_u32 v2, v1, 4, 1
    v_lshl_add_u32 v24, v2, 5, v24
    v_and_b32 v2, 3, v1
    v_lshl_add_u32 v{VRW}, v2, 3, v24
    v_add_u32 v{VRW+1}, 0x10000, v{VRW}
    v_and_b32 v2, 31, v1
    v_bfe_u32 v24, v1, 1, 3
    v_xor_b32 v24, v24, v3
    v_lshlrev_b32 v24, 4, v24
    v_lshl_add_u32 v24, v2, 7, v24
    v_add_u32 v{VRX}, s{S_LX}, v24
    s_lshr_b32 s{S_T2}, s{S_LX}, 1
    s_add_u32 s{S_T2}, s{S_T2}, {A_MISC}
    v_add_u32 v{WF}, s{S_T2}, v{V_ST}
    v_lshl_add_u32 v3, v3, 4, s{S_T2}
    s_lshl_b32 s{S_T1}, s{S_T1}, 7
    v_add_u32 v{V_BR}, s{S_T1}, v3
    """)
    for j in range(1, 8): st(f"v_xor_b32 v{VRX+j}, {32*(j & 3) + 4096*(j >> 2)}, v{VRX}")
    for j in range(1, 10): st(ctab(j))
    st(pf("A", "setup"))
    st(f"s_add_u32 m0, s{S_T2}, 1024\ns_nop 0", VM(f"global_load_lds_dwordx4 v{V_GL}, s[{P_GATE}:{P_GATE+1}]", "gw"),
       VM(f"global_load_dword v0, v{V_EP}, s[{P_WS}:{P_WS+1}] sc1", "tag"))
    st(dma(1)[:cfg.head1])
    st(NEED("b1"), f"v_lshlrev_b32 v24, 16, v{V_TAG}", f"v_and_b32 v25, 0xffff0000, v{V_TAG}", f"v_lshlrev_b32 v26, 16, v{V_TAG+1}", f"v_and_b32 v27, 0xffff0000, v{V_TAG+1}",
       LG(f"ds_write_b128 v{WF}, v[24:27]"), one_lane(V_Z))
    bias = [LG(f"ds_read_b128 {vr(ACC+4*i,4)}, v{V_BR} offset:{256*(i >> 3)+32*(i & 3)}") for i in range(32)]
    st(bias[:8*S0], dma(1)[cfg.head1:])
    for P in range(2, cfg.pre_chunks): st(dma(P))
    st(pf("A", "issued"))
    gate_pairs = [i for i, p in enumerate(pairs[:40*S0]) if p[4] == S0-1][cfg.gate_at:cfg.gate_at+8]
    first_of = {p[0]: P for P, p in enumerate(periods)}
    def reads(i):
        b, u, q, kk, sg = pairs[i]
        l = []
        if i in first_of: l += [[NEED(("w", first_of[i])), "s_barrier"]]
        if sg == 0: l += [LG(f"ds_read_b128 {xreg(kk,tau)}, v{VRX+4*tau+q} offset:{((kk >> 2) & 3)*16384}") for tau in range(2)]
        if i in gate_pairs:
            j = gate_pairs.index(i)
            l += ([NEED("gw")] if j == 0 else []) + [LG(f"ds_read_b128 {vr(GF+4*(j & 3),4)}, v3 offset:{1024+32*j}")]
        o = wsl[b] + 4096*q + 2048*u
        return l + [LG(f"ds_read_b64_tr_b16 {vr(WF+4*(i & 3)+2*s,2)}, v{VRW+(o >> 16)} offset:{(o & 0xffff)+512*s}", ("r", i)) for s in range(2)]
    def epi(sg):
        l = [f"s_add_u32 s{S_ES+tau}, s{S_HO+tau}, {H_OFF + sg*24*1024}" for tau in range(2)]
        for k in range(4):
            r = ACC + 32*sg + 8*k; p = PK + 4*k
            l += [f"v_mul_f32_e64 v{r+e}, v{r+e}, |v{r+e}|" for e in range(8)]
            l += [f"v_cvt_pk_bf16_f32 v{p+e}, v{r+2*e}, v{r+2*e+1}" for e in range(4)]
            l += [f"v_pk_max_i16 v{p+e}, v{p+e}, 0" for e in range(4)]
            l += [VM(f"buffer_store_dwordx4 {vr(p,4)}, v{V_ST}, {WS}, s{S_ES+(k >> 1)} offen offset:{1024*(k & 1)} sc1", ("h", sg))]
        return l
    V_HT, V_HJ, V_HP = 26, 27, 0
    S_MF, S_MH = 28, 29
    def htouch(sg, v): return [f"s_mov_b32 s{S_T0}, {H_OFF + sg*24*1024}", VM(f"buffer_load_dword v{V_HJ}, v{v}, {WS}, s{S_T0} offen sc1")]
    def pub(sg): return [NEED(("h", sg)), flag_set(V_TAG, V_Z, S_FL, 256*sg)] + (htouch(sg, V_HT) if cfg.ht else []) + pf("A", f"pub{sg}")
    def mpoll(sg): V_HP = (24, 0)[sg & 1]; return [f"v_mov_b32 v{V_HP}, 0", VM(f"buffer_atomic_or v{V_HP}, v{V_Z}, {WS}, s{S_MF} offen offset:{256*sg} sc0 sc1", ("mp", sg))]
    def mtouch(sg): V_HP = (24, 0)[sg & 1]; return [NEED(("mp", sg)), f"v_cmp_eq_u32 vcc, v{V_TAG}, v{V_HP}\ns_bitcmp1_b32 vcc_lo, 0\ns_cselect_b32 s{S_T0}, s{S_MH}, {hx(OOB & 0x3fffffff)}",
                            f"v_add_u32 v{V_HP}, s{S_T0}, v{V_HT}"] + htouch(sg, V_HP)
    htsetup = f"""v_and_b32 v24, 15, v1
    v_mov_b32 v25, s{S_HO}
    v_mov_b32 v26, s{S_HO+1}
    s_mov_b32 vcc_lo, 0xffff0000
    s_mov_b32 vcc_hi, 0xffff0000
    v_cndmask_b32 v25, v25, v26, vcc
    v_lshl_add_u32 v{V_HT}, v24, 7, v25
    s_cmp_ge_u32 s{S_C6}, 3
    s_cselect_b32 s{S_MH}, -3, 3
    s_lshl_b32 s{S_MF}, s{S_MH}, 3
    s_add_u32 s{S_MF}, s{S_MF}, s{S_FL}
    s_lshl_b32 s{S_MH}, s{S_MH}, 12"""
    gate = [f"s_lshl_b32 s{S_T1}, s{S_TB}, 10", f"s_add_u32 s{S_T1}, s{S_T1}, {G_OFF}", f"s_lshl_b32 s{S_T2}, s{S_C6}, 7",
            f"v_lshl_add_u32 v25, v2, 2, s{S_T2}", VM(f"buffer_store_dword v{V_GL}, v25, {WS}, s{S_T1} offen sc1")]
    mf = []; mand = {}; post = {}; g0 = []
    qend = [max(i for i, p in enumerate(pairs) if p[4] == sg) for sg in range(4)]
    for i, (b, u, q, kk, sg) in enumerate(pairs):
        m_ = [f"v_mfma_f32_32x32x16_bf16 {vr(ACC+32*sg+16*tau,16)}, {vr(WF+4*(i & 3),4)}, {xreg(kk,tau)}, {vr(ACC+32*sg+16*tau,16)}" for tau in range(2)]
        if i in gate_pairs:
            j = gate_pairs.index(i)
            m_.append(f"v_mfma_f32_32x32x16_bf16 {vr(GACC,16)}, {vr(GF+4*(j & 3),4)}, {xreg(j,0)}, {vr(GACC,16) if j else 0}")
        m_[0] = [NEED(("r", i)), m_[0]]
        g0.append(len(mf))
        if i + LEAD < 160: mand[len(mf)] = reads(i+LEAD)
        if i in first_of: post[len(mf)] = pf("A", f"u{first_of[i]}")
        if i in qend: post[len(mf)+1] = pf("A", f"q{qend.index(i)}")
        mf += m_
    g0.append(len(mf))
    sd = []; nxt = max(cfg.pre_chunks, 2)
    for e in range(NP):
        gb = g0[bar_pos[e]]; ge = g0[bar_pos[e+1]] - 1
        l = []; n = 0
        while nxt < NP and wearliest[periods[nxt][2]] <= e and nxt <= e + (2 if nxt < 10 else cfg.wlead) and (nxt <= e + 2 or n < (2 if S0 == 2 or e >= 10 else 1)):
            if nxt >= 10 and e < 8: break
            d_ = dma(nxt); gd = max(g0[bar_pos[nxt - cfg.wmin + 1]] - 1, ge)
            l += [(x, gd - 2*(len(d_) - 1 - j)) for j, x in enumerate(d_)]; nxt += 1; n += 1
        assert nxt > e + 1 or nxt == NP
        sd += [(x, gb, min(gb + int(j*cfg.dma_gap), ge) if e < cfg.paced else max(gd, gb)) for j, (x, gd) in enumerate(l)]
    assert nxt == NP
    gg = g0[gate_pairs[-1]+3]; gl = g0[40*S0-6]
    se = [(x, g0[4], gl) for x in bias[8*S0:24]] + [(f"v_mov_b32 v{V_GL}, v{GACC}\ns_nop 0", gg, gl)] + [(x, gg, gl) for x in bias[24:]] + \
         [([NEED("tag"), f"v_add_u32 v{V_TAG}, {hx(TAG_STEP)}, v0"], gg, gl)]
    if cfg.ht: st(htsetup)
    spub = []
    ga = 0
    for sg in range(3):
        ga0 = g0[qend[sg]+2]; ga = max(ga, ga0)
        l = epi(sg)
        NE, PD = cfg.ne[sg], cfg.pd[sg]
        se += [(x, ga0, ga + 1 + 2*j//NE) for j, x in enumerate(l)]
        se[-1] += ((0, pub(sg), 2*PD) + (((0, mpoll(sg), 2*cfg.mp[0], (0, mtouch(sg), 2*cfg.mp[1])),) if cfg.ht > 1 else ()),)
        ga += 2*(len(l)//NE)
        if sg == 1: se += [(x, ga0, ga + 8) for x in gate]
    for i in range(LEAD): st(reads(i))
    sched(st, mf, lambda g: cfg.cap if g < g0[qend[0]] else cfg.cap2, mand, [spub, se, sd] if cfg.epi_first else [spub, sd, se], post)
    st("s_nop 8", epi(3), pub(3))
    if cfg.ht > 1:
        a("L_mir:", "s_add_u32 s100, s100, 1", f"s_cmp_gt_u32 s100, {cfg.spin_limit}", "s_cbranch_scc1 L_exit", f"v_mov_b32 v{V_HP}, 0",
          f"buffer_atomic_or v{V_HP}, v{V_Z}, {WS}, s{S_MF} offen offset:768 sc0 sc1", "s_waitcnt vmcnt(0)",
          f"v_cmp_eq_u32 vcc, v{V_TAG}, v{V_HP}", "s_bitcmp1_b32 vcc_lo, 0", "s_cbranch_scc0 L_mir",
          f"v_add_u32 v{V_HP}, s{S_MH}, v{V_HT}", f"buffer_load_dword v{V_HJ}, v{V_HP}, {WS}, s{S_T0} offen sc1")
    a(f"s_or_b32 s{S_T0}, s2, s{S_W}", f"s_cmp_lg_u32 s{S_T0}, 0", "s_cbranch_scc1 L_a_done",
      "v_and_b32 v3, 15, v1", "v_lshrrev_b32 v4, 4, v1", "v_lshlrev_b32 v2, 8, v4", "v_lshl_add_u32 v2, v3, 2, v2", f"v_add_u32 v2, {FL_Y}, v2",
      "v_lshlrev_b32 v3, 11, v3", "v_lshl_add_u32 v3, v4, 3, v3", f"v_add_u32 v3, {FL_H}, v3",
      "L_ep:", "s_sleep 8", "s_add_u32 s100, s100, 1", f"s_cmp_gt_u32 s100, {cfg.spin_limit}", "s_cbranch_scc1 L_exit",
      *[f"v_mov_b32 v{32+i}, 0" for i in range(5)],
      polls.op(32, 2, 0), polls.op(33, 2, 1024), polls.op(34, 2, 1536), polls.op(35, 3, 0), polls.op(36, 3, 16),
      "s_waitcnt vmcnt(0)", "v_mov_b32 v4, 0")
    for i in range(5): a(f"v_xor_b32 v{32+i}, v{32+i}, v{V_TAG}", f"v_or_b32 v4, v4, v{32+i}")
    a("v_cmp_ne_u32 vcc, 0, v4", "s_cbranch_vccnz L_ep",
      f"global_store_dword v{V_EP}, v{V_TAG}, s[{P_WS}:{P_WS+1}] sc1", "L_a_done:")

def kdesc(name):
    return f""".section .rodata,"a"
.p2align 6
.amdhsa_kernel {name}
  .amdhsa_next_free_vgpr 512
  .amdhsa_next_free_sgpr 102
  .amdhsa_accum_offset 256
  .amdhsa_group_segment_fixed_size 0
  .amdhsa_kernarg_size 144
  .amdhsa_user_sgpr_count 2
  .amdhsa_user_sgpr_kernarg_segment_ptr 1
  .amdhsa_system_sgpr_workgroup_id_x 1
.end_amdhsa_kernel
.text
"""
def khead(name):
    return f""".globl {name}
.p2align 8
.type {name},@function
{name}:
"""

def align8(a):
    import subprocess, re, os, tempfile
    d = tempfile.mkdtemp()
    open(d + "/a.s", "w").write('.amdgcn_target "amdgcn-amd-amdhsa--gfx950"\n.text\n' + NAME + "_kernel:\n" + a.text())
    subprocess.check_call(["clang", "-x", "assembler", "-target", "amdgcn-amd-amdhsa", "-mcpu=gfx950", "-c", d + "/a.s", "-o", d + "/a.o"])
    dis = subprocess.check_output(["llvm-objdump", "-d", "--mcpu=gfx950", d + "/a.o"], text=True)
    sizes = [4*len(m.group(1).split()) for m in re.finditer(r"// [0-9A-F]+: ([0-9A-F ]+?)(?: <.*)?$", dis, re.M)]
    idx = [i for i, l in enumerate(a.l) if not l.endswith(":")]
    assert len(idx) == len(sizes), (len(idx), len(sizes))
    WIDE = ("v_mul_f32", "v_add_f32", "v_sub_f32", "v_add_u32", "v_sub_u32", "v_subrev_u32", "v_mov_b32", "v_lshlrev_b32", "v_lshrrev_b32", "v_xor_b32",
            "v_and_b32", "v_or_b32", "v_exp_f32", "v_sin_f32", "v_cos_f32", "v_fract_f32", "v_rcp_f32", "v_min_u32", "v_max_u32", "v_max_i32", "v_mul_u32_u24")
    out = dict(); off = 0; n = len(idx); cand = None
    for j in range(n):
        line = a.l[idx[j]]; op = line.split()[0]
        if sizes[j] == 8 and off % 8 == 4:
            if cand is not None:
                l2 = a.l[idx[cand]]; o2 = l2.split()[0]
                a.l[idx[cand]] = l2.replace(o2, o2 + "_e64", 1); off += 4
            else:
                run = 0; mf = False
                while j + run < n and sizes[j+run] == 8:
                    mf |= "mfma" in a.l[idx[j+run]]; run += 1
                if run >= 6 and not mf: out[idx[j]] = "    s_nop 0"; off += 4
        if sizes[j] == 8: cand = None
        elif op in WIDE and off % 8 == 0: cand = j
        elif op in WIDE and cand is None: cand = j
        off += sizes[j]
    l = []
    for i, x in enumerate(a.l):
        if i in out: l.append(out[i])
        l.append(x)
    a.l = l

def build_fused(cfg):
    pf = Prof(cfg); a = Asm(); s0 = Stream(a)
    a(f"""
    s_cmp_ge_u32 s2, 256
    s_cbranch_scc1 L_exit
    s_load_dwordx16 s[4:19], s[0:1], 0
    s_load_dwordx16 s[20:35], s[0:1], 64
    s_load_dwordx4 s[36:39], s[0:1], 128
    v_lshrrev_b32 v2, 6, v0
    v_and_b32 v1, 63, v0
    s_and_b32 s{S_XCD}, s2, 7
    v_readfirstlane_b32 s{S_W}, v2
    s_lshr_b32 s{S_SLOT}, s2, 3
    s_mov_b32 s100, 0
    """)
    if cfg.codepf:
        a(f"""
        s_getpc_b64 s[66:67]
        s_lshl_b32 s68, s{S_SLOT}, 2
        s_add_u32 s68, s68, s{S_W}
        s_mul_i32 s68, s68, 384
        v_min_u32 v2, 2, v1
        v_lshl_add_u32 v2, v2, 7, s68
        v_min_u32 v2, L_code_end-{NAME}_kernel-128, v2
        global_load_dword a255, v2, s[66:67]
        """)
    a(f"s_cmp_lt_u32 s{S_SLOT}, 12", "s_cbranch_scc1 L_roleA")
    pb = Polls(cfg)
    parts = {}
    for role, fn in (("B", role_b), ("A", role_a)):
        b = Asm(); sb = Stream(b)
        sb(pf(role, "start_real", real=True), pf(role, "start"))
        fn(b, cfg, pf, pb)
        if cfg.prof: b("s_waitcnt vmcnt(0)")
        sb(pf(role, "end"), pf(role, "end_real", real=True))
        pf.flush(b, role)
        if role == "B": b("L_exit:")
        b("s_endpgm")
        b(*pb.tail); pb.tail = []
        k = b.l.index("@SPLIT:")
        parts[role] = (b.l[:k], b.l[k+1:])
    if cfg.layout:
        a.l += parts["B"][0]; a("s_branch L_bodyB", "L_roleA:"); a.l += parts["A"][0]; a("s_branch L_bodyA", "L_bodyB:")
        a.l += parts["B"][1]; a("L_bodyA:"); a.l += parts["A"][1]
    else:
        a.l += parts["B"][0] + parts["B"][1]; a("L_roleA:"); a.l += parts["A"][0] + parts["A"][1]
    a("L_code_end:", "s_endpgm")
    if cfg.align: align8(a)
    txt = "; @launch grid=(256,1,1) block=(256,1,1) lds=163840\n"
    txt += '.amdgcn_target "amdgcn-amd-amdhsa--gfx950"\n.text\n'
    if cfg.page: txt += ".p2align 12\n"
    txt += khead(NAME + "_kernel") + a.text() + kdesc(NAME + "_kernel")
    return txt, pf

if __name__ == "__main__":
    cfg = Cfg()
    for kv in sys.argv[2:]:
        k, v = kv.split("="); setattr(cfg, k, eval(v))
    open(sys.argv[1], "w").write(build_fused(cfg)[0])
```
